```python
import torch

def _softmax(x, axis=-1):
    return torch.softmax(x, dim=axis)
def _gelu(x):
    return torch.nn.functional.gelu(x, approximate="tanh")
def _silu(x):
    return torch.nn.functional.silu(x)
def _sigmoid(x):
    return torch.sigmoid(x)
def _layernorm(x, axis=-1, eps=1e-5):
    m = x.mean(dim=axis, keepdim=True)
    v = x.var(dim=axis, keepdim=True, unbiased=False)
    return (x - m) / torch.sqrt(v + eps)
def _scatter_add(tgt, idx, src, axis=0):
    return tgt.clone().index_add_(axis, idx, src)
def _segment_sum(src, seg, n):
    out = torch.zeros((n,) + src.shape[1:], dtype=src.dtype)
    return out.index_add_(0, seg, src)
def _pad(x, pw):
    flat = tuple(v for pair in reversed(pw) for v in pair)
    return torch.nn.functional.pad(x, flat)

kernel_name = 'parallel_sum__mha_block_cached__geglu_ffn__decode'

def setup_inputs():

    _w = (lambda a: (lambda t: t.to(torch.bfloat16) if t.is_floating_point() else t)(torch.as_tensor(a)))
    def _A_setup():
        B, Sq, D = 4, 1, 576
        H, Sk, Dh = 32, 8192, 128
        return {
            "x": _w((lambda *s: torch.randn(*s, dtype=torch.bfloat16) * 0.05)(B, Sq, D)),
            "k_cache": _w((lambda *s: torch.randn(*s, dtype=torch.bfloat16) * 3.2)(B, H, Sk, Dh)),
            "v_cache": _w((lambda *s: torch.randn(*s, dtype=torch.bfloat16) * 1.6)(B, H, Sk, Dh)),
            "wq": _w((lambda *s: torch.randn(*s, dtype=torch.bfloat16) * 3.2)(D, H * Dh) * (D ** -0.5)),
            "wo": _w((lambda *s: torch.randn(*s, dtype=torch.bfloat16) * 1.6)(H * Dh, D) * ((H * Dh) ** -0.5)),
        }
    _A_in = _A_setup()

    def _B_setup():
        B, S, D, F = 4, 1, 576, 4608
        return {
            "x": _w((lambda *s: torch.randn(*s, dtype=torch.bfloat16) * 0.05)(B, S, D)),
            "w_gate": _w((lambda *s: torch.randn(*s, dtype=torch.bfloat16) * 0.05)(D, F)),
            "w_up": _w((lambda *s: torch.randn(*s, dtype=torch.bfloat16) * 0.05)(D, F)),
            "w_down": _w((lambda *s: torch.randn(*s, dtype=torch.bfloat16) * 0.05)(F, D)),
        }
    _B_in = _B_setup()

    return {
        "A_x": _A_in["x"],
        "A_k_cache": _A_in["k_cache"],
        "A_v_cache": _A_in["v_cache"],
        "A_wq": _A_in["wq"],
        "A_wo": _A_in["wo"],
        "B_x": _B_in["x"],
        "B_w_gate": _B_in["w_gate"],
        "B_w_up": _B_in["w_up"],
        "B_w_down": _B_in["w_down"],
    }

def reference(A_x, A_k_cache, A_v_cache, A_wq, A_wo, B_x, B_w_gate, B_w_up, B_w_down):
    def _A_ref(x, k_cache, v_cache, wq, wo):
        B, Sq, D = x.shape
        H, Dh = 32, 128
        q = (lambda x, *d: x.permute(*d))((x @ wq).reshape(B, Sq, H, Dh), 0, 2, 1, 3)
        scores = torch.einsum("bhqd,bhkd->bhqk", q, k_cache) * (Dh ** -0.5)
        p = _softmax(scores, axis=-1)
        o = torch.einsum("bhqk,bhkd->bhqd", p, v_cache)
        return (lambda x, *d: x.permute(*d))(o, 0, 2, 1, 3).reshape(B, Sq, H * Dh) @ wo

    def _B_ref(x, w_gate, w_up, w_down):
        return (_gelu(x @ w_gate) * (x @ w_up)) @ w_down

    x = A_x
    xn = _layernorm(x, axis=-1)
    return x + _A_ref(xn, A_k_cache, A_v_cache, A_wq, A_wo) + _B_ref(xn, B_w_gate, B_w_up, B_w_down)
```

```python
import sys
KN = "parallel_sum__mha_block_cached__geglu_ffn__decode_kernel"

QWS = 0
HWS = 0x8000
PO = 0x20000
PM = 0xA0000
YW = 0xB0000
WS_SIZE = 0x100000
STAMP = 0x100000
XN = 0; QL = 4608; HL = 5632; OL = 6912; WP = 7936; WM = 12032
WQT = 12288; G1 = 30720; U1 = 49152; G2 = 67584; U2 = 86016; WOT = 104448; WDT = 123648
LDS_SIZE = 144896

LOG2E = 0x3fb8aa3b
SCALE = 0x3db504f3
DP = "row_mask:0xf bank_mask:0xf"

HEADER = """; Kernarg layout for this problem (96 bytes, ptrs only, base s[0:1]):
"""

class A:
    def __init__(self):
        self.o = []
    def __call__(self, s):
        for ln in s.strip("\n").split("\n"):
            ln = ln.strip()
            if ln:
                self.o.append(ln if ln.endswith(":") or ln.startswith((".", ";")) else "    " + ln)
    def text(self):
        return "\n".join(self.o) + "\n"

def gen(NB=3, amap=0, tmap=0, wflag="nt", kvflag="nt", stamps=0, spin=1 << 20):
    e = A()
    nst = [0]
    def stamp(k):
        if stamps:
            e(f"s_memrealtime s[{60+2*k}:{61+2*k}]\ns_waitcnt lgkmcnt(0)")
    KB = 32
    NV = KB + NB * 32
    NV = max(NV, 132)
    e(f"; @launch grid=(256,1,1) block=(512,1,1) lds={LDS_SIZE}")
    e(f""".amdgcn_target "amdgcn-amd-amdhsa--gfx950"
.text
.globl {KN}
.p2align 8
.type {KN},@function
{KN}:
s_cmp_ge_u32 s2, 256
s_cbranch_scc1 L_end
s_load_dwordx16 s[4:19], s[0:1], 0
s_load_dwordx8 s[20:27], s[0:1], 64""")
    if stamps:
        for k in range(8):
            e(f"s_mov_b32 s{60+2*k}, 0")
    stamp(0)
    e("""v_lshrrev_b32 v1, 6, v0
v_and_b32 v0, 63, v0
v_readfirstlane_b32 s3, v1
s_and_b32 s48, s2, 7
s_lshr_b32 s49, s2, 3""")
    if amap == 0:
        e("s_mov_b32 s50, s49\ns_mov_b32 s51, s48")
    else:
        e("s_and_b32 s50, s2, 31\ns_lshr_b32 s51, s2, 5")
    e("""s_and_b32 s52, s49, 3
s_lshl_b32 s53, s48, 2
s_add_u32 s52, s52, s53
s_lshr_b32 s53, s2, 5
s_lshl_b32 s54, s48, 5
s_add_u32 s54, s54, s49
s_mul_i32 s55, s48, 36
s_add_u32 s55, s55, s49
s_and_b32 s56, s3, 3
s_lshr_b32 s57, s3, 2
s_lshl_b32 s58, s56, 5
s_add_u32 s58, s58, s50
s_lshl_b32 s59, s58, 21""")
    if tmap == 0:
        e("""s_and_b32 s76, s51, 1
s_lshl_b32 s77, s57, 1
s_add_u32 s76, s76, s77
s_lshr_b32 s77, s51, 1
s_lshl_b32 s77, s77, 2
s_add_u32 s76, s76, s77
s_lshl_b32 s76, s76, 12""")
        steps = [65536]
        rng = 2 << 20
    else:
        e("""s_lshl_b32 s76, s51, 18
s_add_u32 s59, s59, s76
s_lshl_b32 s76, s57, 13""")
        steps = [4096, 12288]
        rng = 256 << 10
    e(f"""v_lshlrev_b32 v1, 4, v0
s_mov_b32 s77, s76
s_waitcnt lgkmcnt(0)
s_add_u32 s28, s6, s59
s_addc_u32 s29, s7, 0
s_mov_b32 s30, {rng}
s_mov_b32 s31, 0x20000
s_add_u32 s32, s8, s59
s_addc_u32 s33, s9, 0
s_mov_b32 s34, {rng}
s_mov_b32 s35, 0x20000
s_mov_b32 s44, s26
s_mov_b32 s45, s27
s_mov_b32 s46, {WS_SIZE}
s_mov_b32 s47, 0x20000""")

    tcount = [0, 0]
    def issue_k(buf, n):
        for j in range(4):
            r = KB + buf * 32 + j * 4
            e(f"buffer_load_dwordx4 v[{r}:{r+3}], v1, s[28:31], s76 offen offset:{j*1024} {kvflag}")
        e(f"s_add_u32 s76, s76, {steps[n % len(steps)]}")
    def issue_v(buf, n):
        for j in range(4):
            r = KB + buf * 32 + 16 + j * 4
            e(f"buffer_load_dwordx4 v[{r}:{r+3}], v1, s[32:35], s77 offen offset:{j*1024} {kvflag}")
        e(f"s_add_u32 s77, s77, {steps[n % len(steps)]}")
    def prefetch():
        for b in range(NB):
            issue_k(b, b); issue_v(b, b)
    def xloads():
        e("""s_mul_i32 s36, s56, 1152
s_add_u32 s36, s4, s36
s_addc_u32 s37, s5, 0
s_mov_b32 s38, 1152
s_mov_b32 s39, 0x20000
v_lshlrev_b32 v7, 2, v0""")
        for j in range(5):
            e(f"buffer_load_dword v{2+j}, v7, s[36:39], 0 offen offset:{256*j}")
    def dma_cols(ptr, rowstride, blk_sreg, ldsbase):
        e(f"""s_mov_b32 s40, s{ptr}
s_mov_b32 s41, s{ptr+1}
s_mov_b32 s42, {576*rowstride}
s_mov_b32 s43, 0x20000
v_lshrrev_b32 v8, 1, v0
v_mul_u32_u24 v8, {rowstride}, v8
v_and_b32 v9, 1, v0
v_lshlrev_b32 v9, 4, v9
v_add_u32 v8, v8, v9
s_lshl_b32 s78, s{blk_sreg}, 5""")
        for n in range(18):
            e(f"s_mov_b32 m0, {ldsbase + 1024*n}")
            if n:
                e(f"s_add_u32 s78, s78, {32*rowstride}")
            else:
                e("s_nop 0")
            e(f"buffer_load_dwordx4 v8, s[40:43], s78 offen {wflag} lds")
    def dma_rows(ptr, nrows_total, row0_mul, ninstr, ldsbase):
        e(f"""s_mov_b32 s40, s{ptr}
s_mov_b32 s41, s{ptr+1}
s_mov_b32 s42, {nrows_total*1152}
s_mov_b32 s43, 0x20000
v_mul_u32_u24 v8, 57, v0
v_lshrrev_b32 v8, 9, v8
v_mul_u32_u24 v9, 9, v8
v_sub_u32 v9, v0, v9
v_lshlrev_b32 v9, 4, v9
v_mul_u32_u24 v8, 1152, v8
v_add_u32 v8, v8, v9
s_mul_i32 s78, s52, {row0_mul*1152}
s_mul_i32 s79, s53, 144
s_add_u32 s78, s78, s79""")
        for n in range(ninstr):
            e(f"s_mov_b32 m0, {ldsbase + 1008*n}")
            if n:
                e(f"s_add_u32 s78, s78, {7*1152}")
            else:
                e("s_nop 0")
            e(f"buffer_load_dwordx4 v8, s[40:43], s78 offen {wflag} lds")

    for w in range(1, 8):
        e(f"s_cmp_eq_u32 s3, {w}\ns_cbranch_scc1 L_a{w}")
    xloads(); dma_cols(10, 8192, 54, WQT)
    e("s_waitcnt vmcnt(18)\ns_branch L_ln")
    e("L_a1:")
    xloads(); dma_cols(16, 9216, 55, G1); dma_cols(18, 9216, 55, U1)
    e("s_waitcnt vmcnt(36)\ns_branch L_ln")
    e("L_a2:")
    e("s_cmp_ge_u32 s49, 4\ns_cbranch_scc1 L_a3\ns_add_u32 s55, s55, 32")
    xloads(); dma_cols(16, 9216, 55, G2); dma_cols(18, 9216, 55, U2)
    e("s_waitcnt vmcnt(36)\ns_branch L_ln")
    e("L_a3:")
    xloads(); prefetch()
    e(f"s_waitcnt vmcnt({8*NB})\ns_branch L_ln")
    e("L_a4:")
    e(f"""v_mov_b32 v4, -1
v_mov_b32 v5, -1
v_mov_b32 v6, -1
v_mov_b32 v7, -1
s_lshl_b32 s78, s50, 3
s_add_u32 s78, s78, s51
s_lshl_b32 s79, s78, 11
s_add_u32 s79, s79, {PO}
buffer_store_dwordx4 v[4:7], v1, s[44:47], s79 offen sc1
buffer_store_dwordx4 v[4:7], v1, s[44:47], s79 offen offset:1024 sc1
s_lshl_b32 s79, s78, 5
s_add_u32 s79, s79, {PM}
s_mov_b64 exec, 3
buffer_store_dwordx4 v[4:7], v1, s[44:47], s79 offen sc1
s_mov_b64 exec, -1
s_lshl_b32 s78, s53, 5
s_add_u32 s78, s78, s52
s_mul_i32 s79, s78, 1152
s_add_u32 s79, s79, {YW}
buffer_store_dwordx4 v[4:7], v1, s[44:47], s79 offen sc1
buffer_store_dwordx4 v[4:7], v1, s[44:47], s79 offen offset:128 sc1""")
    prefetch()
    e(f"s_waitcnt vmcnt({8*NB})\ns_branch L_b1")
    e("L_a5:")
    prefetch()
    e("s_branch L_b1")
    e("L_a6:")
    dma_rows(12, 4096, 128, 19, WOT); prefetch()
    e("s_branch L_b1")
    e("L_a7:")
    dma_rows(20, 4608, 144, 21, WDT); prefetch()
    e("s_branch L_b1")

    def wave_sum(r, t):
        for k in (8, 4, 2, 1):
            e(f"s_nop 1\nv_add_f32_dpp v{r}, v{r}, v{r} row_ror:{k} {DP}")
        for sw in (16, 32):
            e(f"v_mov_b32 v{t}, v{r}\ns_nop 1\nv_permlane{sw}_swap_b32 v{r}, v{t}\ns_nop 0\nv_add_f32 v{r}, v{r}, v{t}")
    def rbf(d, s):
        e(f"v_cvt_pk_bf16_f32 v{d}, v{s}, v{s}\nv_and_b32 v{d}, 0xffff0000, v{d}")
    e("L_ln:")
    for j in range(5):
        e(f"v_lshlrev_b32 v{10+2*j}, 16, v{2+j}\nv_and_b32 v{11+2*j}, 0xffff0000, v{2+j}")
    e("v_add_f32 v20, v10, v11")
    for j in range(12, 20):
        e(f"v_add_f32 v20, v20, v{j}")
    wave_sum(20, 21)
    e("v_mul_f32 v20, 0x3ae38e39, v20")
    e("v_cmp_gt_u32 vcc, 32, v0")
    for j in range(10):
        e(f"v_sub_f32 v{22+j if j < 8 else 2+j-8}, v{10+j}, v20")
    e("v_cndmask_b32 v2, 0, v2, vcc\nv_cndmask_b32 v3, 0, v3, vcc")
    e("v_mul_f32 v21, v2, v2\nv_fmac_f32 v21, v3, v3")
    for j in range(8):
        e(f"v_fmac_f32 v21, v{22+j}, v{22+j}")
    wave_sum(21, 22)
    e("v_mul_f32 v21, 0x3ae38e39, v21")
    rbf(21, 21)
    e("v_add_f32 v21, 0x3727c5ac, v21")
    rbf(21, 21)
    e("v_sqrt_f32 v21, v21\ns_nop 0")
    rbf(21, 21)
    e("v_rcp_f32 v21, v21")
    rbf(20, 20)
    for j in range(10):
        e(f"v_sub_f32 v{10+j}, v{10+j}, v20")
    for j in range(5):
        e(f"v_cvt_pk_bf16_f32 v{2+j}, v{10+2*j}, v{11+2*j}")
    for j in range(5):
        e(f"v_lshlrev_b32 v{10+2*j}, 16, v{2+j}\nv_and_b32 v{11+2*j}, 0xffff0000, v{2+j}")
    for j in range(10):
        e(f"v_mul_f32 v{10+j}, v{10+j}, v21")
    for j in range(5):
        e(f"v_cvt_pk_bf16_f32 v{2+j}, v{10+2*j}, v{11+2*j}")
    e("s_mul_i32 s78, s56, 1152\nv_add_u32 v7, s78, v7")
    for j in range(4):
        e(f"ds_write_b32 v7, v{2+j} offset:{XN+256*j}")
    e(f"s_mov_b64 exec, 0xffffffff\nds_write_b32 v7, v6 offset:{XN+1024}\ns_mov_b64 exec, -1")
    e("s_waitcnt lgkmcnt(0)")
    e("L_b1:\ns_barrier")
    stamp(1)

    def gemv16(tiles, accs):
        nm = len(tiles)
        per = 2 * nm + 1
        rb = 4 * nm + 4
        e("""v_lshrrev_b32 v8, 4, v0
v_lshlrev_b32 v9, 4, v8
v_lshlrev_b32 v8, 3, v8
v_bfe_u32 v10, v0, 2, 2
v_add_u32 v8, v8, v10
v_lshlrev_b32 v8, 5, v8
v_and_b32 v10, 3, v0
v_lshl_add_u32 v8, v10, 3, v8
v_mul_u32_u24 v10, 1152, v10
v_add_u32 v9, v9, v10""")
        for m, t in enumerate(tiles):
            e(f"v_add_u32 v{11+m}, {t}, v8")
        for a in accs:
            for r in range(4):
                e(f"v_mov_b32 v{a+r}, 0")
        def rd(s):
            base = 32 + (s % 4) * rb
            e(f"ds_read_b128 v[{base}:{base+3}], v9 offset:{XN+64*s}")
            for m in range(nm):
                r = base + 4 + 4 * m
                e(f"ds_read_b64_tr_b16 v[{r}:{r+1}], v{11+m} offset:{1024*s}")
                e(f"ds_read_b64_tr_b16 v[{r+2}:{r+3}], v{11+m} offset:{1024*s+128}")
        depth = 3 if per * 3 <= 15 else 2
        for s in range(depth):
            rd(s)
        for s in range(18):
            left = min(depth - 1, 17 - s)
            e(f"s_waitcnt lgkmcnt({left*per})")
            base = 32 + (s % 4) * rb
            for m in range(nm):
                r = base + 4 + 4 * m
                e(f"v_mfma_f32_16x16x32_bf16 v[{accs[m]}:{accs[m]+3}], v[{r}:{r+3}], v[{base}:{base+3}], v[{accs[m]}:{accs[m]+3}]")
            if s + depth < 18:
                rd(s + depth)
        e("s_nop 7\ns_nop 1")
    def store_vec(r, rowbytes, wsoff, blk_sreg):
        e(f"""v_and_b32 v8, 15, v0
v_cmp_gt_u32 vcc, 4, v8
v_mul_u32_u24 v8, {rowbytes}, v8
v_lshrrev_b32 v9, 4, v0
v_lshl_add_u32 v8, v9, 3, v8
s_lshl_b32 s78, s{blk_sreg}, 5
s_add_u32 s78, s78, {wsoff}
s_and_saveexec_b64 s[80:81], vcc
buffer_store_dwordx2 v[{r}:{r+1}], v8, s[44:47], s78 offen sc1
s_mov_b64 exec, -1
s_waitcnt vmcnt(0)""")
    def flag_add(idx_sreg, val):
        e(f"""s_lshl_b32 s78, s{idx_sreg}, 2
v_mov_b32 v8, s78
v_mov_b32 v9, {val}
s_mov_b64 exec, 1
global_atomic_add v8, v9, s[24:25] sc1
s_mov_b64 exec, -1""")

    e("s_cmp_eq_u32 s3, 0\ns_cbranch_scc1 L_c0")
    e("s_cmp_ge_u32 s3, 3\ns_cbranch_scc1 L_b2")
    e("s_cmp_eq_u32 s3, 1\ns_cbranch_scc1 L_c1")
    e("s_cmp_ge_u32 s49, 4\ns_cbranch_scc1 L_b2")
    e("s_waitcnt vmcnt(0)")
    gemv16([G2, U2], [16, 20])
    e("s_branch L_cg")
    e("L_c1:\ns_waitcnt vmcnt(0)")
    gemv16([G1, U1], [16, 20])
    e("L_cg:")
    for r in range(4):
        rbf(16 + r, 16 + r); rbf(20 + r, 20 + r)
    e("s_mov_b32 s78, 0x3d372713\ns_mov_b32 s79, 0xc0135761")
    for r in range(4):
        g = 16 + r; t = 24 + r
        e(f"""v_mul_f32 v{t}, v{g}, v{g}
v_mul_f32 v{t}, v{t}, v{g}
v_fma_f32 v{t}, v{t}, s78, v{g}
v_mul_f32 v{t}, s79, v{t}
v_exp_f32 v{t}, v{t}
s_nop 0
v_add_f32 v{t}, 1.0, v{t}
v_rcp_f32 v{t}, v{t}
s_nop 0
v_mul_f32 v{t}, v{t}, v{g}""")
        rbf(t, t)
        e(f"v_mul_f32 v{t}, v{t}, v{20+r}")
    e("v_cvt_pk_bf16_f32 v16, v24, v25\nv_cvt_pk_bf16_f32 v17, v26, v27")
    store_vec(16, 9216, HWS, 55)
    e("s_mul_i32 s82, s55, 7282\ns_lshr_b32 s82, s82, 16")
    flag_add(82, 0x10000)
    prefetch()
    e("s_branch L_b2")

    e("L_c0:\ns_waitcnt vmcnt(0)")
    gemv16([WQT], [16])
    e("v_cvt_pk_bf16_f32 v16, v16, v17\nv_cvt_pk_bf16_f32 v17, v18, v19")
    store_vec(16, 8192, QWS, 54)
    e("s_lshr_b32 s82, s54, 3")
    flag_add(82, 1)
    stamp(2)
    e(f"""s_lshl_b32 s78, s50, 2
v_mov_b32 v8, s78
s_mov_b32 s83, {spin}
L_pq:
global_load_dword v9, v8, s[24:25] sc1
s_sub_u32 s83, s83, 1
s_cbranch_scc1 L_pq_done
s_waitcnt vmcnt(0)
v_readfirstlane_b32 s78, v9
s_and_b32 s78, s78, 0xffff
s_cmp_lt_u32 s78, 8
s_cbranch_scc1 L_pq
L_pq_done:
v_lshrrev_b32 v8, 4, v0
v_lshlrev_b32 v8, 13, v8
v_and_b32 v9, 15, v0
v_lshl_add_u32 v8, v9, 4, v8
s_lshl_b32 s78, s50, 8
s_add_u32 s78, s78, {QWS}
buffer_load_dwordx4 v[12:15], v8, s[44:47], s78 offen sc1
s_waitcnt vmcnt(0)
ds_write_b128 v1, v[12:15] offset:{QL}
s_waitcnt lgkmcnt(0)
s_barrier""")
    stamp(3)
    e(f"""v_and_b32 v8, 31, v0
v_lshlrev_b32 v8, 2, v8
s_mov_b32 s83, {spin}
L_ph:
global_load_dword v9, v8, s[24:25] sc1
s_sub_u32 s83, s83, 1
s_cbranch_scc1 L_ph_done
s_waitcnt vmcnt(0)
v_readlane_b32 s78, v9, s52
v_and_b32 v9, 0xffff, v9
v_cmp_ne_u32 vcc, 8, v9
s_lshr_b32 s78, s78, 16
s_cmp_lt_u32 s78, 9
s_cbranch_scc1 L_ph
s_cbranch_vccnz L_ph
L_ph_done:
v_lshrrev_b32 v8, 4, v0
v_mul_u32_u24 v10, 288, v8
v_mul_u32_u24 v8, 9216, v8
v_and_b32 v9, 15, v0
v_lshlrev_b32 v9, 4, v9
v_and_b32 v11, 16, v9
v_add_u32 v11, 256, v11
v_add_u32 v20, v8, v9
v_add_u32 v21, v8, v11
v_add_u32 v22, v10, v9
v_add_u32 v23, v10, v11
s_mul_i32 s78, s52, 288
s_add_u32 s78, s78, {HWS}
buffer_load_dwordx4 v[12:15], v20, s[44:47], s78 offen sc1
buffer_load_dwordx4 v[16:19], v21, s[44:47], s78 offen sc1
s_waitcnt vmcnt(0)
ds_write_b128 v22, v[12:15] offset:{HL}
ds_write_b128 v23, v[16:19] offset:{HL}""")
    prefetch()
    e("s_branch L_main")
    e("L_b2:\ns_barrier")
    stamp(3)
    e(f"""L_main:
v_and_b32 v8, 15, v0
v_lshlrev_b32 v8, 4, v8
s_lshl_b32 s78, s56, 8
v_add_u32 v8, s78, v8
ds_read_b128 v[4:7], v8 offset:{QL}""")
    for r in range(8, 16):
        e(f"v_mov_b32 v{r}, 0")
    e(f"""v_mov_b32 v16, 0xff7fffff
v_mov_b32 v17, 0
s_mov_b32 s84, {SCALE}
s_mov_b32 s85, {LOG2E}
s_mov_b32 s86, 0xffff0000
s_waitcnt lgkmcnt(0)""")
    stamp(4)

    def tile(buf, n):
        k = KB + buf * 32
        v = k + 16
        e(f"s_waitcnt vmcnt({8*NB-4})")
        for j in range(4):
            e(f"v_dot2_f32_bf16 v{18+j}, v{k+4*j}, v4, 0")
        for i in range(1, 4):
            for j in range(4):
                e(f"v_dot2c_f32_bf16 v{18+j}, v{k+4*j+i}, v{4+i}")
        issue_k(buf, n + NB)
        e(f"""v_add_f32_dpp v22, v18, v18 row_ror:8 row_mask:0xf bank_mask:0x3
v_add_f32_dpp v23, v20, v20 row_ror:8 row_mask:0xf bank_mask:0x3
v_add_f32_dpp v22, v19, v19 row_ror:8 row_mask:0xf bank_mask:0xc
v_add_f32_dpp v23, v21, v21 row_ror:8 row_mask:0xf bank_mask:0xc
s_nop 0
v_add_f32_dpp v24, v22, v22 row_half_mirror row_mask:0xf bank_mask:0x5
v_add_f32_dpp v24, v23, v23 row_half_mirror row_mask:0xf bank_mask:0xa
s_nop 1
v_add_f32_dpp v24, v24, v24 quad_perm:[1,0,3,2] {DP}
s_nop 1
v_add_f32_dpp v24, v24, v24 quad_perm:[2,3,0,1] {DP}
v_cvt_pk_bf16_f32 v24, v24, v24
v_and_b32 v24, s86, v24
v_mul_f32 v24, s84, v24
v_cvt_pk_bf16_f32 v24, v24, v24
v_and_b32 v24, s86, v24
s_nop 1
v_max_f32_dpp v25, v24, v24 row_ror:8 {DP}
s_nop 1
v_max_f32_dpp v25, v25, v25 row_ror:4 {DP}
v_max_f32 v25, v16, v25
v_sub_f32 v24, v24, v25
v_sub_f32 v26, v16, v25
v_mul_f32 v24, s85, v24
v_mul_f32 v26, s85, v26
v_exp_f32 v24, v24
v_exp_f32 v26, v26
v_mov_b32 v16, v25
v_cvt_pk_bf16_f32 v27, v24, 0
v_fma_f32 v17, v17, v26, v24
v_lshlrev_b32 v28, 16, v27""")
        for r in range(8, 16):
            e(f"v_mul_f32 v{r}, v26, v{r}")
        e(f"s_waitcnt vmcnt({8*NB-4})")
        for j in range(4):
            ln = (0, 8, 4, 12)[j]
            for i in range(4):
                e(f"v_dot2c_f32_bf16_dpp v{8+2*i}, v27, v{v+4*j+i} row_newbcast:{ln} {DP}")
                e(f"v_dot2c_f32_bf16_dpp v{9+2*i}, v28, v{v+4*j+i} row_newbcast:{ln} {DP}")
        issue_v(buf, n + NB)
    U = NB if (NB % len(steps) == 0) else NB * len(steps)
    full = 32 // U
    rem = 32 % U
    e(f"s_mov_b32 s87, {full}\nL_loop:")
    for u in range(U):
        tile(u % NB, u)
    e("s_sub_u32 s87, s87, 1\ns_cmp_lg_u32 s87, 0\ns_cbranch_scc1 L_loop")
    for u in range(rem):
        tile(u % NB, u)
    stamp(5)

    e(f"""v_mov_b32 v18, v16
v_mov_b32 v19, v16
s_nop 1
v_permlane16_swap_b32 v18, v19
s_nop 0
v_max_f32 v18, v18, v19
v_mov_b32 v19, v18
s_nop 1
v_permlane32_swap_b32 v18, v19
s_nop 0
v_max_f32 v18, v18, v19
v_sub_f32 v20, v16, v18
v_mul_f32 v20, s85, v20
v_exp_f32 v20, v20
s_nop 0
v_mul_f32 v17, v17, v20""")
    for r in range(8, 16):
        e(f"v_mul_f32 v{r}, v20, v{r}")
    e(f"""v_add_f32_dpp v17, v17, v17 row_ror:8 {DP}
s_nop 0
v_permlane32_swap_b32 v8, v12
v_permlane32_swap_b32 v9, v13
v_add_f32_dpp v17, v17, v17 row_ror:4 {DP}
v_permlane32_swap_b32 v10, v14
v_permlane32_swap_b32 v11, v15
v_mov_b32 v19, v17
v_add_f32 v8, v8, v12
v_add_f32 v9, v9, v13
v_add_f32 v10, v10, v14
v_add_f32 v11, v11, v15
v_permlane16_swap_b32 v17, v19
s_nop 0
v_permlane16_swap_b32 v8, v10
v_permlane16_swap_b32 v9, v11
v_add_f32 v17, v17, v19
v_add_f32 v8, v8, v10
v_mov_b32 v19, v17
v_add_f32 v9, v9, v11
v_and_b32 v21, 15, v0
v_permlane32_swap_b32 v17, v19
v_lshlrev_b32 v21, 5, v21
v_lshrrev_b32 v22, 4, v0
v_lshl_add_u32 v21, v22, 3, v21
v_add_f32 v19, v17, v19
s_lshl_b32 s78, s57, 2
s_add_u32 s78, s78, s56
s_lshl_b32 s79, s78, 9
v_add_u32 v21, s79, v21
s_lshl_b32 s79, s78, 3
v_mov_b32 v22, s79
ds_write_b64 v21, v[8:9] offset:{WP}
ds_write_b64 v22, v[18:19] offset:{WM}
s_waitcnt vmcnt(0) lgkmcnt(0)
s_barrier""")
    e(f"""s_cmp_ge_u32 s3, 4
s_cbranch_scc1 L_nopub
v_lshlrev_b32 v21, 3, v0
s_lshl_b32 s79, s3, 9
v_add_u32 v22, s79, v21
s_lshl_b32 s79, s3, 3
v_mov_b32 v23, s79
ds_read_b64 v[12:13], v23 offset:{WM}
ds_read_b64 v[14:15], v23 offset:{WM+32}
ds_read_b64 v[8:9], v22 offset:{WP}
ds_read_b64 v[10:11], v22 offset:{WP+2048}
s_lshl_b32 s78, s50, 3
s_add_u32 s78, s78, s51
s_lshl_b32 s79, s78, 11
s_add_u32 s79, s79, {PO}
s_lshl_b32 s78, s78, 5
s_add_u32 s78, s78, {PM}
s_waitcnt lgkmcnt(2)
v_max_f32 v18, v12, v14
v_sub_f32 v12, v12, v18
v_sub_f32 v14, v14, v18
v_mul_f32 v12, s85, v12
v_mul_f32 v14, s85, v14
v_exp_f32 v12, v12
v_exp_f32 v14, v14
s_waitcnt lgkmcnt(0)
v_mul_f32 v8, v8, v12
v_mul_f32 v9, v9, v12
v_mul_f32 v19, v13, v12
v_fmac_f32 v8, v10, v14
v_fmac_f32 v9, v11, v14
v_fmac_f32 v19, v15, v14
v_min_u32 v8, -2, v8
v_min_u32 v9, -2, v9
v_min_u32 v18, -2, v18
v_min_u32 v19, -2, v19
buffer_store_dwordx2 v[8:9], v22, s[44:47], s79 offen sc1
s_mov_b64 exec, 1
buffer_store_dwordx2 v[18:19], v23, s[44:47], s78 offen sc1
s_mov_b64 exec, -1
L_nopub:""")
    e(f"""s_cmp_ge_u32 s3, 5
s_cbranch_scc1 L_nodown
v_lshrrev_b32 v8, 4, v0
v_bfe_u32 v10, v0, 2, 2
v_lshl_add_u32 v11, v8, 2, v10
v_lshl_add_u32 v10, v8, 3, v10
v_mul_u32_u24 v10, 144, v10
v_mul_u32_u24 v11, 144, v11
v_and_b32 v12, 3, v0
v_lshlrev_b32 v13, 3, v12
s_lshl_b32 s78, s3, 5
v_add3_u32 v10, v10, v13, s78
v_add3_u32 v11, v11, v13, s78
v_add_u32 v14, {WDT}, v10
v_add_u32 v11, {WDT+128*144}, v11
v_add_u32 v10, {WOT}, v10
v_mul_u32_u24 v13, 288, v12
v_lshl_add_u32 v15, v8, 3, v13
v_lshl_add_u32 v13, v8, 4, v13
v_lshlrev_b32 v12, 8, v12
v_lshl_add_u32 v30, v8, 4, v12""")
    for s in range(4):
        e(f"ds_read_b64_tr_b16 v[{32+4*s}:{33+4*s}], v14 offset:{32*144*s}")
        e(f"ds_read_b64_tr_b16 v[{34+4*s}:{35+4*s}], v14 offset:{32*144*s+4*144}")
        e(f"ds_read_b128 v[{48+4*s}:{51+4*s}], v13 offset:{HL+64*s}")
    e(f"ds_read_b64_tr_b16 v[64:65], v11\nds_read_b64 v[66:67], v15 offset:{HL+256}")
    for r in range(4):
        e(f"v_mov_b32 v{24+r}, 0")
    e("s_waitcnt lgkmcnt(0)")
    for s in range(4):
        e(f"v_mfma_f32_16x16x32_bf16 v[24:27], v[{32+4*s}:{35+4*s}], v[{48+4*s}:{51+4*s}], v[24:27]")
    e("s_nop 7\nv_mfma_f32_16x16x16_bf16 v[24:27], v[64:65], v[66:67], v[24:27]")
    for s in range(4):
        e(f"ds_read_b64_tr_b16 v[{68+4*s}:{69+4*s}], v10 offset:{32*144*s}")
        e(f"ds_read_b64_tr_b16 v[{70+4*s}:{71+4*s}], v10 offset:{32*144*s+4*144}")
    e("L_nodown:")
    e(f"""s_and_b32 s78, s3, 3
s_lshl_b32 s79, s78, 9
s_lshr_b32 s80, s3, 2
s_lshl_b32 s81, s80, 8
s_add_u32 s79, s79, s81
v_lshl_add_u32 v8, v0, 2, s79
v_and_b32 v9, 7, v0
v_lshlrev_b32 v9, 5, v9
s_lshl_b32 s79, s78, 3
v_add_u32 v9, s79, v9
s_lshl_b32 s88, s52, 14
s_add_u32 s88, s88, {PO}
s_add_u32 s89, s88, 4096
s_add_u32 s90, s88, 8192
s_add_u32 s91, s88, 12288
s_lshl_b32 s92, s52, 8
s_add_u32 s92, s92, {PM}
s_lshl_b32 s79, s78, 8
s_lshl_b32 s81, s80, 7
s_add_u32 s79, s79, s81
v_lshl_add_u32 v29, v0, 1, s79
s_mov_b32 s83, {spin}
L_h1:
buffer_load_dwordx2 v[18:19], v9, s[44:47], s92 offen sc1""")
    for s in range(8):
        e(f"buffer_load_dword v{10+s}, v8, s[44:47], s{88+s//2} offen offset:{2048*(s&1)} sc1")
    e(f"""s_sub_u32 s83, s83, 1
s_cbranch_scc1 L_h1_done
s_waitcnt vmcnt(0)
v_max3_u32 v20, v10, v11, v12
v_max3_u32 v21, v13, v14, v15
v_max3_u32 v20, v20, v16, v17
v_max3_u32 v21, v21, v18, v19
v_max_u32 v20, v20, v21
v_cmp_eq_u32 vcc, -1, v20
s_cbranch_vccnz L_h1
L_h1_done:
s_waitcnt vmcnt(0)""")
    stamp(6)
    e(f"""v_max_f32_dpp v20, v18, v18 quad_perm:[1,0,3,2] {DP}
s_nop 1
v_max_f32_dpp v20, v20, v20 quad_perm:[2,3,0,1] {DP}
s_nop 1
v_max_f32_dpp v20, v20, v20 row_half_mirror {DP}
v_sub_f32 v18, v18, v20
v_mul_f32 v18, s85, v18
v_exp_f32 v18, v18
s_nop 0
v_mul_f32 v19, v19, v18
s_nop 0
v_mul_f32_dpp v21, v18, v10 row_newbcast:0 {DP}
v_add_f32_dpp v19, v19, v19 quad_perm:[1,0,3,2] {DP}
v_fmac_f32_dpp v21, v18, v11 row_newbcast:1 {DP}
v_fmac_f32_dpp v21, v18, v12 row_newbcast:2 {DP}
v_add_f32_dpp v19, v19, v19 quad_perm:[2,3,0,1] {DP}
v_fmac_f32_dpp v21, v18, v13 row_newbcast:3 {DP}
v_fmac_f32_dpp v21, v18, v14 row_newbcast:4 {DP}
v_add_f32_dpp v19, v19, v19 row_half_mirror {DP}
v_fmac_f32_dpp v21, v18, v15 row_newbcast:5 {DP}
v_rcp_f32 v19, v19
v_fmac_f32_dpp v21, v18, v16 row_newbcast:6 {DP}
v_fmac_f32_dpp v21, v18, v17 row_newbcast:7 {DP}
v_mul_f32 v21, v21, v19
v_cvt_pk_bf16_f32 v21, v21, v21
ds_write_b16 v29, v21 offset:{OL}
s_cmp_ge_u32 s3, 5
s_cbranch_scc1 L_fin
s_waitcnt lgkmcnt(0)
s_barrier""")
    for s in range(4):
        e(f"ds_read_b128 v[{48+4*s}:{51+4*s}], v30 offset:{OL+64*s}")
    e(f"""v_and_b32 v8, 15, v0
v_lshrrev_b32 v9, 4, v0
v_cmp_gt_u32 vcc, 4, v8
v_mul_u32_u24 v8, 288, v8
v_lshl_add_u32 v8, v9, 4, v8
s_lshl_b32 s78, s53, 5
s_add_u32 s78, s78, s52
s_mul_i32 s78, s78, 1152
s_lshl_b32 s79, s3, 6
s_add_u32 s78, s78, s79
s_add_u32 s78, s78, {YW}
s_cmp_eq_u32 s3, 4
s_cselect_b32 vcc_hi, 0, vcc_hi""")
    for s in range(4):
        e(f"s_waitcnt lgkmcnt({3-s})")
        e(f"v_mfma_f32_16x16x32_bf16 v[24:27], v[{68+4*s}:{71+4*s}], v[{48+4*s}:{51+4*s}], v[24:27]")
    e("s_nop 7")
    for r in range(4):
        e(f"v_min_u32 v{24+r}, -2, v{24+r}")
    e("""s_mov_b64 exec, vcc
buffer_store_dwordx4 v[24:27], v8, s[44:47], s78 offen sc1
s_mov_b64 exec, -1
s_branch L_done""")
    e(f"""L_fin:
s_waitcnt lgkmcnt(0)
s_barrier
s_cmp_eq_u32 s3, 7
s_cbranch_scc1 L_done
s_cmp_eq_u32 s3, 5
s_cbranch_scc1 L_fin5
s_cmp_ge_u32 s52, 4
s_cbranch_scc1 L_done
s_add_u32 s52, s52, 32
L_fin5:
s_mul_i32 s78, s52, 57
s_lshr_b32 s78, s78, 9
s_mul_i32 s79, s78, 9
s_sub_u32 s79, s52, s79
s_mul_i32 s78, s78, 1152
s_lshl_b32 s79, s79, 4
s_add_u32 s78, s78, s79
s_mul_i32 s79, s53, 144
s_add_u32 s78, s78, s79
v_and_b32 v9, 1, v0
v_lshlrev_b32 v10, 3, v9
s_mov_b32 s36, s4
s_mov_b32 s37, s5
s_mov_b32 s38, 4608
s_mov_b32 s39, 0x20000
buffer_load_dwordx2 v[16:17], v10, s[36:39], s78 offen
s_mov_b32 s40, s22
s_mov_b32 s41, s23
s_mov_b32 s42, 4608
s_mov_b32 s43, 0x20000
v_lshrrev_b32 v8, 1, v0
v_mul_u32_u24 v8, 1152, v8
v_lshl_add_u32 v8, v9, 4, v8
s_mul_i32 s79, s53, {32*1152}
s_lshl_b32 s80, s52, 5
s_add_u32 s79, s79, s80
s_add_u32 s79, s79, {YW}
s_mov_b32 s83, {spin}
L_h2:
buffer_load_dwordx4 v[12:15], v8, s[44:47], s79 offen sc1
s_sub_u32 s83, s83, 1
s_cbranch_scc1 L_h2_done
s_waitcnt vmcnt(0)
v_max3_u32 v20, v12, v13, v14
v_max_u32 v20, v20, v15
v_cmp_eq_u32 vcc, -1, v20
s_cbranch_vccnz L_h2
L_h2_done:
s_waitcnt vmcnt(0)""")
    for dpp in ("quad_perm:[2,3,0,1]", "row_ror:4", "row_ror:8"):
        for r in range(12, 16):
            e(f"v_add_f32_dpp v{r}, v{r}, v{r} {dpp} {DP}")
    for sw in (16, 32):
        for r in range(4):
            e(f"v_mov_b32 v{20+r}, v{12+r}")
        for r in range(4):
            e(f"v_permlane{sw}_swap_b32 v{12+r}, v{20+r}")
        for r in range(4):
            e(f"v_add_f32 v{12+r}, v{12+r}, v{20+r}")
    e("""v_lshlrev_b32 v20, 16, v16
v_and_b32 v21, 0xffff0000, v16
v_lshlrev_b32 v22, 16, v17
v_and_b32 v23, 0xffff0000, v17
v_add_f32 v12, v12, v20
v_add_f32 v13, v13, v21
v_add_f32 v14, v14, v22
v_add_f32 v15, v15, v23
v_cvt_pk_bf16_f32 v12, v12, v13
v_cvt_pk_bf16_f32 v13, v14, v15
s_mov_b64 exec, 3
buffer_store_dwordx2 v[12:13], v10, s[40:43], s78 offen
s_mov_b64 exec, -1
L_done:""")
    if stamps:
        e("s_waitcnt vmcnt(0)")
        stamp(7)
        e(f"""s_lshl_b32 s78, s2, 3
s_add_u32 s78, s78, s3
s_lshl_b32 s78, s78, 5
s_add_u32 s78, s78, {STAMP}
s_getreg_b32 s79, hwreg(HW_REG_XCC_ID, 0, 4)
v_mov_b32 v1, s78""")
        for k in range(8):
            e(f"v_mov_b32 v{4+k}, s{60+2*k}")
        e("""global_store_dwordx4 v1, v[4:7], s[26:27]
global_store_dwordx4 v1, v[8:11], s[26:27] offset:16""")
    e(f"""L_end:
s_endpgm
.section .rodata,"a"
.p2align 6
.amdhsa_kernel {KN}
  .amdhsa_next_free_vgpr {NV}
  .amdhsa_next_free_sgpr 96
  .amdhsa_accum_offset {(NV+3)//4*4}
  .amdhsa_group_segment_fixed_size 0
  .amdhsa_kernarg_size 96
  .amdhsa_user_sgpr_count 2
  .amdhsa_user_sgpr_kernarg_segment_ptr 1
  .amdhsa_system_sgpr_workgroup_id_x 1
  .amdhsa_float_denorm_mode_32 3
.end_amdhsa_kernel""")
    return HEADER + e.text()

if __name__ == "__main__":
    kw = eval("dict(%s)" % (sys.argv[1] if len(sys.argv) > 1 else ""))
    sys.stdout.write(gen(**kw))
```

```python
import sys
KN = "parallel_sum__mha_block_cached__geglu_ffn__decode_kernel"

QWS = 0
HWS = 0x8000
PO = 0x20000
PM = 0xA0000
YW = 0xB0000
WS_SIZE = 0x100000
STAMP = 0x100000
XN = 0; QL = 4608; HL = 5632; OL = 6912; WP = 7936; WM = 12032
WQT = 12288; G1 = 30720; U1 = 49152; G2 = 67584; U2 = 86016; WOT = 104448; WDT = 123648
LDS_SIZE = 159744
WQS = 12288

LOG2E = 0x3fb8aa3b
SCALE = 0x3db504f3
DP = "row_mask:0xf bank_mask:0xf"

HEADER = """; Kernarg layout for this problem (96 bytes, ptrs only, base s[0:1]):
"""

class A:
    def __init__(self):
        self.o = []
    def __call__(self, s):
        for ln in s.strip("\n").split("\n"):
            ln = ln.strip()
            if ln:
                self.o.append(ln if ln.endswith(":") or ln.startswith((".", ";")) else "    " + ln)
    def text(self):
        return "\n".join(self.o) + "\n"

def gen(NB=3, amap=1, tmap=0, wflag="nt", kvflag="nt", qflag="nt", stamps=0, spin=1 << 20, pre=1, pre2=1, fair=0):
    e = A()
    nst = [0]
    def stamp(k):
        if stamps:
            e(f"s_memrealtime s[{60+2*k}:{61+2*k}]\ns_waitcnt lgkmcnt(0)")
    KB = 32
    NV = KB + NB * 32
    NV = max(NV, 128) + 24
    QB = NV - 24
    e(f"; @launch grid=(256,1,1) block=(576,1,1) lds={LDS_SIZE}")
    e(f""".amdgcn_target "amdgcn-amd-amdhsa--gfx950"
.text
.globl {KN}
.p2align 8
.type {KN},@function
{KN}:
s_cmp_ge_u32 s2, 256
s_cbranch_scc1 L_end
s_load_dwordx16 s[4:19], s[0:1], 0
s_load_dwordx8 s[20:27], s[0:1], 64""")
    if stamps:
        for k in range(8):
            e(f"s_mov_b32 s{60+2*k}, 0")
    stamp(0)
    e("""v_lshrrev_b32 v1, 6, v0
v_and_b32 v0, 63, v0
v_readfirstlane_b32 s3, v1
s_and_b32 s48, s2, 7
s_lshr_b32 s49, s2, 3""")
    if amap == 0:
        e("s_mov_b32 s50, s49\ns_mov_b32 s51, s48")
    elif amap == 1:
        e("s_and_b32 s50, s2, 31\ns_lshr_b32 s51, s2, 5")
    else:
        e("""s_and_b32 s50, s2, 3
s_lshl_b32 s50, s50, 3
s_and_b32 s51, s49, 7
s_add_u32 s50, s50, s51
s_lshr_b32 s51, s2, 6
s_lshl_b32 s51, s51, 1
s_bfe_u32 s52, s2, 0x10002
s_add_u32 s51, s51, s52""")
    e("""s_and_b32 s52, s49, 3
s_lshl_b32 s53, s48, 2
s_add_u32 s52, s52, s53
s_lshr_b32 s53, s2, 5
s_lshl_b32 s54, s48, 5
s_add_u32 s54, s54, s49
s_mul_i32 s55, s48, 36
s_add_u32 s55, s55, s49
s_and_b32 s56, s3, 3
s_lshr_b32 s57, s3, 2
s_lshl_b32 s58, s56, 5
s_add_u32 s58, s58, s50
s_lshl_b32 s59, s58, 21""")
    if tmap == 0:
        e("""s_and_b32 s76, s51, 1
s_lshl_b32 s77, s57, 1
s_add_u32 s76, s76, s77
s_lshr_b32 s77, s51, 1
s_lshl_b32 s77, s77, 2
s_add_u32 s76, s76, s77
s_lshl_b32 s76, s76, 12""")
        steps = [65536]
        rng = 2 << 20
    else:
        e("""s_lshl_b32 s76, s51, 18
s_add_u32 s59, s59, s76
s_lshl_b32 s76, s57, 13""")
        steps = [4096, 12288]
        rng = 256 << 10
    e(f"""v_lshlrev_b32 v1, 4, v0
s_mov_b32 s77, s76
s_waitcnt lgkmcnt(0)
s_add_u32 s28, s6, s59
s_addc_u32 s29, s7, 0
s_mov_b32 s30, {rng}
s_mov_b32 s31, 0x20000
s_add_u32 s32, s8, s59
s_addc_u32 s33, s9, 0
s_mov_b32 s34, {rng}
s_mov_b32 s35, 0x20000
s_mov_b32 s44, s26
s_mov_b32 s45, s27
s_mov_b32 s46, {WS_SIZE}
s_mov_b32 s47, 0x20000""")

    tcount = [0, 0]
    def issue_k(buf, n):
        for j in range(4):
            r = KB + buf * 32 + j * 4
            e(f"buffer_load_dwordx4 v[{r}:{r+3}], v1, s[28:31], s76 offen offset:{j*1024} {kvflag}")
        e(f"s_add_u32 s76, s76, {steps[n % len(steps)]}")
    def issue_v(buf, n):
        for j in range(4):
            r = KB + buf * 32 + 16 + j * 4
            e(f"buffer_load_dwordx4 v[{r}:{r+3}], v1, s[32:35], s77 offen offset:{j*1024} {kvflag}")
        e(f"s_add_u32 s77, s77, {steps[n % len(steps)]}")
    def prefetch():
        for b in range(NB):
            issue_k(b, b); issue_v(b, b)
    def xloads():
        e("""s_mul_i32 s36, s56, 1152
s_add_u32 s36, s4, s36
s_addc_u32 s37, s5, 0
s_mov_b32 s38, 1152
s_mov_b32 s39, 0x20000
v_lshlrev_b32 v7, 2, v0""")
        for j in range(5):
            e(f"buffer_load_dword v{2+j}, v7, s[36:39], 0 offen offset:{256*j}")
    def dma_cols(ptr, rowstride, blk_sreg, ldsbase):
        e(f"""s_mov_b32 s40, s{ptr}
s_mov_b32 s41, s{ptr+1}
s_mov_b32 s42, {576*rowstride}
s_mov_b32 s43, 0x20000
v_lshrrev_b32 v8, 1, v0
v_mul_u32_u24 v8, {rowstride}, v8
v_and_b32 v9, 1, v0
v_lshlrev_b32 v9, 4, v9
v_add_u32 v8, v8, v9
s_lshl_b32 s78, s{blk_sreg}, 5""")
        for n in range(18):
            e(f"s_mov_b32 m0, {ldsbase + 1024*n}")
            if n:
                e(f"s_add_u32 s78, s78, {32*rowstride}")
            else:
                e("s_nop 0")
            e(f"buffer_load_dwordx4 v8, s[40:43], s78 offen {wflag} lds")
    def dma_rows(ptr, nrows_total, row0_mul, ninstr, ldsbase):
        e(f"""s_mov_b32 s40, s{ptr}
s_mov_b32 s41, s{ptr+1}
s_mov_b32 s42, {nrows_total*1152}
s_mov_b32 s43, 0x20000
v_mul_u32_u24 v8, 57, v0
v_lshrrev_b32 v8, 9, v8
v_mul_u32_u24 v9, 9, v8
v_sub_u32 v9, v0, v9
v_lshlrev_b32 v9, 4, v9
v_mul_u32_u24 v8, 1152, v8
v_add_u32 v8, v8, v9
s_mul_i32 s78, s52, {row0_mul*1152}
s_mul_i32 s79, s53, 144
s_add_u32 s78, s78, s79""")
        for n in range(ninstr):
            e(f"s_mov_b32 m0, {ldsbase + 1008*n}")
            if n:
                e(f"s_add_u32 s78, s78, {7*1152}")
            else:
                e("s_nop 0")
            e(f"buffer_load_dwordx4 v8, s[40:43], s78 offen {wflag} lds")

    def dma_wq():
        e(f"""s_mov_b32 s40, s10
s_mov_b32 s41, s11
s_mov_b32 s42, {576*8192}
s_mov_b32 s43, 0x20000
v_lshrrev_b32 v8, 4, v0
v_and_b32 v9, 15, v0
s_and_b32 s78, s3, 1
s_lshl_b32 s78, s78, 3
v_lshl_add_u32 v10, v8, 1, s78
v_xor_b32 v9, v9, v10
v_lshlrev_b32 v9, 4, v9
v_lshl_add_u32 v8, v8, 13, v9
v_xor_b32 v9, 128, v8
s_mul_i32 s78, s3, {72*8192}
s_lshl_b32 s79, s50, 8
s_add_u32 s78, s78, s79
s_mul_i32 s79, s3, {72*256}
s_add_u32 s79, s79, {WQS}""")
        for n in range(18):
            e(f"s_add_u32 m0, s79, {1024*n}")
            if n:
                e(f"s_add_u32 s78, s78, {4*8192}")
            else:
                e("s_nop 0")
            e(f"buffer_load_dwordx4 v{8+((n>>1)&1)}, s[40:43], s78 offen {qflag} lds")
    e("s_setprio 3")
    e("s_cmp_eq_u32 s3, 8\ns_cbranch_scc1 L_svc")
    e("s_cmp_ge_u32 s3, 4\ns_cbranch_scc1 L_a4")
    xloads()
    e("L_a4:")
    for b in range(pre):
        issue_k(b, b); issue_v(b, b)
    e("s_setprio 2")
    dma_wq()
    e("s_setprio 1")
    e(f"s_cmp_ge_u32 s3, 4\ns_cbranch_scc1 L_b1\ns_waitcnt vmcnt({min(63, 8*pre+18)})")

    def wave_sum(r, t):
        for k in (8, 4, 2, 1):
            e(f"s_nop 1\nv_add_f32_dpp v{r}, v{r}, v{r} row_ror:{k} {DP}")
        for sw in (16, 32):
            e(f"v_mov_b32 v{t}, v{r}\ns_nop 1\nv_permlane{sw}_swap_b32 v{r}, v{t}\ns_nop 0\nv_add_f32 v{r}, v{r}, v{t}")
    def rbf(d, s):
        e(f"v_cvt_pk_bf16_f32 v{d}, v{s}, v{s}\nv_and_b32 v{d}, 0xffff0000, v{d}")
    e("L_ln:")
    for j in range(5):
        e(f"v_lshlrev_b32 v{10+2*j}, 16, v{2+j}\nv_and_b32 v{11+2*j}, 0xffff0000, v{2+j}")
    e("v_add_f32 v20, v10, v11")
    for j in range(12, 20):
        e(f"v_add_f32 v20, v20, v{j}")
    wave_sum(20, 21)
    e("v_mul_f32 v20, 0x3ae38e39, v20")
    e("v_cmp_gt_u32 vcc, 32, v0")
    for j in range(10):
        e(f"v_sub_f32 v{22+j if j < 8 else 2+j-8}, v{10+j}, v20")
    e("v_cndmask_b32 v2, 0, v2, vcc\nv_cndmask_b32 v3, 0, v3, vcc")
    e("v_mul_f32 v21, v2, v2\nv_fmac_f32 v21, v3, v3")
    for j in range(8):
        e(f"v_fmac_f32 v21, v{22+j}, v{22+j}")
    wave_sum(21, 22)
    e("v_mul_f32 v21, 0x3ae38e39, v21")
    rbf(21, 21)
    e("v_add_f32 v21, 0x3727c5ac, v21")
    rbf(21, 21)
    e("v_sqrt_f32 v21, v21\ns_nop 0")
    rbf(21, 21)
    e("v_rcp_f32 v21, v21")
    rbf(20, 20)
    for j in range(10):
        e(f"v_sub_f32 v{10+j}, v{10+j}, v20")
    for j in range(5):
        e(f"v_cvt_pk_bf16_f32 v{2+j}, v{10+2*j}, v{11+2*j}")
    for j in range(5):
        e(f"v_lshlrev_b32 v{10+2*j}, 16, v{2+j}\nv_and_b32 v{11+2*j}, 0xffff0000, v{2+j}")
    for j in range(10):
        e(f"v_mul_f32 v{10+j}, v{10+j}, v21")
    for j in range(5):
        e(f"v_cvt_pk_bf16_f32 v{2+j}, v{10+2*j}, v{11+2*j}")
    e("s_mul_i32 s78, s56, 1152\nv_add_u32 v7, s78, v7")
    for j in range(4):
        e(f"ds_write_b32 v7, v{2+j} offset:{XN+256*j}")
    e(f"s_mov_b64 exec, 0xffffffff\nds_write_b32 v7, v6 offset:{XN+1024}\ns_mov_b64 exec, -1")
    e("s_waitcnt lgkmcnt(0)")
    e("L_b1:")
    for b in range(pre, pre + pre2):
        issue_k(b, b); issue_v(b, b)
    e(f"s_waitcnt vmcnt({8*pre2})\ns_barrier")
    stamp(1)

    def gemv16(tiles, accs, rs=32, sb=32, ring=4, col_sreg=None):
        nm = len(tiles)
        per = 2 * nm + 1
        rb = 4 * nm + 4
        e(f"""v_lshrrev_b32 v8, 4, v0
v_lshlrev_b32 v9, 4, v8
v_lshlrev_b32 v8, 3, v8
v_bfe_u32 v10, v0, 2, 2
v_add_u32 v8, v8, v10
v_mul_u32_u24 v8, {rs}, v8
v_and_b32 v10, 3, v0
v_lshl_add_u32 v8, v10, 3, v8
v_mul_u32_u24 v10, 1152, v10
v_add_u32 v9, v9, v10""")
        if col_sreg is not None:
            e(f"""v_bfe_u32 v10, v0, 2, 3
v_lshlrev_b32 v10, 5, v10
v_xor_b32 v10, s{col_sreg}, v10
v_add_u32 v8, v10, v8""")
        nseg = (18 * 32 * rs + 65535) // 65536 if nm == 1 else 1
        spseg = 18 // nseg
        for m, t in enumerate(tiles):
            for sg in range(nseg):
                e(f"v_add_u32 v{11+m+sg}, {t + sg*spseg*32*rs}, v8")
        for a in accs:
            for r in range(4):
                e(f"v_mov_b32 v{a+r}, 0")
        def rd(s):
            base = sb + (s % ring) * rb
            e(f"ds_read_b128 v[{base}:{base+3}], v9 offset:{XN+64*s}")
            for m in range(nm):
                r = base + 4 + 4 * m
                sg, so = divmod(s, spseg)
                e(f"ds_read_b64_tr_b16 v[{r}:{r+1}], v{11+m+sg} offset:{32*rs*so}")
                e(f"ds_read_b64_tr_b16 v[{r+2}:{r+3}], v{11+m+sg} offset:{32*rs*so+4*rs}")
        depth = min(ring, 3 if per * 3 <= 15 else 2)
        for s in range(depth):
            rd(s)
        for s in range(18):
            left = min(depth - 1, 17 - s)
            e(f"s_waitcnt lgkmcnt({left*per})")
            base = sb + (s % ring) * rb
            for m in range(nm):
                r = base + 4 + 4 * m
                e(f"v_mfma_f32_16x16x32_bf16 v[{accs[m]}:{accs[m]+3}], v[{r}:{r+3}], v[{base}:{base+3}], v[{accs[m]}:{accs[m]+3}]")
            if s + depth < 18:
                rd(s + depth)
        e("s_nop 7\ns_nop 1")
    def store_vec(r, rowbytes, wsoff, blk_sreg):
        e(f"""v_and_b32 v8, 15, v0
v_cmp_gt_u32 vcc, 4, v8
v_mul_u32_u24 v8, {rowbytes}, v8
v_lshrrev_b32 v9, 4, v0
v_lshl_add_u32 v8, v9, 3, v8
s_lshl_b32 s78, s{blk_sreg}, 5
s_add_u32 s78, s78, {wsoff}
s_and_saveexec_b64 s[80:81], vcc
buffer_store_dwordx2 v[{r}:{r+1}], v8, s[44:47], s78 offen sc1
s_mov_b64 exec, -1
s_waitcnt vmcnt(0)""")
    def flag_add(idx_sreg, val):
        e(f"""s_lshl_b32 s78, s{idx_sreg}, 2
v_mov_b32 v8, s78
v_mov_b32 v9, {val}
s_mov_b64 exec, 1
global_atomic_add v8, v9, s[24:25] sc1
s_mov_b64 exec, -1""")

    e("s_lshl_b32 s78, s3, 5")
    gemv16([WQS], [16], rs=256, sb=QB, ring=3, col_sreg=78)
    e(f"""v_cvt_pk_bf16_f32 v16, v16, v17
v_cvt_pk_bf16_f32 v17, v18, v19
v_and_b32 v8, 3, v0
v_lshlrev_b32 v8, 8, v8
v_lshrrev_b32 v9, 4, v0
v_lshl_add_u32 v8, v9, 3, v8
v_add_u32 v8, s78, v8
ds_write_b64 v8, v[16:17] offset:{QL}
s_waitcnt lgkmcnt(0)
s_barrier""")
    stamp(3)
    e("s_setprio 0")
    for b in range(pre + pre2, NB):
        issue_k(b, b); issue_v(b, b)
    e("s_branch L_main")

    e("L_svc:")
    e(f"""v_mov_b32 v4, -1
v_mov_b32 v5, -1
v_mov_b32 v6, -1
v_mov_b32 v7, -1
s_lshl_b32 s78, s50, 3
s_add_u32 s78, s78, s51
s_lshl_b32 s79, s78, 11
s_add_u32 s79, s79, {PO}
buffer_store_dwordx4 v[4:7], v1, s[44:47], s79 offen sc1
buffer_store_dwordx4 v[4:7], v1, s[44:47], s79 offen offset:1024 sc1
s_lshl_b32 s79, s78, 5
s_add_u32 s79, s79, {PM}
s_mov_b64 exec, 3
buffer_store_dwordx4 v[4:7], v1, s[44:47], s79 offen sc1
s_mov_b64 exec, -1
s_lshl_b32 s78, s53, 5
s_add_u32 s78, s78, s52
s_mul_i32 s79, s78, 1152
s_add_u32 s79, s79, {YW}
buffer_store_dwordx4 v[4:7], v1, s[44:47], s79 offen sc1
buffer_store_dwordx4 v[4:7], v1, s[44:47], s79 offen offset:128 sc1
s_barrier
s_barrier""")
    stamp(1)
    dma_cols(16, 9216, 55, G1); dma_cols(18, 9216, 55, U1)
    e("s_waitcnt vmcnt(36)\ns_lshr_b32 s82, s54, 3")
    flag_add(82, 1)
    e("s_mov_b32 s93, 0")
    e("L_ffn:\ns_waitcnt vmcnt(0)")
    gemv16([G1, U1], [16, 20])
    for r in range(4):
        rbf(16 + r, 16 + r); rbf(20 + r, 20 + r)
    e("s_mov_b32 s78, 0x3d372713\ns_mov_b32 s79, 0xc0135761")
    for r in range(4):
        g = 16 + r; t = 24 + r
        e(f"""v_mul_f32 v{t}, v{g}, v{g}
v_mul_f32 v{t}, v{t}, v{g}
v_fma_f32 v{t}, v{t}, s78, v{g}
v_mul_f32 v{t}, s79, v{t}
v_exp_f32 v{t}, v{t}
s_nop 0
v_add_f32 v{t}, 1.0, v{t}
v_rcp_f32 v{t}, v{t}
s_nop 0
v_mul_f32 v{t}, v{t}, v{g}""")
        rbf(t, t)
        e(f"v_mul_f32 v{t}, v{t}, v{20+r}")
    e("v_cvt_pk_bf16_f32 v16, v24, v25\nv_cvt_pk_bf16_f32 v17, v26, v27")
    store_vec(16, 9216, HWS, 55)
    e("s_mul_i32 s82, s55, 7282\ns_lshr_b32 s82, s82, 16")
    flag_add(82, 0x10000)
    e("""s_cmp_ge_u32 s49, 4
s_cbranch_scc1 L_ffn_done
s_cmp_eq_u32 s93, 1
s_cbranch_scc1 L_ffn_done
s_mov_b32 s93, 1
s_add_u32 s55, s55, 32""")
    dma_cols(16, 9216, 55, G1); dma_cols(18, 9216, 55, U1)
    e("s_branch L_ffn\nL_ffn_done:")
    stamp(2)
    dma_rows(12, 4096, 128, 19, WOT)
    dma_rows(20, 4608, 144, 21, WDT)
    e(f"""v_and_b32 v8, 31, v0
v_lshlrev_b32 v8, 2, v8
s_mov_b32 s83, {spin}
L_ph:
global_load_dword v9, v8, s[24:25] sc1
s_sub_u32 s83, s83, 1
s_cbranch_scc1 L_ph_done
s_waitcnt vmcnt(0)
v_readlane_b32 s78, v9, s52
v_and_b32 v9, 0xffff, v9
v_cmp_gt_u32 vcc, 8, v9
s_lshr_b32 s78, s78, 16
s_cmp_ge_u32 s78, 9
s_cselect_b64 s[80:81], 0, -1
s_or_b64 vcc, vcc, s[80:81]
s_cbranch_vccz L_ph_done
s_sleep 16
s_branch L_ph
L_ph_done:
v_lshrrev_b32 v8, 4, v0
v_mul_u32_u24 v10, 288, v8
v_mul_u32_u24 v8, 9216, v8
v_and_b32 v9, 15, v0
v_lshlrev_b32 v9, 4, v9
v_and_b32 v11, 16, v9
v_add_u32 v11, 256, v11
v_add_u32 v20, v8, v9
v_add_u32 v21, v8, v11
v_add_u32 v22, v10, v9
v_add_u32 v23, v10, v11
s_mul_i32 s78, s52, 288
s_add_u32 s78, s78, {HWS}
buffer_load_dwordx4 v[12:15], v20, s[44:47], s78 offen sc1
buffer_load_dwordx4 v[16:19], v21, s[44:47], s78 offen sc1
s_waitcnt vmcnt(0)
ds_write_b128 v22, v[12:15] offset:{HL}
ds_write_b128 v23, v[16:19] offset:{HL}
s_waitcnt lgkmcnt(0)""")
    stamp(5)
    e("s_barrier\ns_barrier\ns_branch L_done")

    e(f"""L_main:
v_and_b32 v8, 15, v0
v_lshlrev_b32 v8, 4, v8
s_lshl_b32 s78, s56, 8
v_add_u32 v8, s78, v8
ds_read_b128 v[4:7], v8 offset:{QL}""")
    for r in range(8, 16):
        e(f"v_mov_b32 v{r}, 0")
    e(f"""v_mov_b32 v16, 0xff7fffff
v_mov_b32 v17, 0
s_mov_b32 s84, {SCALE}
s_mov_b32 s85, {LOG2E}
s_mov_b32 s86, 0xffff0000
s_waitcnt lgkmcnt(0)""")
    stamp(4)
    if fair == 1:
        e("s_cmp_lt_u32 s3, 4\ns_cbranch_scc1 L_lowp\ns_setprio 1\nL_lowp:")

    def tile(buf, n):
        k = KB + buf * 32
        v = k + 16
        e(f"s_waitcnt vmcnt({8*NB-4})")
        if fair == 2:
            e("s_setprio 0")
        for j in range(4):
            e(f"v_dot2_f32_bf16 v{18+j}, v{k+4*j}, v4, 0")
        for i in range(1, 4):
            for j in range(4):
                e(f"v_dot2c_f32_bf16 v{18+j}, v{k+4*j+i}, v{4+i}")
        issue_k(buf, n + NB)
        e(f"""v_add_f32_dpp v22, v18, v18 row_ror:8 row_mask:0xf bank_mask:0x3
v_add_f32_dpp v23, v20, v20 row_ror:8 row_mask:0xf bank_mask:0x3
v_add_f32_dpp v22, v19, v19 row_ror:8 row_mask:0xf bank_mask:0xc
v_add_f32_dpp v23, v21, v21 row_ror:8 row_mask:0xf bank_mask:0xc
s_nop 0
v_add_f32_dpp v24, v22, v22 row_half_mirror row_mask:0xf bank_mask:0x5
v_add_f32_dpp v24, v23, v23 row_half_mirror row_mask:0xf bank_mask:0xa
s_nop 1
v_add_f32_dpp v24, v24, v24 quad_perm:[1,0,3,2] {DP}
s_nop 1
v_add_f32_dpp v24, v24, v24 quad_perm:[2,3,0,1] {DP}
v_cvt_pk_bf16_f32 v24, v24, v24
v_and_b32 v24, s86, v24
v_mul_f32 v24, s84, v24
v_cvt_pk_bf16_f32 v24, v24, v24
v_and_b32 v24, s86, v24
s_nop 1
v_max_f32_dpp v25, v24, v24 row_ror:8 {DP}
s_nop 1
v_max_f32_dpp v25, v25, v25 row_ror:4 {DP}
v_max_f32 v25, v16, v25
v_sub_f32 v24, v24, v25
v_sub_f32 v26, v16, v25
v_mul_f32 v24, s85, v24
v_mul_f32 v26, s85, v26
v_exp_f32 v24, v24
v_exp_f32 v26, v26
v_mov_b32 v16, v25
v_cvt_pk_bf16_f32 v27, v24, 0
v_fma_f32 v17, v17, v26, v24
v_lshlrev_b32 v28, 16, v27""")
        for r in range(8, 16):
            e(f"v_mul_f32 v{r}, v26, v{r}")
        e(f"s_waitcnt vmcnt({8*NB-4})")
        for j in range(4):
            ln = (0, 8, 4, 12)[j]
            for i in range(4):
                e(f"v_dot2c_f32_bf16_dpp v{8+2*i}, v27, v{v+4*j+i} row_newbcast:{ln} {DP}")
                e(f"v_dot2c_f32_bf16_dpp v{9+2*i}, v28, v{v+4*j+i} row_newbcast:{ln} {DP}")
        issue_v(buf, n + NB)
    U = NB if (NB % len(steps) == 0) else NB * len(steps)
    full = 32 // U
    rem = 32 % U
    e(f"s_mov_b32 s87, {full}\nL_loop:")
    for u in range(U):
        tile(u % NB, u)
    e("s_sub_u32 s87, s87, 1\ns_cmp_lg_u32 s87, 0\ns_cbranch_scc1 L_loop")
    for u in range(rem):
        tile(u % NB, u)
    stamp(5)

    e(f"""v_mov_b32 v18, v16
v_mov_b32 v19, v16
s_nop 1
v_permlane16_swap_b32 v18, v19
s_nop 0
v_max_f32 v18, v18, v19
v_mov_b32 v19, v18
s_nop 1
v_permlane32_swap_b32 v18, v19
s_nop 0
v_max_f32 v18, v18, v19
v_sub_f32 v20, v16, v18
v_mul_f32 v20, s85, v20
v_exp_f32 v20, v20
s_nop 0
v_mul_f32 v17, v17, v20""")
    for r in range(8, 16):
        e(f"v_mul_f32 v{r}, v20, v{r}")
    e(f"""v_add_f32_dpp v17, v17, v17 row_ror:8 {DP}
s_nop 0
v_permlane32_swap_b32 v8, v12
v_permlane32_swap_b32 v9, v13
v_add_f32_dpp v17, v17, v17 row_ror:4 {DP}
v_permlane32_swap_b32 v10, v14
v_permlane32_swap_b32 v11, v15
v_mov_b32 v19, v17
v_add_f32 v8, v8, v12
v_add_f32 v9, v9, v13
v_add_f32 v10, v10, v14
v_add_f32 v11, v11, v15
v_permlane16_swap_b32 v17, v19
s_nop 0
v_permlane16_swap_b32 v8, v10
v_permlane16_swap_b32 v9, v11
v_add_f32 v17, v17, v19
v_add_f32 v8, v8, v10
v_mov_b32 v19, v17
v_add_f32 v9, v9, v11
v_and_b32 v21, 15, v0
v_permlane32_swap_b32 v17, v19
v_lshlrev_b32 v21, 5, v21
v_lshrrev_b32 v22, 4, v0
v_lshl_add_u32 v21, v22, 3, v21
v_add_f32 v19, v17, v19
s_lshl_b32 s78, s57, 2
s_add_u32 s78, s78, s56
s_lshl_b32 s79, s78, 9
v_add_u32 v21, s79, v21
s_lshl_b32 s79, s78, 3
v_mov_b32 v22, s79
ds_write_b64 v21, v[8:9] offset:{WP}
ds_write_b64 v22, v[18:19] offset:{WM}
s_waitcnt vmcnt(0) lgkmcnt(0)
s_barrier""")
    e(f"""s_cmp_ge_u32 s3, 4
s_cbranch_scc1 L_nopub
v_lshlrev_b32 v21, 3, v0
s_lshl_b32 s79, s3, 9
v_add_u32 v22, s79, v21
s_lshl_b32 s79, s3, 3
v_mov_b32 v23, s79
ds_read_b64 v[12:13], v23 offset:{WM}
ds_read_b64 v[14:15], v23 offset:{WM+32}
ds_read_b64 v[8:9], v22 offset:{WP}
ds_read_b64 v[10:11], v22 offset:{WP+2048}
s_lshl_b32 s78, s50, 3
s_add_u32 s78, s78, s51
s_lshl_b32 s79, s78, 11
s_add_u32 s79, s79, {PO}
s_lshl_b32 s78, s78, 5
s_add_u32 s78, s78, {PM}
s_waitcnt lgkmcnt(2)
v_max_f32 v18, v12, v14
v_sub_f32 v12, v12, v18
v_sub_f32 v14, v14, v18
v_mul_f32 v12, s85, v12
v_mul_f32 v14, s85, v14
v_exp_f32 v12, v12
v_exp_f32 v14, v14
s_waitcnt lgkmcnt(0)
v_mul_f32 v8, v8, v12
v_mul_f32 v9, v9, v12
v_mul_f32 v19, v13, v12
v_fmac_f32 v8, v10, v14
v_fmac_f32 v9, v11, v14
v_fmac_f32 v19, v15, v14
v_min_u32 v8, -2, v8
v_min_u32 v9, -2, v9
v_min_u32 v18, -2, v18
v_min_u32 v19, -2, v19
buffer_store_dwordx2 v[8:9], v22, s[44:47], s79 offen sc1
s_mov_b64 exec, 1
buffer_store_dwordx2 v[18:19], v23, s[44:47], s78 offen sc1
s_mov_b64 exec, -1
L_nopub:""")
    e(f"""s_cmp_ge_u32 s3, 5
s_cbranch_scc1 L_nodown
v_lshrrev_b32 v8, 4, v0
v_bfe_u32 v10, v0, 2, 2
v_lshl_add_u32 v11, v8, 2, v10
v_lshl_add_u32 v10, v8, 3, v10
v_mul_u32_u24 v10, 144, v10
v_mul_u32_u24 v11, 144, v11
v_and_b32 v12, 3, v0
v_lshlrev_b32 v13, 3, v12
s_lshl_b32 s78, s3, 5
v_add3_u32 v10, v10, v13, s78
v_add3_u32 v11, v11, v13, s78
v_add_u32 v14, {WDT}, v10
v_add_u32 v11, {WDT+128*144}, v11
v_add_u32 v10, {WOT}, v10
v_mul_u32_u24 v13, 288, v12
v_lshl_add_u32 v15, v8, 3, v13
v_lshl_add_u32 v13, v8, 4, v13
v_lshlrev_b32 v12, 8, v12
v_lshl_add_u32 v30, v8, 4, v12""")
    for s in range(4):
        e(f"ds_read_b64_tr_b16 v[{32+4*s}:{33+4*s}], v14 offset:{32*144*s}")
        e(f"ds_read_b64_tr_b16 v[{34+4*s}:{35+4*s}], v14 offset:{32*144*s+4*144}")
        e(f"ds_read_b128 v[{48+4*s}:{51+4*s}], v13 offset:{HL+64*s}")
    e(f"ds_read_b64_tr_b16 v[64:65], v11\nds_read_b64 v[66:67], v15 offset:{HL+256}")
    for r in range(4):
        e(f"v_mov_b32 v{24+r}, 0")
    e("s_waitcnt lgkmcnt(0)")
    for s in range(4):
        e(f"v_mfma_f32_16x16x32_bf16 v[24:27], v[{32+4*s}:{35+4*s}], v[{48+4*s}:{51+4*s}], v[24:27]")
    e("s_nop 7\nv_mfma_f32_16x16x16_bf16 v[24:27], v[64:65], v[66:67], v[24:27]")
    for s in range(4):
        e(f"ds_read_b64_tr_b16 v[{68+4*s}:{69+4*s}], v10 offset:{32*144*s}")
        e(f"ds_read_b64_tr_b16 v[{70+4*s}:{71+4*s}], v10 offset:{32*144*s+4*144}")
    e("L_nodown:")
    e(f"""s_and_b32 s78, s3, 3
s_lshl_b32 s79, s78, 9
s_lshr_b32 s80, s3, 2
s_lshl_b32 s81, s80, 8
s_add_u32 s79, s79, s81
v_lshl_add_u32 v8, v0, 2, s79
v_and_b32 v9, 7, v0
v_lshlrev_b32 v9, 5, v9
s_lshl_b32 s79, s78, 3
v_add_u32 v9, s79, v9
s_lshl_b32 s88, s52, 14
s_add_u32 s88, s88, {PO}
s_add_u32 s89, s88, 4096
s_add_u32 s90, s88, 8192
s_add_u32 s91, s88, 12288
s_lshl_b32 s92, s52, 8
s_add_u32 s92, s92, {PM}
s_lshl_b32 s79, s78, 8
s_lshl_b32 s81, s80, 7
s_add_u32 s79, s79, s81
v_lshl_add_u32 v29, v0, 1, s79
s_mov_b32 s83, {spin}
L_h1:
buffer_load_dwordx2 v[18:19], v9, s[44:47], s92 offen sc1""")
    for s in range(8):
        e(f"buffer_load_dword v{10+s}, v8, s[44:47], s{88+s//2} offen offset:{2048*(s&1)} sc1")
    e(f"""s_sub_u32 s83, s83, 1
s_cbranch_scc1 L_h1_done
s_waitcnt vmcnt(0)
v_max3_u32 v20, v10, v11, v12
v_max3_u32 v21, v13, v14, v15
v_max3_u32 v20, v20, v16, v17
v_max3_u32 v21, v21, v18, v19
v_max_u32 v20, v20, v21
v_cmp_eq_u32 vcc, -1, v20
s_cbranch_vccnz L_h1
L_h1_done:
s_waitcnt vmcnt(0)""")
    stamp(6)
    e(f"""v_max_f32_dpp v20, v18, v18 quad_perm:[1,0,3,2] {DP}
s_nop 1
v_max_f32_dpp v20, v20, v20 quad_perm:[2,3,0,1] {DP}
s_nop 1
v_max_f32_dpp v20, v20, v20 row_half_mirror {DP}
v_sub_f32 v18, v18, v20
v_mul_f32 v18, s85, v18
v_exp_f32 v18, v18
s_nop 0
v_mul_f32 v19, v19, v18
s_nop 0
v_mul_f32_dpp v21, v18, v10 row_newbcast:0 {DP}
v_add_f32_dpp v19, v19, v19 quad_perm:[1,0,3,2] {DP}
v_fmac_f32_dpp v21, v18, v11 row_newbcast:1 {DP}
v_fmac_f32_dpp v21, v18, v12 row_newbcast:2 {DP}
v_add_f32_dpp v19, v19, v19 quad_perm:[2,3,0,1] {DP}
v_fmac_f32_dpp v21, v18, v13 row_newbcast:3 {DP}
v_fmac_f32_dpp v21, v18, v14 row_newbcast:4 {DP}
v_add_f32_dpp v19, v19, v19 row_half_mirror {DP}
v_fmac_f32_dpp v21, v18, v15 row_newbcast:5 {DP}
v_rcp_f32 v19, v19
v_fmac_f32_dpp v21, v18, v16 row_newbcast:6 {DP}
v_fmac_f32_dpp v21, v18, v17 row_newbcast:7 {DP}
v_mul_f32 v21, v21, v19
v_cvt_pk_bf16_f32 v21, v21, v21
ds_write_b16 v29, v21 offset:{OL}
s_cmp_ge_u32 s3, 5
s_cbranch_scc1 L_fin
s_waitcnt lgkmcnt(0)
s_barrier""")
    for s in range(4):
        e(f"ds_read_b128 v[{48+4*s}:{51+4*s}], v30 offset:{OL+64*s}")
    e(f"""v_and_b32 v8, 15, v0
v_lshrrev_b32 v9, 4, v0
v_cmp_gt_u32 vcc, 4, v8
v_mul_u32_u24 v8, 288, v8
v_lshl_add_u32 v8, v9, 4, v8
s_lshl_b32 s78, s53, 5
s_add_u32 s78, s78, s52
s_mul_i32 s78, s78, 1152
s_lshl_b32 s79, s3, 6
s_add_u32 s78, s78, s79
s_add_u32 s78, s78, {YW}
s_cmp_eq_u32 s3, 4
s_cselect_b32 vcc_hi, 0, vcc_hi""")
    for s in range(4):
        e(f"s_waitcnt lgkmcnt({3-s})")
        e(f"v_mfma_f32_16x16x32_bf16 v[24:27], v[{68+4*s}:{71+4*s}], v[{48+4*s}:{51+4*s}], v[24:27]")
    e("s_nop 7")
    for r in range(4):
        e(f"v_min_u32 v{24+r}, -2, v{24+r}")
    e("""s_mov_b64 exec, vcc
buffer_store_dwordx4 v[24:27], v8, s[44:47], s78 offen sc1
s_mov_b64 exec, -1
s_branch L_done""")
    e(f"""L_fin:
s_waitcnt lgkmcnt(0)
s_barrier
s_cmp_eq_u32 s3, 7
s_cbranch_scc1 L_done
s_cmp_eq_u32 s3, 5
s_cbranch_scc1 L_fin5
s_cmp_ge_u32 s52, 4
s_cbranch_scc1 L_done
s_add_u32 s52, s52, 32
L_fin5:
s_mul_i32 s78, s52, 57
s_lshr_b32 s78, s78, 9
s_mul_i32 s79, s78, 9
s_sub_u32 s79, s52, s79
s_mul_i32 s78, s78, 1152
s_lshl_b32 s79, s79, 4
s_add_u32 s78, s78, s79
s_mul_i32 s79, s53, 144
s_add_u32 s78, s78, s79
v_and_b32 v9, 1, v0
v_lshlrev_b32 v10, 3, v9
s_mov_b32 s36, s4
s_mov_b32 s37, s5
s_mov_b32 s38, 4608
s_mov_b32 s39, 0x20000
buffer_load_dwordx2 v[16:17], v10, s[36:39], s78 offen
s_mov_b32 s40, s22
s_mov_b32 s41, s23
s_mov_b32 s42, 4608
s_mov_b32 s43, 0x20000
v_lshrrev_b32 v8, 1, v0
v_mul_u32_u24 v8, 1152, v8
v_lshl_add_u32 v8, v9, 4, v8
s_mul_i32 s79, s53, {32*1152}
s_lshl_b32 s80, s52, 5
s_add_u32 s79, s79, s80
s_add_u32 s79, s79, {YW}
s_mov_b32 s83, {spin}
L_h2:
buffer_load_dwordx4 v[12:15], v8, s[44:47], s79 offen sc1
s_sub_u32 s83, s83, 1
s_cbranch_scc1 L_h2_done
s_waitcnt vmcnt(0)
v_max3_u32 v20, v12, v13, v14
v_max_u32 v20, v20, v15
v_cmp_eq_u32 vcc, -1, v20
s_cbranch_vccnz L_h2
L_h2_done:
s_waitcnt vmcnt(0)""")
    for dpp in ("quad_perm:[2,3,0,1]", "row_ror:4", "row_ror:8"):
        for r in range(12, 16):
            e(f"v_add_f32_dpp v{r}, v{r}, v{r} {dpp} {DP}")
    for sw in (16, 32):
        for r in range(4):
            e(f"v_mov_b32 v{20+r}, v{12+r}")
        for r in range(4):
            e(f"v_permlane{sw}_swap_b32 v{12+r}, v{20+r}")
        for r in range(4):
            e(f"v_add_f32 v{12+r}, v{12+r}, v{20+r}")
    e("""v_lshlrev_b32 v20, 16, v16
v_and_b32 v21, 0xffff0000, v16
v_lshlrev_b32 v22, 16, v17
v_and_b32 v23, 0xffff0000, v17
v_add_f32 v12, v12, v20
v_add_f32 v13, v13, v21
v_add_f32 v14, v14, v22
v_add_f32 v15, v15, v23
v_cvt_pk_bf16_f32 v12, v12, v13
v_cvt_pk_bf16_f32 v13, v14, v15
s_mov_b64 exec, 3
buffer_store_dwordx2 v[12:13], v10, s[40:43], s78 offen
s_mov_b64 exec, -1
L_done:""")
    if stamps:
        e("s_waitcnt vmcnt(0)")
        stamp(7)
        e(f"""s_mul_i32 s78, s2, 9
s_add_u32 s78, s78, s3
s_lshl_b32 s78, s78, 5
s_add_u32 s78, s78, {STAMP}
s_getreg_b32 s79, hwreg(HW_REG_XCC_ID, 0, 4)
v_mov_b32 v1, s78""")
        for k in range(8):
            e(f"v_mov_b32 v{4+k}, s{60+2*k}")
        e("""global_store_dwordx4 v1, v[4:7], s[26:27]
global_store_dwordx4 v1, v[8:11], s[26:27] offset:16""")
    e(f"""L_end:
s_endpgm
.section .rodata,"a"
.p2align 6
.amdhsa_kernel {KN}
  .amdhsa_next_free_vgpr {NV}
  .amdhsa_next_free_sgpr 96
  .amdhsa_accum_offset {(NV+3)//4*4}
  .amdhsa_group_segment_fixed_size 0
  .amdhsa_kernarg_size 96
  .amdhsa_user_sgpr_count 2
  .amdhsa_user_sgpr_kernarg_segment_ptr 1
  .amdhsa_system_sgpr_workgroup_id_x 1
  .amdhsa_float_denorm_mode_32 3
.end_amdhsa_kernel""")
    return HEADER + e.text()

if __name__ == "__main__":
    kw = eval("dict(%s)" % (sys.argv[1] if len(sys.argv) > 1 else ""))
    sys.stdout.write(gen(**kw))
```

```python
import sys
KN = "parallel_sum__mha_block_cached__geglu_ffn__decode_kernel"

GU = 0x180000
PO = 0x20000
PM = 0xA0000
YW = 0xB0000
CW = 0x1A8000
QW = 0x100000
EW = 0x1B0000
WS_SIZE = 0x1B0080
STAMP = 0x200000
XN = 0; HL = 5632; OL = 6912; CNT = 7936; QL = 8192
FT = 12288; WOT = 86016; WDT = 102400
LDS_SIZE = 120832

LOG2E = 0x3fb8aa3b
SCALE = 0x3db504f3
DP = "row_mask:0xf bank_mask:0xf"

HEADER = """; Kernarg layout for this problem (96 bytes, ptrs only, base s[0:1]):
"""

class A:
    def __init__(self):
        self.o = []
    def __call__(self, s):
        for ln in s.strip("\n").split("\n"):
            ln = ln.strip()
            if ln:
                self.o.append(ln if ln.endswith(":") or ln.startswith((".", ";")) else "    " + ln)
    def text(self):
        return "\n".join(self.o) + "\n"

def gen(NB=4, S=24, wflag="nt", kvflag="nt", qflag="nt", stamps=0, spin=1 << 20, thr=1, pre=1, svcprio=1, qprio=0, dstamp=0, hsleep=32, nocomp=0, nosvc=0, svc0=3, rflag="nt", noq=0, h1sleep=0, notail=0, svcexit=0, tinit=0, tflag="sc1"):
    e = A()
    NBK = NB // 2
    assert NB % 2 == 0 and S > NBK
    LIM = 128 - 4 * S
    def stamp(k):
        if stamps or dstamp:
            e(f"s_memrealtime s[{60+2*k}:{61+2*k}]\ns_waitcnt lgkmcnt(0)")
    KB = 32
    NV = max(KB + NB * 32, 132)
    e(f"; @launch grid=(256,1,1) block=(512,1,1) lds={LDS_SIZE}")
    e(f""".amdgcn_target "amdgcn-amd-amdhsa--gfx950"
.text
.globl {KN}
.p2align 8
.type {KN},@function
{KN}:
s_cmp_ge_u32 s2, 256
s_cbranch_scc1 L_end
s_load_dwordx16 s[4:19], s[0:1], 0
s_load_dwordx8 s[20:27], s[0:1], 64""")
    if stamps or dstamp:
        for k in range(8):
            e(f"s_mov_b32 s{60+2*k}, 0")
        e("s_mov_b32 s97, 0")
    stamp(0)
    e(f"""v_lshrrev_b32 v1, 6, v0
v_and_b32 v0, 63, v0
v_readfirstlane_b32 s3, v1
s_and_b32 s48, s2, 7
s_lshr_b32 s49, s2, 3
s_and_b32 s52, s49, 3
s_lshl_b32 s53, s48, 2
s_add_u32 s52, s52, s53
s_lshr_b32 s53, s2, 5
s_add_u32 s96, s48, s53
s_and_b32 s96, s96, 7
v_lshlrev_b32 v1, 4, v0
s_mov_b32 s85, {LOG2E}
v_mov_b32 v8, {CNT}
v_mov_b32 v10, 0
v_mov_b32 v11, 0
v_mov_b32 v12, 0
v_mov_b32 v13, 0
s_cmp_lg_u32 s3, 0
s_cbranch_scc1 L_b0
ds_write_b128 v8, v[10:13]
ds_write_b128 v8, v[10:13] offset:16
L_b0:
s_waitcnt lgkmcnt(0)
s_mov_b32 s94, {EW}
s_load_dword s94, s[26:27], s94
s_mov_b32 s44, s26
s_mov_b32 s45, s27
s_mov_b32 s46, {WS_SIZE}
s_mov_b32 s47, 0x20000
s_cmp_ge_u32 s3, 4
s_cbranch_scc1 L_svc""")

    e(f"""s_setprio {qprio}
s_add_u32 s56, s3, s48
s_and_b32 s56, s56, 3
s_lshl_b32 s58, s56, 5
s_add_u32 s58, s58, s49
s_lshl_b32 s59, s58, 21
s_add_u32 s28, s6, s59
s_addc_u32 s29, s7, 0
s_mov_b32 s30, {2<<20}
s_mov_b32 s31, 0x20000
s_add_u32 s32, s8, s59
s_addc_u32 s33, s9, 0
s_mov_b32 s34, {2<<20}
s_mov_b32 s35, 0x20000
s_and_b32 s50, s48, 1
s_lshr_b32 s51, s48, 1
s_lshl_b32 s54, s50, 13
s_lshl_b32 s58, s58, 7
s_add_u32 s58, s58, {CW}
s_add_u32 s36, s26, s58
s_addc_u32 s37, s27, 0
s_barrier""")
    def issue_k(buf):
        for j in range(4):
            r = KB + buf * 32 + j * 4
            e(f"buffer_load_dwordx4 v[{r}:{r+3}], v1, s[28:31], s{76+(buf&1)} offen offset:{j*1024} {kvflag}")
    def issue_v(buf):
        for j in range(4):
            r = KB + buf * 32 + 16 + j * 4
            e(f"buffer_load_dwordx4 v[{r}:{r+3}], v1, s[32:35], s{76+(buf&1)} offen offset:{j*1024} {kvflag}")
    def static_next():
        e("""s_lshl_b32 s76, s51, 14
s_add_u32 s76, s76, s54
s_add_u32 s77, s76, 4096
s_add_u32 s51, s51, 4""")
    for b in range(NB):
        if b % 2 == 0:
            static_next()
        issue_k(b); issue_v(b)
    stamp(1)
    e(f"""s_lshl_b32 s78, s56, 2
v_mov_b32 v2, s78
v_and_b32 v3, 15, v0
v_lshlrev_b32 v3, 4, v3
s_lshl_b32 s78, s56, 8
v_add_u32 v3, s78, v3
s_mov_b32 s83, {spin}
L_qw:
ds_read_b32 v8, v2 offset:{CNT+16}
ds_read_b128 v[4:7], v3 offset:{QL}
s_sub_u32 s83, s83, 1
s_cbranch_scc1 L_q_ok
s_waitcnt lgkmcnt(0)
v_cmp_eq_u32 vcc, 0, v8
{"" if noq else "s_cbranch_vccnz L_qw"}
L_q_ok:
s_waitcnt lgkmcnt(0)
s_add_u32 s94, s94, 1
s_setprio 0""")
    stamp(3)
    for r in range(8, 16):
        e(f"v_mov_b32 v{r}, 0")
    e(f"""v_mov_b32 v16, 0xff7fffff
v_mov_b32 v17, 0
s_mov_b32 s84, {SCALE}
s_mov_b32 s86, 0xffff0000
s_mov_b32 s87, {S - NBK}
s_mov_b32 s88, {NBK}
s_mov_b32 s89, 0
s_and_b32 s95, s94, 0xffff""")
    if svcexit == 1:
        e(f"""s_lshl_b32 s79, s94, 16
v_mov_b32 v3, s79
v_lshlrev_b32 v2, 2, v0
s_mov_b64 exec, {(1, 0xffff, 0xffffffff)[tinit]}
s_lshl_b32 s79, s2, {7 if tinit == 2 else 6}
s_add_u32 s79, s79, {CW}
buffer_store_dword v3, v2, s[44:47], s79 offen {tflag}
s_mov_b64 exec, -1""")
    stamp(4)

    def tile(buf):
        k = KB + buf * 32
        v = k + 16
        e(f"s_waitcnt vmcnt({8*NB-4})")
        if nocomp:
            issue_k(buf)
            e(f"s_waitcnt vmcnt({8*NB-4})")
            issue_v(buf)
            return
        for j in range(4):
            e(f"v_dot2_f32_bf16 v{18+j}, v{k+4*j}, v4, 0")
        for i in range(1, 4):
            for j in range(4):
                e(f"v_dot2c_f32_bf16 v{18+j}, v{k+4*j+i}, v{4+i}")
        issue_k(buf)
        e(f"""v_add_f32_dpp v22, v18, v18 row_ror:8 row_mask:0xf bank_mask:0x3
v_add_f32_dpp v23, v20, v20 row_ror:8 row_mask:0xf bank_mask:0x3
v_add_f32_dpp v22, v19, v19 row_ror:8 row_mask:0xf bank_mask:0xc
v_add_f32_dpp v23, v21, v21 row_ror:8 row_mask:0xf bank_mask:0xc
s_nop 0
v_add_f32_dpp v24, v22, v22 row_half_mirror row_mask:0xf bank_mask:0x5
v_add_f32_dpp v24, v23, v23 row_half_mirror row_mask:0xf bank_mask:0xa
s_nop 1
v_add_f32_dpp v24, v24, v24 quad_perm:[1,0,3,2] {DP}
s_nop 1
v_add_f32_dpp v24, v24, v24 quad_perm:[2,3,0,1] {DP}
v_cvt_pk_bf16_f32 v24, v24, v24
v_and_b32 v24, s86, v24
v_mul_f32 v24, s84, v24
v_cvt_pk_bf16_f32 v24, v24, v24
v_and_b32 v24, s86, v24
s_nop 1
v_max_f32_dpp v25, v24, v24 row_ror:8 {DP}
s_nop 1
v_max_f32_dpp v25, v25, v25 row_ror:4 {DP}
v_max_f32 v25, v16, v25
v_sub_f32 v24, v24, v25
v_sub_f32 v26, v16, v25
v_mul_f32 v24, s85, v24
v_mul_f32 v26, s85, v26
v_exp_f32 v24, v24
v_exp_f32 v26, v26
v_mov_b32 v16, v25
v_cvt_pk_bf16_f32 v27, v24, 0
v_fma_f32 v17, v17, v26, v24
v_lshlrev_b32 v28, 16, v27""")
        for r in range(8, 16):
            e(f"v_mul_f32 v{r}, v26, v{r}")
        e(f"s_waitcnt vmcnt({8*NB-4})")
        for j in range(4):
            ln = (0, 8, 4, 12)[j]
            for i in range(4):
                e(f"v_dot2c_f32_bf16_dpp v{8+2*i}, v27, v{v+4*j+i} row_newbcast:{ln} {DP}")
                e(f"v_dot2c_f32_bf16_dpp v{9+2*i}, v28, v{v+4*j+i} row_newbcast:{ln} {DP}")
        issue_v(buf)
    def claim():
        e("s_lshl_b32 s90, s50, 3\ns_lshl_b32 s90, 1, s90\ns_atomic_add s90, s[36:37], 0 glc")
    e("L_loop:")
    for u in range(NBK):
        e(f"""s_cmp_eq_u32 s87, 0
s_cbranch_scc1 L_dyn{u}
s_sub_u32 s87, s87, 1""")
        static_next()
        e(f"""s_cmp_lg_u32 s87, 0
s_cbranch_scc1 L_go{u}
v_mov_b32 v29, {CNT}
v_mov_b32 v30, 1
ds_write_b32 v29, v30 offset:8
s_mov_b32 s83, {spin}""")
        stamp(6)
        if LIM > 0:
            claim()
        else:
            e("s_mov_b32 s89, 2")
        e(f"""s_branch L_go{u}
L_dyn{u}:
s_cmp_eq_u32 s89, 2
s_cbranch_scc1 L_none{u}
L_chk{u}:
s_waitcnt lgkmcnt(0)
s_lshr_b32 s92, s90, 16
s_cmp_lg_u32 s92, s95
s_cbranch_scc1 L_early{u}
s_lshl_b32 s91, s50, 3
s_lshr_b32 s92, s90, s91
s_and_b32 s92, s92, 0xff
s_cmp_lt_u32 s92, {LIM}
s_cbranch_scc1 L_got{u}
s_cmp_eq_u32 s89, 1
s_cbranch_scc1 L_fin{u}
s_xor_b32 s91, s91, 8
s_lshr_b32 s92, s90, s91
s_and_b32 s92, s92, 0xff
s_cmp_ge_u32 s92, {max(LIM - thr + 1, 0)}
s_cbranch_scc1 L_fin{u}
s_mov_b32 s89, 1
s_xor_b32 s50, s50, 1
s_xor_b32 s54, s54, 0x2000
L_early{u}:
s_sub_u32 s83, s83, 1
s_cbranch_scc1 L_fin{u}""")
        claim()
        e(f"""s_branch L_chk{u}
L_fin{u}:
s_mov_b32 s89, 2
L_none{u}:
s_mov_b32 s76, 0x400000
s_mov_b32 s77, 0x400000
s_sub_u32 s88, s88, 1
s_branch L_go{u}
L_got{u}:
s_add_u32 s92, s92, {4*S}
s_lshl_b32 s76, s92, 14
s_add_u32 s76, s76, s54
s_add_u32 s77, s76, 4096""")
        if stamps:
            e("s_add_u32 s97, s97, 1")
        claim()
        e(f"L_go{u}:")
        tile(2 * u); tile(2 * u + 1)
        if u < NBK - 1:
            e("s_cmp_eq_u32 s88, 0\ns_cbranch_scc1 L_sdone")
        else:
            e("s_cmp_lg_u32 s88, 0\ns_cbranch_scc1 L_loop")
    e("L_sdone:")
    stamp(5)
    e(f"""v_mov_b32 v18, v16
v_mov_b32 v19, v16
s_lshl_b32 s78, s2, 11
s_lshl_b32 s79, s56, 9
v_permlane16_swap_b32 v18, v19
s_add_u32 s78, s78, s79
v_max_f32 v18, v18, v19
v_mov_b32 v19, v18
s_add_u32 s78, s78, {PO}
s_lshl_b32 s79, s2, 6
v_permlane32_swap_b32 v18, v19
s_lshl_b32 s80, s56, 4
v_max_f32 v18, v18, v19
v_sub_f32 v20, v16, v18
v_mul_f32 v20, s85, v20
v_exp_f32 v20, v20
s_add_u32 s79, s79, s80
v_mul_f32 v17, v17, v20""")
    for r in range(8, 16):
        e(f"v_mul_f32 v{r}, v20, v{r}")
    e(f"""v_add_f32_dpp v17, v17, v17 row_ror:8 {DP}
s_add_u32 s79, s79, {PM}
v_permlane32_swap_b32 v8, v12
v_permlane32_swap_b32 v9, v13
v_add_f32_dpp v17, v17, v17 row_ror:4 {DP}
v_permlane32_swap_b32 v10, v14
v_permlane32_swap_b32 v11, v15
v_mov_b32 v19, v17
v_add_f32 v8, v8, v12
v_add_f32 v9, v9, v13
v_add_f32 v10, v10, v14
v_add_f32 v11, v11, v15
v_permlane16_swap_b32 v17, v19
v_and_b32 v21, 15, v0
v_permlane16_swap_b32 v8, v10
v_permlane16_swap_b32 v9, v11
v_add_f32 v17, v17, v19
v_add_f32 v8, v8, v10
v_mov_b32 v19, v17
v_add_f32 v9, v9, v11
v_lshlrev_b32 v21, 5, v21
v_permlane32_swap_b32 v17, v19
v_lshrrev_b32 v22, 4, v0
v_lshl_add_u32 v22, v22, 3, v21
v_mov_b32 v20, s94
s_movk_i32 s80, 0xff
v_bfi_b32 v8, s80, v20, v8
v_bfi_b32 v9, s80, v20, v9
v_add_f32 v19, v17, v19
buffer_store_dwordx2 v[8:9], v22, s[44:47], s78 offen sc1
v_mov_b32 v21, s94
s_mov_b64 exec, 1
buffer_store_dwordx4 v[18:21], v1, s[44:47], s79 offen sc1
s_mov_b64 exec, -1
s_barrier""")
    e(f"""s_cmp_ge_u32 s3, {0 if notail else 2}
s_cbranch_scc1 L_bar_done
s_cmp_eq_u32 s3, 0
s_cbranch_scc1 L_red
s_cmp_lg_u32 s96, 7
s_cbranch_scc1 L_bar_done
s_mov_b32 s53, 8
L_red:
s_lshr_b32 s78, s52, 3
s_and_b32 s79, s52, 7
s_mul_i32 s78, s78, 1152
s_lshl_b32 s79, s79, 4
s_add_u32 s78, s78, s79
s_lshl_b32 s79, s53, 7
s_add_u32 s78, s78, s79
v_and_b32 v9, 1, v0
v_lshlrev_b32 v10, 3, v9
s_mov_b32 s28, s4
s_mov_b32 s29, s5
s_mov_b32 s30, 4608
s_mov_b32 s31, 0x20000
buffer_load_dwordx2 v[16:17], v10, s[28:31], s78 offen
s_mov_b32 s40, s22
s_mov_b32 s41, s23
s_mov_b32 s42, 4608
s_mov_b32 s43, 0x20000
v_lshrrev_b32 v8, 1, v0
v_lshlrev_b32 v8, 10, v8
v_lshl_add_u32 v8, v9, 4, v8
s_lshl_b32 s79, s53, 15
s_lshl_b32 s80, s52, 5
s_add_u32 s79, s79, s80
s_add_u32 s79, s79, {YW}
s_mov_b32 s83, {spin}
s_barrier
L_h2:
buffer_load_dwordx4 v[12:15], v8, s[44:47], s79 offen sc1
s_sub_u32 s83, s83, 1
s_cbranch_scc1 L_h2_done
s_waitcnt vmcnt(0)
v_xor_b32 v20, s94, v12
v_bitop3_b32 v20, v20, v13, s94 bitop3:0xf6
v_bitop3_b32 v20, v20, v14, s94 bitop3:0xf6
v_bitop3_b32 v20, v20, v15, s94 bitop3:0xf6
v_and_b32 v20, 0xff, v20
v_cmp_ne_u32 vcc, 0, v20
s_and_b64 exec, exec, vcc
s_cbranch_execnz L_h2
L_h2_done:
s_mov_b64 exec, -1
s_waitcnt vmcnt(0)""")
    for dpp in ("quad_perm:[2,3,0,1]", "row_ror:4", "row_ror:8"):
        for r in range(12, 16):
            e(f"v_add_f32_dpp v{r}, v{r}, v{r} {dpp} {DP}")
    for sw in (16, 32):
        for r in range(4):
            e(f"v_mov_b32 v{20+r}, v{12+r}")
        for r in range(4):
            e(f"v_permlane{sw}_swap_b32 v{12+r}, v{20+r}")
        for r in range(4):
            e(f"v_add_f32 v{12+r}, v{12+r}, v{20+r}")
    e(f"""v_lshlrev_b32 v20, 16, v16
v_and_b32 v21, 0xffff0000, v16
v_lshlrev_b32 v22, 16, v17
v_and_b32 v23, 0xffff0000, v17
v_add_f32 v12, v12, v20
v_add_f32 v13, v13, v21
v_add_f32 v14, v14, v22
v_add_f32 v15, v15, v23
v_cvt_pk_bf16_f32 v12, v12, v13
v_cvt_pk_bf16_f32 v13, v14, v15
s_mov_b64 exec, 3
buffer_store_dwordx2 v[12:13], v10, s[40:43], s78 offen
s_add_u32 s78, s2, s3
s_cmp_lg_u32 s78, 0
s_cbranch_scc1 L_done
v_mov_b32 v12, s94
v_mov_b32 v13, {EW}
s_mov_b64 exec, 1
buffer_store_dword v12, v13, s[44:47], 0 offen sc1
s_branch L_done
L_bar_done:
s_barrier
s_branch L_done""")

    def srd(ptr, nbytes):
        e(f"s_mov_b32 s40, s{ptr}\ns_mov_b32 s41, s{ptr+1}\ns_mov_b32 s42, {nbytes}\ns_mov_b32 s43, 0x20000")
    def dma(n_ins, step, ldsbase, vreg, skip=False):
        for n in range(n_ins):
            e(f"s_add_u32 m0, s79, {ldsbase + 1024*n}")
            e(f"s_add_u32 s78, s78, {step}" if n else "s_nop 0")
            if not skip:
                e(f"buffer_load_dwordx4 v{vreg}, s[40:43], s78 offen {wflag} lds")
    def proj_tiles(stripe_sreg, wo_base, wd_base):
        srd(12, 4096 * 1152)
        e(f"""s_lshl_b32 s81, s{stripe_sreg}, 7
s_mul_i32 s78, s52, {128*1152}
s_add_u32 s78, s78, s81
s_mul_i32 s79, s56, {32*1152}
s_add_u32 s78, s78, s79
s_lshl_b32 s79, s56, 12""")
        dma(4, 8 * 1152, wo_base, 31, nosvc in (1, 3))
        srd(20, 4608 * 1152)
        e(f"""s_mul_i32 s78, s52, {144*1152}
s_add_u32 s78, s78, s81
s_mul_i32 s79, s57, {8*1152}
s_add_u32 s78, s78, s79
s_lshl_b32 s79, s57, 10""")
        dma(5, 8 * 1152, wd_base, 31, nosvc in (1, 3))
    qn = [0]
    def qfetch():
        n = qn[0]; qn[0] += 1
        e(f"""v_and_b32 v14, 31, v0
v_lshlrev_b32 v3, 3, v14
v_lshlrev_b32 v14, 4, v14
s_lshl_b32 s88, s56, 14
s_lshl_b32 s89, s49, 9
s_add_u32 s88, s88, s89
s_add_u32 s88, s88, {QW}
s_lshl_b32 s89, s56, 8
v_add_u32 v3, s89, v3
s_lshl_b32 s89, s56, 2
v_mov_b32 v2, s89
s_mov_b32 s83, {spin}
L_q_again{n}:
buffer_load_dwordx4 v[16:19], v14, s[44:47], s88 offen sc1
s_sub_u32 s83, s83, 1
s_cbranch_scc1 L_q_got{n}
s_waitcnt vmcnt(0)
v_xor_b32 v15, s94, v17
v_bitop3_b32 v15, v15, v19, s94 bitop3:0xf6
v_cmp_ne_u32 vcc, 0, v15
s_cbranch_vccnz L_q_again{n}
L_q_got{n}:
v_mov_b32 v17, v18
v_mov_b32 v15, 1
ds_write_b64 v3, v[16:17] offset:{QL}
ds_write_b32 v2, v15 offset:{CNT+16}
s_setprio {svcprio}""")
        stamp(4)
    if svcexit == 1:
        e("L_svc:\ns_barrier\ns_branch L_done\nL_svc_x:")
    e(f"""{"" if svcexit == 1 else "L_svc:"}
s_setprio {svc0}
s_sub_u32 s56, s3, 4
s_mul_i32 s57, s56, 9
s_lshr_b32 s57, s57, 1
v_lshrrev_b32 v8, 3, v0
v_and_b32 v10, 7, v0
v_lshlrev_b32 v10, 4, v10
v_mul_u32_u24 v31, 1152, v8
v_add_u32 v31, v31, v10
s_sub_u32 s78, s96, 5
s_cmp_lt_u32 s78, 2
s_cbranch_scc1 L_tq
s_and_b32 s78, s49, 1
s_add_u32 s78, s78, 4
s_cmp_ge_u32 s96, s78
s_cbranch_scc1 L_notask
s_mul_i32 s80, s49, 9
s_lshr_b32 s80, s80, 1
s_add_u32 s80, s80, s96
s_cmp_ge_u32 s80, 72
s_cselect_b32 s40, s18, s16
s_cselect_b32 s41, s19, s17
s_cselect_b32 s78, 72, 0
s_cselect_b32 s51, 73728, 0
s_mov_b32 s42, {0 if nosvc in (1, 2) else 576*9216}
s_sub_u32 s80, s80, s78
s_add_u32 s51, s51, {GU}
s_movk_i32 s50, 9216
s_movk_i32 s55, 18432
s_branch L_task
L_tq:
s_lshl_b32 s80, s49, 1
s_add_u32 s80, s80, s78
s_mov_b32 s40, s10
s_mov_b32 s41, s11
s_mov_b32 s42, {576*8192}
s_mov_b32 s51, {QW}
s_movk_i32 s50, 8192
s_movk_i32 s55, 16384
L_task:
s_mov_b32 s43, 0x20000
s_mul_i32 s36, s56, 1152
s_add_u32 s36, s4, s36
s_addc_u32 s37, s5, 0
s_mov_b32 s38, 1152
s_mov_b32 s39, 0x20000
v_lshlrev_b32 v7, 2, v0""")
    for j in range(5):
        e(f"buffer_load_dword v{2+j}, v7, s[36:39], 0 offen offset:{256*j}")
    e(f"""v_mul_u32_u24 v8, s50, v8
v_add_u32 v8, v8, v10
s_lshl_b32 s78, s80, 7
s_mul_i32 s79, s56, 144
s_mul_i32 s79, s79, s50
s_add_u32 s78, s78, s79
s_lshl_b32 s82, s50, 3
s_lshl_b32 s79, s80, 8
s_add_u32 s51, s51, s79
s_lshl_b32 s79, s56, 6
s_add_u32 s51, s51, s79
s_mul_i32 s79, s56, {18*1024}""")
    dma(18, "s82", FT, 8)
    e("s_barrier\ns_waitcnt vmcnt(18)")
    if svcexit == 2:
        e("s_waitcnt lgkmcnt(0)\ns_add_u32 s94, s94, 1\ns_branch L_tick")
    def wave_sum(r, t):
        for k in (8, 4, 2, 1):
            e(f"s_nop 1\nv_add_f32_dpp v{r}, v{r}, v{r} row_ror:{k} {DP}")
        for sw in (16, 32):
            e(f"v_mov_b32 v{t}, v{r}\ns_nop 1\nv_permlane{sw}_swap_b32 v{r}, v{t}\ns_nop 0\nv_add_f32 v{r}, v{r}, v{t}")
    def rbf(d, s):
        e(f"v_cvt_pk_bf16_f32 v{d}, v{s}, v{s}\nv_and_b32 v{d}, 0xffff0000, v{d}")
    for j in range(5):
        e(f"v_lshlrev_b32 v{10+2*j}, 16, v{2+j}\nv_and_b32 v{11+2*j}, 0xffff0000, v{2+j}")
    e("v_add_f32 v20, v10, v11")
    for j in range(12, 20):
        e(f"v_add_f32 v20, v20, v{j}")
    wave_sum(20, 21)
    e("v_mul_f32 v20, 0x3ae38e39, v20")
    e("v_cmp_gt_u32 vcc, 32, v0")
    for j in range(10):
        e(f"v_sub_f32 v{22+j if j < 8 else 2+j-8}, v{10+j}, v20")
    e("v_cndmask_b32 v2, 0, v2, vcc\nv_cndmask_b32 v3, 0, v3, vcc")
    e("v_mul_f32 v21, v2, v2\nv_fmac_f32 v21, v3, v3")
    for j in range(8):
        e(f"v_fmac_f32 v21, v{22+j}, v{22+j}")
    wave_sum(21, 22)
    e("v_mul_f32 v21, 0x3ae38e39, v21")
    rbf(21, 21)
    e("v_add_f32 v21, 0x3727c5ac, v21")
    rbf(21, 21)
    e("v_sqrt_f32 v21, v21\ns_nop 0")
    rbf(21, 21)
    e("v_rcp_f32 v21, v21")
    rbf(20, 20)
    for j in range(10):
        e(f"v_sub_f32 v{10+j}, v{10+j}, v20")
    for j in range(5):
        e(f"v_cvt_pk_bf16_f32 v{2+j}, v{10+2*j}, v{11+2*j}")
    for j in range(5):
        e(f"v_lshlrev_b32 v{10+2*j}, 16, v{2+j}\nv_and_b32 v{11+2*j}, 0xffff0000, v{2+j}")
    for j in range(10):
        e(f"v_mul_f32 v{10+j}, v{10+j}, v21")
    for j in range(5):
        e(f"v_cvt_pk_bf16_f32 v{2+j}, v{10+2*j}, v{11+2*j}")
    e("s_mul_i32 s78, s56, 1152\nv_add_u32 v7, s78, v7")
    for j in range(4):
        e(f"ds_write_b32 v7, v{2+j} offset:{XN+256*j}")
    e(f"s_mov_b64 exec, 0xffffffff\nds_write_b32 v7, v6 offset:{XN+1024}\ns_mov_b64 exec, -1")
    e(f"""v_lshrrev_b32 v8, 4, v0
v_lshlrev_b32 v9, 4, v8
v_lshlrev_b32 v8, 3, v8
v_bfe_u32 v10, v0, 2, 2
v_add_u32 v8, v8, v10
v_lshlrev_b32 v8, 7, v8
v_and_b32 v10, 3, v0
v_lshl_add_u32 v8, v10, 3, v8
v_mul_u32_u24 v10, 1152, v10
v_add_u32 v9, v9, v10
s_lshl_b32 s78, s56, 5
s_add_u32 s78, s78, {FT}
v_add_u32 v11, s78, v8
v_add_u32 v12, {9*4096}, v11
v_and_b32 v13, 15, v0
v_mul_u32_u24 v13, s55, v13
v_lshrrev_b32 v14, 4, v0
v_lshl_add_u32 v13, v14, 4, v13""")
    for r in range(16, 20):
        e(f"v_mov_b32 v{r}, 0")
    e(f"""v_mov_b32 v29, {CNT}
v_mov_b32 v30, 1
s_mov_b32 s83, {spin}
s_waitcnt vmcnt(0) lgkmcnt(0)
s_add_u32 s94, s94, 1
s_mov_b64 exec, 1
ds_add_u32 v29, v30
s_mov_b64 exec, -1
L_wxn:
ds_read_b32 v30, v29
s_sub_u32 s83, s83, 1
s_cbranch_scc1 L_wxn_ok
s_waitcnt lgkmcnt(0)
v_cmp_gt_u32 vcc, 4, v30
s_cbranch_vccnz L_wxn
L_wxn_ok:
s_waitcnt lgkmcnt(0)""")
    stamp(1)
    def rd(s):
        base = 32 + (s % 5) * 8
        e(f"ds_read_b128 v[{base}:{base+3}], v9 offset:{XN+64*s}")
        sg, so = divmod(s, 9)
        e(f"ds_read_b64_tr_b16 v[{base+4}:{base+5}], v{11+sg} offset:{4096*so}")
        e(f"ds_read_b64_tr_b16 v[{base+6}:{base+7}], v{11+sg} offset:{4096*so+512}")
    for s in range(4):
        rd(s)
    for s in range(18):
        e(f"s_waitcnt lgkmcnt({min(3, 17-s)*3})")
        base = 32 + (s % 5) * 8
        e(f"v_mfma_f32_16x16x32_bf16 v[16:19], v[{base+4}:{base+7}], v[{base}:{base+3}], v[16:19]")
        if s + 4 < 18:
            rd(s + 4)
    e(f"""v_mov_b32 v21, s94
v_mov_b32 v23, s94
s_mov_b32 s80, 0x000f000f
s_mov_b32 s81, 0x000f000f
s_nop 3
v_cvt_pk_bf16_f32 v20, v16, v17
v_cvt_pk_bf16_f32 v22, v18, v19
s_mov_b64 exec, s[80:81]
buffer_store_dwordx4 v[20:23], v13, s[44:47], s51 offen sc1
s_mov_b64 exec, -1""")
    stamp(2)
    if svcexit == 3:
        e("s_branch L_tick")
    qfetch()
    proj_tiles(53, WOT, WDT)
    e("s_branch L_tick\nL_notask:")
    proj_tiles(53, WOT, WDT)
    e("s_cmp_lg_u32 s96, 7\ns_cbranch_scc1 L_nf2\ns_mov_b32 s80, 8")
    proj_tiles(80, FT, FT + 16384)
    e("L_nf2:\ns_barrier\ns_waitcnt lgkmcnt(0)\ns_add_u32 s94, s94, 1")
    if svcexit not in (2, 3):
        qfetch()
    e(f"""L_tick:
s_cmp_lg_u32 s56, 3
s_cbranch_scc1 L_gu
s_lshl_b32 s79, s94, 16
v_mov_b32 v3, s79
v_lshlrev_b32 v2, 2, v0
s_mov_b64 exec, {(1, 0xffff, 0xffffffff)[tinit]}
s_lshl_b32 s79, s2, {7 if tinit == 2 else 6}
s_add_u32 s79, s79, {CW}
buffer_store_dword v3, v2, s[44:47], s79 offen {tflag}
s_mov_b64 exec, -1""")
    if svcexit in (2, 3):
        e("L_gu:\ns_branch L_done\nL_gu_x:")
    e(f"""{"" if svcexit in (2, 3) else "L_gu:"}
v_min_u32 v8, 35, v0
v_lshlrev_b32 v24, 4, v8
v_lshlrev_b32 v26, 3, v8
s_mul_i32 s78, s56, 288
v_add_u32 v26, s78, v26
s_mul_i32 s78, s52, 576
s_mul_i32 s79, s56, 18432
s_add_u32 s78, s78, s79
s_add_u32 s78, s78, {GU}
s_add_u32 s79, s78, 73728
v_mov_b32 v29, {CNT}
s_mov_b32 s83, {spin}
L_late:
s_sleep {hsleep}
ds_read_b32 v30, v29 offset:8
s_sub_u32 s83, s83, 1
s_cbranch_scc1 L_late_ok
s_waitcnt lgkmcnt(0)
v_cmp_eq_u32 vcc, 0, v30
s_cbranch_vccnz L_late
L_late_ok:
s_waitcnt lgkmcnt(0)
s_mov_b32 s83, {spin}
L_ph:
buffer_load_dwordx4 v[12:15], v24, s[44:47], s78 offen sc1
buffer_load_dwordx4 v[16:19], v24, s[44:47], s79 offen sc1
s_sub_u32 s83, s83, 1
s_cbranch_scc1 L_ph_done
s_waitcnt vmcnt(0)
v_xor_b32 v8, s94, v13
v_bitop3_b32 v8, v8, v15, s94 bitop3:0xf6
v_bitop3_b32 v8, v8, v17, s94 bitop3:0xf6
v_bitop3_b32 v8, v8, v19, s94 bitop3:0xf6
v_cmp_ne_u32 vcc, 0, v8
s_cbranch_vccnz L_ph
L_ph_done:
s_waitcnt vmcnt(0)
v_lshlrev_b32 v32, 16, v12
v_and_b32 v33, 0xffff0000, v12
v_lshlrev_b32 v34, 16, v14
v_and_b32 v35, 0xffff0000, v14
v_lshlrev_b32 v36, 16, v16
v_and_b32 v37, 0xffff0000, v16
v_lshlrev_b32 v38, 16, v18
v_and_b32 v39, 0xffff0000, v18
s_mov_b32 s78, 0x3d372713
s_mov_b32 s79, 0xc0135761""")
    for r in range(4):
        g = 32 + r; t = 40 + r
        e(f"""v_mul_f32 v{t}, v{g}, v{g}
v_mul_f32 v{t}, v{t}, v{g}
v_fma_f32 v{t}, v{t}, s78, v{g}
v_mul_f32 v{t}, s79, v{t}
v_exp_f32 v{t}, v{t}
s_nop 0
v_add_f32 v{t}, 1.0, v{t}
v_rcp_f32 v{t}, v{t}
s_nop 0
v_mul_f32 v{t}, v{t}, v{g}""")
        rbf(t, t)
        e(f"v_mul_f32 v{t}, v{t}, v{36+r}")
    e(f"""v_cvt_pk_bf16_f32 v16, v40, v41
v_cvt_pk_bf16_f32 v17, v42, v43
ds_write_b64 v26, v[16:17] offset:{HL}""")
    stamp(3)
    e(f"""L_b3:
v_lshrrev_b32 v8, 4, v0
v_bfe_u32 v10, v0, 2, 2
v_lshl_add_u32 v11, v8, 2, v10
v_lshl_add_u32 v10, v8, 3, v10
v_lshlrev_b32 v10, 7, v10
v_lshlrev_b32 v11, 7, v11
v_and_b32 v12, 3, v0
v_lshlrev_b32 v13, 3, v12
s_lshl_b32 s78, s56, 5
v_add3_u32 v10, v10, v13, s78
v_add3_u32 v11, v11, v13, s78
v_add_u32 v4, {WDT}, v10
v_add_u32 v5, {WDT+128*128}, v11
v_add_u32 v6, {WOT}, v10
v_add_u32 v100, {FT+16384}, v10
v_add_u32 v101, {FT+16384+128*128}, v11
v_add_u32 v102, {FT}, v10
v_mul_u32_u24 v13, 288, v12
v_lshl_add_u32 v7, v8, 3, v13
v_lshl_add_u32 v3, v8, 4, v13
v_lshlrev_b32 v12, 8, v12
v_lshl_add_u32 v30, v8, 4, v12
s_lshl_b32 s79, s56, 9
v_lshl_add_u32 v112, v0, 3, s79
v_and_b32 v113, 7, v0
v_lshlrev_b32 v113, 6, v113
s_lshl_b32 s79, s56, 4
v_add_u32 v113, s79, v113
s_lshl_b32 s88, s52, 14
s_add_u32 s88, s88, {PO}
s_add_u32 s89, s88, 4096
s_add_u32 s90, s88, 8192
s_add_u32 s91, s88, 12288
s_lshl_b32 s92, s52, 9
s_add_u32 s92, s92, {PM}
s_lshl_b32 s79, s56, 8
v_lshl_add_u32 v29, v0, 2, s79
v_and_b32 v114, 15, v0
v_cmp_gt_u32 s[80:81], 4, v114
v_lshlrev_b32 v114, 8, v114
v_lshl_add_u32 v114, v8, 4, v114
s_lshl_b32 s93, s52, 10
s_lshl_b32 s79, s56, 6
s_add_u32 s93, s93, s79
s_add_u32 s93, s93, {YW}
s_add_u32 s87, s93, {8*32768}
s_lshl_b32 s79, s53, 15
s_add_u32 s93, s93, s79
s_movk_i32 s82, 0xff
v_mov_b32 v115, s94""")
    for r in range(24, 28):
        e(f"v_mov_b32 v{r}, 0")
    for r in range(116, 120):
        e(f"v_mov_b32 v{r}, 0")
    e(f"""s_mov_b32 s83, {spin}
s_waitcnt vmcnt(0) lgkmcnt(0)
s_barrier""")
    stamp(5)
    if notail:
        e("s_barrier\ns_branch L_done")
    P = [10 + 2 * s if s < 7 else 120 for s in range(8)]
    def gather(first):
        e("buffer_load_dwordx4 v[124:127], v113, s[44:47], s92 offen sc1")
        for s in range(8):
            if not first:
                e(f"s_bitcmp1_b32 s86, {s}\ns_cbranch_scc1 L_g{s}")
            e(f"buffer_load_dwordx2 v[{P[s]}:{P[s]+1}], v112, s[44:47], s{88+s//2} offen offset:{2048*(s&1)} sc1")
            if not first:
                e(f"L_g{s}:")
    gather(True)
    def down(acc, va, vb, vo, wob):
        for s in range(4):
            e(f"ds_read_b64_tr_b16 v[{32+4*s}:{33+4*s}], v{va} offset:{4096*s}")
            e(f"ds_read_b64_tr_b16 v[{34+4*s}:{35+4*s}], v{va} offset:{4096*s+512}")
        e(f"ds_read_b64_tr_b16 v[64:65], v{vb}")
        e("s_waitcnt lgkmcnt(0)")
        for s in range(4):
            e(f"v_mfma_f32_16x16x32_bf16 v[{acc}:{acc+3}], v[{32+4*s}:{35+4*s}], v[{48+4*s}:{51+4*s}], v[{acc}:{acc+3}]")
        e(f"s_nop 5\nv_mfma_f32_16x16x16_bf16 v[{acc}:{acc+3}], v[64:65], v[66:67], v[{acc}:{acc+3}]")
        for s in range(4):
            e(f"ds_read_b64_tr_b16 v[{wob+4*s}:{wob+1+4*s}], v{vo} offset:{4096*s}")
            e(f"ds_read_b64_tr_b16 v[{wob+2+4*s}:{wob+3+4*s}], v{vo} offset:{4096*s+512}")
    for s in range(4):
        e(f"ds_read_b128 v[{48+4*s}:{51+4*s}], v3 offset:{HL+64*s}")
    e(f"ds_read_b64 v[66:67], v7 offset:{HL+256}")
    down(24, 4, 5, 6, 68)
    e("s_cmp_lg_u32 s96, 7\ns_cbranch_scc1 L_h1\ns_waitcnt lgkmcnt(0)")
    down(116, 100, 101, 102, 84)
    e("s_branch L_h1\nL_h1_again:\ns_mov_b32 s86, 0")
    if h1sleep:
        e(f"s_sleep {h1sleep}")
    for s in range(8):
        e(f"""v_xor_b32 v122, s94, v{P[s]}
v_bitop3_b32 v122, v122, v{P[s]+1}, s94 bitop3:0xf6
v_and_b32 v122, 0xff, v122
v_cmp_ne_u32 vcc, 0, v122
s_cmp_eq_u64 vcc, 0
s_cselect_b32 s84, {1 << s}, 0
s_or_b32 s86, s86, s84""")
    gather(False)
    e("""L_h1:
s_sub_u32 s83, s83, 1
s_cbranch_scc1 L_h1_done
s_waitcnt vmcnt(0)
v_xor_b32 v122, s94, v10
v_xor_b32 v123, s94, v11""")
    for r in list(range(12, 24)) + [120, 121]:
        e(f"v_bitop3_b32 v{122+(r&1)}, v{122+(r&1)}, v{r}, s94 bitop3:0xf6")
    e("""v_or_b32 v122, v122, v123
v_and_b32 v122, 0xff, v122
v_bitop3_b32 v122, v122, v126, s94 bitop3:0xf6
v_bitop3_b32 v122, v122, v127, s94 bitop3:0xf6
v_mov_b32 v8, v124
v_mov_b32 v9, v125
v_cmp_ne_u32 vcc, 0, v122
s_cbranch_vccnz L_h1_again
L_h1_done:""")
    stamp(6)
    e(f"""v_max_f32_dpp v122, v8, v8 quad_perm:[1,0,3,2] {DP}
s_nop 1
v_max_f32_dpp v122, v122, v122 quad_perm:[2,3,0,1] {DP}
s_nop 1
v_max_f32_dpp v122, v122, v122 row_half_mirror {DP}
v_sub_f32 v8, v8, v122
v_mul_f32 v8, s85, v8
v_exp_f32 v8, v8
s_nop 0
v_mul_f32 v9, v9, v8
s_nop 0
v_mul_f32_dpp v122, v8, v10 row_newbcast:0 {DP}
v_add_f32_dpp v9, v9, v9 quad_perm:[1,0,3,2] {DP}
v_mul_f32_dpp v123, v8, v11 row_newbcast:0 {DP}
v_fmac_f32_dpp v122, v8, v12 row_newbcast:1 {DP}
v_add_f32_dpp v9, v9, v9 quad_perm:[2,3,0,1] {DP}
v_fmac_f32_dpp v123, v8, v13 row_newbcast:1 {DP}
v_fmac_f32_dpp v122, v8, v14 row_newbcast:2 {DP}
v_add_f32_dpp v9, v9, v9 row_half_mirror {DP}
v_fmac_f32_dpp v123, v8, v15 row_newbcast:2 {DP}
v_rcp_f32 v9, v9""")
    for s in range(3, 8):
        e(f"v_fmac_f32_dpp v122, v8, v{P[s]} row_newbcast:{s} {DP}")
        e(f"v_fmac_f32_dpp v123, v8, v{P[s]+1} row_newbcast:{s} {DP}")
    e(f"""v_mul_f32 v122, v122, v9
v_mul_f32 v123, v123, v9
v_cvt_pk_bf16_f32 v122, v122, v123
ds_write_b32 v29, v122 offset:{OL}
s_waitcnt lgkmcnt(0)
s_barrier""")
    for s in range(4):
        e(f"ds_read_b128 v[{48+4*s}:{51+4*s}], v30 offset:{OL+64*s}")
    for s in range(4):
        e(f"s_waitcnt lgkmcnt({3-s})")
        e(f"v_mfma_f32_16x16x32_bf16 v[24:27], v[{68+4*s}:{71+4*s}], v[{48+4*s}:{51+4*s}], v[24:27]")
    e("s_cmp_lg_u32 s96, 7\ns_cbranch_scc1 L_y1")
    for s in range(4):
        e(f"v_mfma_f32_16x16x32_bf16 v[116:119], v[{84+4*s}:{87+4*s}], v[{48+4*s}:{51+4*s}], v[116:119]")
    e("s_nop 7")
    for r in range(4):
        e(f"v_bfi_b32 v{116+r}, s82, v115, v{116+r}")
    e("""s_mov_b64 exec, s[80:81]
buffer_store_dwordx4 v[116:119], v114, s[44:47], s87 offen sc1
s_mov_b64 exec, -1
L_y1:
s_nop 7""")
    for r in range(4):
        e(f"v_bfi_b32 v{24+r}, s82, v115, v{24+r}")
    e("""s_mov_b64 exec, s[80:81]
buffer_store_dwordx4 v[24:27], v114, s[44:47], s93 offen sc1
L_done:
s_mov_b64 exec, -1""")
    if stamps:
        e("s_waitcnt vmcnt(0)")
        stamp(7)
        e(f"""s_lshl_b32 s78, s2, 3
s_add_u32 s78, s78, s3
s_lshl_b32 s78, s78, 6
s_add_u32 s78, s78, {STAMP}
s_getreg_b32 s79, hwreg(HW_REG_XCC_ID, 0, 4)
v_mov_b32 v1, s78""")
        for k in range(8):
            e(f"v_mov_b32 v{4+k}, s{60+2*k}")
        e("""v_mov_b32 v12, s97
v_mov_b32 v13, s79
global_store_dwordx4 v1, v[4:7], s[26:27]
global_store_dwordx4 v1, v[8:11], s[26:27] offset:16
global_store_dwordx2 v1, v[12:13], s[26:27] offset:32""")
    if dstamp:
        e("s_waitcnt vmcnt(0)")
        stamp(7)
        e("s_not_b32 s60, s60\ns_lshr_b32 s78, s3, 2\ns_lshl_b32 s78, s78, 5\nv_mov_b32 v1, s78\ns_mov_b64 exec, 1")
        for k in range(8):
            e(f"v_mov_b32 v{4+k}, s{60+2*k}")
            e(f"global_atomic_umax v1, v{4+k}, s[24:25] offset:{4*k} sc1")
    e(f"""L_end:
s_endpgm
.section .rodata,"a"
.p2align 6
.amdhsa_kernel {KN}
  .amdhsa_next_free_vgpr {NV}
  .amdhsa_next_free_sgpr 98
  .amdhsa_accum_offset {(NV+3)//4*4}
  .amdhsa_group_segment_fixed_size 0
  .amdhsa_kernarg_size 96
  .amdhsa_user_sgpr_count 2
  .amdhsa_user_sgpr_kernarg_segment_ptr 1
  .amdhsa_system_sgpr_workgroup_id_x 1
  .amdhsa_float_denorm_mode_32 3
.end_amdhsa_kernel""")
    return HEADER + e.text()

if __name__ == "__main__":
    kw = eval("dict(%s)" % (sys.argv[1] if len(sys.argv) > 1 else ""))
    sys.stdout.write(gen(**kw))
```

```python
import sys
KN = "parallel_sum__mha_block_cached__geglu_ffn__decode_kernel"

PO = 0x20000
PM = 0xA0000
YW = 0xB0000
QW = 0x100000
GU = 0x180000
CW = 0x1A8000
EW = 0x1B0000
WS_SIZE = 0x1B0080
STAMP = 0x200000
XN = 0; HL = 5632; OL = 6912; CNT = 7936; QL = 8192
FT = 12288; WOT = 86016; WDT = 102400
LDS_SIZE = 120832

LOG2E = 0x3fb8aa3b
SCALE = 0x3db504f3
DP = "row_mask:0xf bank_mask:0xf"
OR_XOR = "bitop3:0xf6"

HEADER = """; Kernarg layout for this problem (96 bytes, ptrs only, base s[0:1]):
"""

class A:
    def __init__(self):
        self.o = []
    def __call__(self, s):
        for ln in s.strip("\n").split("\n"):
            ln = ln.strip()
            if ln:
                self.o.append(ln if ln.endswith(":") or ln.startswith((".", ";")) else "    " + ln)
    def text(self):
        return "\n".join(self.o) + "\n"

def gen(NB=4, S=24, wflag="nt", kvflag="nt", stamps=0, spin=1 << 20, thr=1, svcprio=1, svc0=3, hsleep=32,
        defer=0, bal=1, one=12, four=36, sh=0, cmax=8, sub=0, first=0, mix=0, mul=1, bare=0, drain=1, ad=0, k4=4, k2=2, c0=1, nocomp=0, noq=0, notail=0):
    e = A()
    NBK = NB // 2
    assert NB % 2 == 0 and S > NBK
    LIM = 256 - 8 * S
    def stamp(k):
        if stamps and not (bare & 16 and k in (1, 3, 4, 6)):
            e(f"s_memrealtime s[{60+2*k}:{61+2*k}]\ns_waitcnt lgkmcnt(0)")
    KB = 32
    NV = max(KB + NB * 32, 132)
    e(f"; @launch grid=(256,1,1) block=({256 if bare & 8 else 512},1,1) lds={LDS_SIZE}")
    e(f""".amdgcn_target "amdgcn-amd-amdhsa--gfx950"
.text
.globl {KN}
.p2align 8
.type {KN},@function
{KN}:
s_cmp_ge_u32 s2, 256
s_cbranch_scc1 L_end
s_load_dwordx16 s[4:19], s[0:1], 0
s_load_dwordx8 s[20:27], s[0:1], 64""")
    if stamps:
        for k in range(8):
            e(f"s_mov_b32 s{60+2*k}, 0")
        e("s_mov_b32 s97, 0")
    stamp(0)
    e("""v_lshrrev_b32 v1, 6, v0
v_and_b32 v0, 63, v0
v_readfirstlane_b32 s3, v1
s_and_b32 s48, s2, 7
s_lshr_b32 s49, s2, 3""")
    if bal == 0:
        e("""s_and_b32 s52, s49, 3
s_lshl_b32 s53, s48, 2
s_add_u32 s52, s52, s53
s_lshr_b32 s53, s2, 5
s_add_u32 s96, s48, s53
s_and_b32 s96, s96, 7
s_cmp_eq_u32 s96, 7
s_cselect_b32 s98, 1, 0""")
    else:
        e("""s_bfe_u32 s52, s49, 0x20001
s_lshl_b32 s53, s48, 2
s_add_u32 s52, s52, s53
s_lshr_b32 s53, s49, 3
s_lshl_b32 s53, s53, 1
s_add_u32 s96, s48, s53
s_and_b32 s96, s96, 7
s_and_b32 s78, s49, 1
s_add_u32 s53, s53, s78
s_lshl_b32 s79, 1, s96
s_and_b32 s79, s79, 0x90
s_cselect_b32 s98, 1, 0
s_andn2_b32 s98, s98, s78""")
    e(f"""v_lshlrev_b32 v1, 4, v0
s_mov_b32 s85, {LOG2E}
v_mov_b32 v8, {CNT}
v_mov_b32 v10, 0
v_mov_b32 v11, 0
v_mov_b32 v12, 0
v_mov_b32 v13, 0
s_cmp_lg_u32 s3, 0
s_cbranch_scc1 L_b0
ds_write_b128 v8, v[10:13]
ds_write_b128 v8, v[10:13] offset:16
L_b0:
s_waitcnt lgkmcnt(0)
s_mov_b32 s94, {EW}
{"" if bare & 2 else "s_load_dword s94, s[26:27], s94"}
s_mov_b32 s44, s26
s_mov_b32 s45, s27
s_mov_b32 s46, {WS_SIZE}
s_mov_b32 s47, 0x20000
s_cmp_ge_u32 s3, 4
s_cbranch_scc1 L_svc""")

    e(f"""s_add_u32 s56, s3, s48
s_and_b32 s56, s56, 3
s_lshl_b32 s58, s56, 5
s_add_u32 s58, s58, s49
s_lshl_b32 s59, s58, 21
s_add_u32 s28, s6, s59
s_addc_u32 s29, s7, 0
s_mov_b32 s30, {2<<20}
s_mov_b32 s31, 0x20000
s_add_u32 s32, s8, s59
s_addc_u32 s33, s9, 0
s_mov_b32 s34, {2<<20}
s_mov_b32 s35, 0x20000
s_and_b32 s50, s48, 1
{"s_mov_b32 s51, 0" if mix else "s_lshr_b32 s51, s48, 1"}
s_lshl_b32 s54, s50, 13
s_lshl_b32 s58, s58, 7
s_add_u32 s58, s58, {CW}
s_add_u32 s36, s26, s58
s_addc_u32 s37, s27, 0
{"" if bare & 1 else "s_barrier"}""")
    def issue_k(buf, so=76):
        for j in range(4):
            r = KB + buf * 32 + j * 4
            e(f"buffer_load_dwordx4 v[{r}:{r+3}], v1, s[28:31], s{so} offen offset:{j*1024} {kvflag}")
    def issue_v(buf, so=76):
        for j in range(4):
            r = KB + buf * 32 + 16 + j * 4
            e(f"buffer_load_dwordx4 v[{r}:{r+3}], v1, s[32:35], s{so} offen offset:{j*1024} {kvflag}")
    def static_next():
        if mix:
            e(f"""s_mul_i32 s76, s51, {mix}
s_add_u32 s76, s76, s48
s_and_b32 s76, s76, 7
s_lshl_b32 s77, s51, 3
s_add_u32 s76, s76, s77
s_lshl_b32 s76, s76, 13
s_add_u32 s77, s76, 4096
s_add_u32 s51, s51, 1""")
            return
        e("""s_lshl_b32 s76, s51, 14
s_add_u32 s76, s76, s54
s_add_u32 s77, s76, 4096
s_add_u32 s51, s51, 4""")
    for b in range(NB):
        if b % 2 == 0:
            static_next()
        issue_k(b, 76 + (b & 1)); issue_v(b, 76 + (b & 1))
    stamp(1)
    e(f"""s_lshl_b32 s78, s56, 2
v_mov_b32 v2, s78
v_and_b32 v3, 15, v0
v_lshlrev_b32 v3, 4, v3
s_lshl_b32 s78, s56, 8
v_add_u32 v3, s78, v3
s_mov_b32 s83, {spin}
{"s_branch L_q_ok" if bare & 4 else ""}
L_qw:
ds_read_b32 v8, v2 offset:{CNT+16}
ds_read_b128 v[4:7], v3 offset:{QL}
s_sub_u32 s83, s83, 1
s_cbranch_scc1 L_q_ok
s_waitcnt lgkmcnt(0)
v_cmp_eq_u32 vcc, 0, v8
{"" if noq else "s_cbranch_vccnz L_qw"}
L_q_ok:
s_waitcnt lgkmcnt(0)
s_add_u32 s94, s94, 1""")
    stamp(3)
    for r in range(8, 16):
        e(f"v_mov_b32 v{r}, 0")
    e(f"""v_mov_b32 v16, 0xff7fffff
v_mov_b32 v17, 0
s_mov_b32 s84, {SCALE}
s_mov_b32 s86, 0xffff0000
s_mov_b32 s87, {S - NBK}
s_mov_b32 s88, {NB}
s_mov_b32 s89, 0
s_mov_b32 s77, 0
s_mov_b32 s55, {first}
s_mov_b32 s59, {c0}
s_mov_b32 s58, 0
s_mov_b32 s99, 31
s_and_b32 s95, s94, 0xffff""")

    nw = [0]
    def tile(buf, last=False):
        k = KB + buf * 32
        v = k + 16
        def wait(extra):
            if not last:
                e(f"s_waitcnt vmcnt({8*NB-4})")
                return
            n = nw[0]; nw[0] += 1
            for j in range(NB - 1, 0, -1):
                e(f"s_cmp_lg_u32 s88, {j}\ns_cbranch_scc1 L_w{n}_{j}\ns_waitcnt vmcnt({8*j+extra})\ns_branch L_w{n}\nL_w{n}_{j}:")
            e(f"s_waitcnt vmcnt({extra})\nL_w{n}:")
        wait(4)
        if nocomp:
            if not last:
                issue_k(buf)
            wait(0)
            if not last:
                issue_v(buf)
            return
        for j in range(4):
            e(f"v_dot2_f32_bf16 v{18+j}, v{k+4*j}, v4, 0")
        for i in range(1, 4):
            for j in range(4):
                e(f"v_dot2c_f32_bf16 v{18+j}, v{k+4*j+i}, v{4+i}")
        if last:
            e("s_nop 1")
        else:
            issue_k(buf)
        e(f"""v_add_f32_dpp v22, v18, v18 row_ror:8 row_mask:0xf bank_mask:0x3
v_add_f32_dpp v23, v20, v20 row_ror:8 row_mask:0xf bank_mask:0x3
v_add_f32_dpp v22, v19, v19 row_ror:8 row_mask:0xf bank_mask:0xc
v_add_f32_dpp v23, v21, v21 row_ror:8 row_mask:0xf bank_mask:0xc
s_nop 0
v_add_f32_dpp v24, v22, v22 row_half_mirror row_mask:0xf bank_mask:0x5
v_add_f32_dpp v24, v23, v23 row_half_mirror row_mask:0xf bank_mask:0xa
s_nop 1
v_add_f32_dpp v24, v24, v24 quad_perm:[1,0,3,2] {DP}
s_nop 1
v_add_f32_dpp v24, v24, v24 quad_perm:[2,3,0,1] {DP}
v_cvt_pk_bf16_f32 v24, v24, v24
v_and_b32 v24, s86, v24
v_mul_f32 v24, s84, v24
v_cvt_pk_bf16_f32 v24, v24, v24
v_and_b32 v24, s86, v24
s_nop 1
v_max_f32_dpp v25, v24, v24 row_ror:8 {DP}
s_nop 1
v_max_f32_dpp v25, v25, v25 row_ror:4 {DP}
v_max_f32 v25, v16, v25
v_sub_f32 v24, v24, v25
v_sub_f32 v26, v16, v25
v_mul_f32 v24, s85, v24
v_mul_f32 v26, s85, v26
v_exp_f32 v24, v24
v_exp_f32 v26, v26
v_mov_b32 v16, v25
v_cvt_pk_bf16_f32 v27, v24, 0
v_fma_f32 v17, v17, v26, v24
v_lshlrev_b32 v28, 16, v27""")
        for r in range(8, 16):
            e(f"v_mul_f32 v{r}, v26, v{r}")
        wait(0)
        for j in range(4):
            ln = (0, 8, 4, 12)[j]
            for i in range(4):
                e(f"v_dot2c_f32_bf16_dpp v{8+2*i}, v27, v{v+4*j+i} row_newbcast:{ln} {DP}")
                e(f"v_dot2c_f32_bf16_dpp v{9+2*i}, v28, v{v+4*j+i} row_newbcast:{ln} {DP}")
        if not last:
            issue_v(buf)
    e("L_loop:")
    for u in range(NB):
        e(f"""s_cmp_eq_u32 s77, 0
s_cbranch_scc1 L_need{u}
L_have{u}:
s_sub_u32 s77, s77, 1
s_lshr_b32 s76, s57, 1
s_lshl_b32 s76, s76, 2
s_and_b32 s92, s57, 1
s_add_u32 s76, s76, s92
s_lshl_b32 s76, s76, 12
s_add_u32 s76, s76, s54
s_add_u32 s57, s57, 1
L_go{u}:""")
        tile(u)
        if drain:
            if u == NB - 1:
                e("s_branch L_loop")
        elif u < NB - 1:
            e("s_cmp_eq_u32 s88, 0\ns_cbranch_scc1 L_sdone")
        else:
            e("s_cmp_lg_u32 s88, 0\ns_cbranch_scc1 L_loop\ns_branch L_sdone")
    fixed = f"s_mul_i32 s91, s91, {mul}\ns_add_u32 s55, s55, s91"
    adapt = f"""s_sub_u32 s92, s55, s58
s_lshr_b32 s92, s92, s99
s_cmp_eq_u32 s99, 31
s_cselect_b32 s92, 5, s92
s_max_u32 s92, s92, 2
s_mov_b32 s58, s55
s_mov_b32 s99, s59
s_lshl_b32 s91, s92, s59
s_add_u32 s91, s91, s55
s_sub_i32 s91, {LIM}, s91
s_mul_i32 s93, s92, {k2}
s_cmp_ge_i32 s91, s93
s_cselect_b32 s59, 1, 0
s_mul_i32 s93, s92, {k4}
s_cmp_ge_i32 s91, s93
s_cselect_b32 s59, 2, s59"""
    plain = "s_lshl_b32 s57, s51, 1\ns_add_u32 s51, s51, 4"
    mixs = f"""s_mul_i32 s57, s51, {mix}
s_add_u32 s57, s57, s48
s_and_b32 s54, s57, 1
s_lshl_b32 s54, s54, 13
s_and_b32 s57, s57, 6
s_lshl_b32 s92, s51, 3
s_add_u32 s57, s57, s92
s_add_u32 s51, s51, 1"""
    for u in range(NB):
        e(f"""L_need{u}:
s_cmp_eq_u32 s87, 0
s_cbranch_scc1 L_dyn{u}
s_sub_u32 s87, s87, 1
{mixs if mix else plain}
s_mov_b32 s77, 2
s_cmp_lg_u32 s87, 0
s_cbranch_scc1 L_have{u}
v_mov_b32 v29, {CNT}
v_mov_b32 v30, 1
ds_write_b32 v29, v30 offset:8
s_mov_b32 s83, {spin}""")
        stamp(6)
        if LIM == 0:
            e("s_mov_b32 s89, 2")
        e(f"""s_branch L_have{u}
L_dyn{u}:
s_cmp_eq_u32 s89, 2
s_cbranch_scc1 L_none{u}
L_early{u}:
s_sub_u32 s83, s83, 1
s_cbranch_scc1 L_fin{u}
""")
        if ad:
            e("s_lshl_b32 s91, 1, s59")
        elif sh:
            assert LIM + 8 * cmax + 16 < 256
            e(f"s_sub_u32 s91, {LIM - sub}, s55\ns_ashr_i32 s91, s91, {sh}\ns_min_i32 s91, s91, {cmax}\ns_max_i32 s91, s91, 1")
        else:
            e(f"s_cmp_lt_u32 s55, {max(LIM - one, 0)}\ns_cselect_b32 s91, 2, 1")
            if four:
                e(f"s_cmp_lt_u32 s55, {four}\ns_cselect_b32 s91, 4, s91")
        e(f"""s_lshl_b32 s93, s50, 3
s_lshl_b32 s90, s91, s93
s_atomic_add s90, s[36:37], 0 glc
s_waitcnt lgkmcnt(0)
s_lshr_b32 s92, s90, 16
s_cmp_lg_u32 s92, s95
s_cbranch_scc1 L_early{u}
s_lshr_b32 s55, s90, s93
s_and_b32 s55, s55, 0xff
s_cmp_lt_u32 s55, {LIM}
s_cbranch_scc1 L_got{u}
s_cmp_eq_u32 s89, 1
s_cbranch_scc1 L_fin{u}
s_xor_b32 s93, s93, 8
s_lshr_b32 s55, s90, s93
s_and_b32 s55, s55, 0xff
s_cmp_ge_u32 s55, {max(LIM - thr + 1, 0)}
s_cbranch_scc1 L_fin{u}
s_mov_b32 s89, 1
s_mov_b32 s59, 0
s_mov_b32 s99, 31
s_xor_b32 s50, s50, 1
s_xor_b32 s54, s54, 0x2000
s_branch L_early{u}
L_fin{u}:
s_mov_b32 s89, 2
L_none{u}:
s_mov_b32 s76, 0x400000
{"" if drain else "s_sub_u32 s88, s88, 1"}
s_branch {"L_dr" if drain else "L_go"}{u}
L_got{u}:
s_lshl_b32 s54, s50, 13
s_sub_u32 s77, {LIM}, s55
s_min_u32 s77, s77, s91
s_add_u32 s57, s55, {8*S}
{adapt if ad else fixed}""")
        if stamps:
            e("s_add_u32 s97, s97, s77")
        e(f"s_branch L_have{u}")
    if drain:
        for u in range(NB):
            e(f"L_dr{u}:\ns_sub_u32 s88, s88, 1")
            tile(u, True)
            e("s_cmp_eq_u32 s88, 0\ns_cbranch_scc1 L_sdone" if u < NB - 1 else "s_cmp_lg_u32 s88, 0\ns_cbranch_scc1 L_dr0")
    e("L_sdone:")
    stamp(5)
    e(f"""v_mov_b32 v18, v16
v_mov_b32 v19, v16
s_lshl_b32 s78, s2, 11
s_lshl_b32 s79, s56, 9
v_permlane16_swap_b32 v18, v19
s_add_u32 s78, s78, s79
v_max_f32 v18, v18, v19
v_mov_b32 v19, v18
s_add_u32 s78, s78, {PO}
s_lshl_b32 s79, s2, 6
v_permlane32_swap_b32 v18, v19
s_lshl_b32 s80, s56, 4
v_max_f32 v18, v18, v19
v_sub_f32 v20, v16, v18
v_mul_f32 v20, s85, v20
v_exp_f32 v20, v20
s_add_u32 s79, s79, s80
v_mul_f32 v17, v17, v20""")
    for r in range(8, 16):
        e(f"v_mul_f32 v{r}, v20, v{r}")
    e(f"""v_add_f32_dpp v17, v17, v17 row_ror:8 {DP}
s_add_u32 s79, s79, {PM}
v_permlane32_swap_b32 v8, v12
v_permlane32_swap_b32 v9, v13
v_add_f32_dpp v17, v17, v17 row_ror:4 {DP}
v_permlane32_swap_b32 v10, v14
v_permlane32_swap_b32 v11, v15
v_mov_b32 v19, v17
v_add_f32 v8, v8, v12
v_add_f32 v9, v9, v13
v_add_f32 v10, v10, v14
v_add_f32 v11, v11, v15
v_permlane16_swap_b32 v17, v19
v_mov_b32 v20, s94
v_permlane16_swap_b32 v8, v10
v_permlane16_swap_b32 v9, v11
v_add_f32 v17, v17, v19
v_add_f32 v8, v8, v10
v_mov_b32 v19, v17
v_add_f32 v9, v9, v11
s_movk_i32 s80, 0xff
v_permlane32_swap_b32 v17, v19
v_lshlrev_b32 v22, 3, v0
v_bfi_b32 v8, s80, v20, v8
v_bfi_b32 v9, s80, v20, v9
v_add_f32 v19, v17, v19
buffer_store_dwordx2 v[8:9], v22, s[44:47], s78 offen sc1
v_mov_b32 v21, s94
s_mov_b64 exec, 1
buffer_store_dwordx4 v[18:21], v1, s[44:47], s79 offen sc1
s_mov_b64 exec, -1
s_barrier""")
    e(f"""s_cmp_ge_u32 s3, {0 if notail else 2}
s_cbranch_scc1 L_bar_done
s_cmp_eq_u32 s3, 0
s_cbranch_scc1 L_red
s_cmp_eq_u32 s98, 0
s_cbranch_scc1 L_bar_done
s_mov_b32 s53, 8
L_red:
s_bfe_u32 s78, s52, 0x20001
s_mul_i32 s78, s78, 1152
s_lshr_b32 s79, s52, 3
s_lshl_b32 s79, s79, 5
s_add_u32 s78, s78, s79
s_and_b32 s79, s52, 1
s_lshl_b32 s79, s79, 4
s_add_u32 s78, s78, s79
s_lshl_b32 s79, s53, 7
s_add_u32 s78, s78, s79
v_and_b32 v9, 1, v0
v_lshlrev_b32 v10, 3, v9
s_mov_b32 s28, s4
s_mov_b32 s29, s5
s_mov_b32 s30, 4608
s_mov_b32 s31, 0x20000
buffer_load_dwordx2 v[16:17], v10, s[28:31], s78 offen
s_mov_b32 s40, s22
s_mov_b32 s41, s23
s_mov_b32 s42, 4608
s_mov_b32 s43, 0x20000
v_lshrrev_b32 v8, 1, v0
v_lshlrev_b32 v8, 10, v8
v_lshl_add_u32 v8, v9, 4, v8
s_lshl_b32 s79, s53, 15
s_lshl_b32 s80, s52, 5
s_add_u32 s79, s79, s80
s_add_u32 s79, s79, {YW}
s_mov_b32 s83, {spin}
s_barrier
L_h2:
buffer_load_dwordx4 v[12:15], v8, s[44:47], s79 offen sc1
s_sub_u32 s83, s83, 1
s_cbranch_scc1 L_h2_done
s_waitcnt vmcnt(0)
v_xor_b32 v20, s94, v12
v_bitop3_b32 v20, v20, v13, s94 {OR_XOR}
v_bitop3_b32 v20, v20, v14, s94 {OR_XOR}
v_bitop3_b32 v20, v20, v15, s94 {OR_XOR}
v_and_b32 v20, 0xff, v20
v_cmp_ne_u32 vcc, 0, v20
s_and_b64 exec, exec, vcc
s_cbranch_execnz L_h2
L_h2_done:
s_mov_b64 exec, -1
s_waitcnt vmcnt(0)""")
    for dpp in ("quad_perm:[2,3,0,1]", "row_ror:4", "row_ror:8"):
        for r in range(12, 16):
            e(f"v_add_f32_dpp v{r}, v{r}, v{r} {dpp} {DP}")
    for sw in (16, 32):
        for r in range(4):
            e(f"v_mov_b32 v{20+r}, v{12+r}")
        for r in range(4):
            e(f"v_permlane{sw}_swap_b32 v{12+r}, v{20+r}")
        for r in range(4):
            e(f"v_add_f32 v{12+r}, v{12+r}, v{20+r}")
    e(f"""v_lshlrev_b32 v20, 16, v16
v_and_b32 v21, 0xffff0000, v16
v_lshlrev_b32 v22, 16, v17
v_and_b32 v23, 0xffff0000, v17
v_add_f32 v12, v12, v20
v_add_f32 v13, v13, v21
v_add_f32 v14, v14, v22
v_add_f32 v15, v15, v23
v_cvt_pk_bf16_f32 v12, v12, v13
v_cvt_pk_bf16_f32 v13, v14, v15
s_mov_b64 exec, 3
buffer_store_dwordx2 v[12:13], v10, s[40:43], s78 offen
s_add_u32 s78, s2, s3
s_cmp_lg_u32 s78, 0
s_cbranch_scc1 L_done
v_mov_b32 v12, s94
v_mov_b32 v13, {EW}
s_mov_b64 exec, 1
buffer_store_dword v12, v13, s[44:47], 0 offen sc1
s_branch L_done
L_bar_done:
s_barrier
s_branch L_done""")

    def srd(ptr, nbytes):
        e(f"s_mov_b32 s40, s{ptr}\ns_mov_b32 s41, s{ptr+1}\ns_mov_b32 s42, {nbytes}\ns_mov_b32 s43, 0x20000")
    def dma(n_ins, step, ldsbase, vreg):
        for n in range(n_ins):
            e(f"s_add_u32 m0, s79, {ldsbase + 1024*n}")
            e(f"s_add_u32 s78, s78, {step}" if n else "s_nop 0")
            e(f"buffer_load_dwordx4 v{vreg}, s[40:43], s78 offen {wflag} lds")
    def proj_tiles(stripe_sreg, wo_base, wd_base):
        srd(12, 4096 * 1152)
        e(f"""s_lshl_b32 s81, s{stripe_sreg}, 7
s_mul_i32 s78, s52, {128*1152}
s_add_u32 s78, s78, s81
s_mul_i32 s79, s56, {32*1152}
s_add_u32 s78, s78, s79
s_lshl_b32 s79, s56, 12""")
        dma(4, 8 * 1152, wo_base, 31)
        srd(20, 4608 * 1152)
        e(f"""s_mul_i32 s78, s52, {144*1152}
s_add_u32 s78, s78, s81
s_mul_i32 s79, s57, {8*1152}
s_add_u32 s78, s78, s79
s_lshl_b32 s79, s57, 10""")
        dma(5, 8 * 1152, wd_base, 31)
    npj = [0]
    def all_proj():
        n = npj[0]; npj[0] += 1
        proj_tiles(53, WOT, WDT)
        e(f"s_cmp_eq_u32 s98, 0\ns_cbranch_scc1 L_pj{n}\ns_mov_b32 s80, 8")
        proj_tiles(80, FT, FT + 16384)
        e(f"L_pj{n}:")
    def pick_batch(d, a):
        e(f"""v_cndmask_b32 v{a}, v{a}, v{a+1}, s[38:39]
v_cndmask_b32 v{a+2}, v{a+2}, v{a+3}, s[38:39]
v_cndmask_b32 v{d}, v{a}, v{a+2}, s[58:59]""")
    qn = [0]
    def qfetch():
        n = qn[0]; qn[0] += 1
        e(f"""v_lshrrev_b32 v14, 3, v0
v_lshlrev_b32 v14, 8, v14
v_and_b32 v15, 7, v0
v_lshl_add_u32 v14, v15, 3, v14
s_lshl_b32 s88, s56, 6
s_lshl_b32 s89, s49, 11
s_add_u32 s88, s88, s89
s_add_u32 s88, s88, {QW}
s_lshl_b32 s89, s56, 8
v_lshl_add_u32 v3, v0, 2, s89
s_lshl_b32 s89, s56, 2
v_mov_b32 v2, s89
s_mov_b32 s83, {spin}
L_q_again{n}:
buffer_load_dwordx2 v[16:17], v14, s[44:47], s88 offen sc1
s_sub_u32 s83, s83, 1
s_cbranch_scc1 L_q_got{n}
s_waitcnt vmcnt(0)
v_xor_b32 v15, s94, v16
v_bitop3_b32 v15, v15, v17, s94 {OR_XOR}
v_and_b32 v15, 0xffff, v15
v_cmp_ne_u32 vcc, 0, v15
s_and_b64 exec, exec, vcc
s_cbranch_execnz L_q_again{n}
L_q_got{n}:
s_mov_b64 exec, -1
s_mov_b32 s89, 0x07060302
v_perm_b32 v16, v17, v16, s89
v_mov_b32 v15, 1
ds_write_b32 v3, v16 offset:{QL}
ds_write_b32 v2, v15 offset:{CNT+16}
s_setprio {svcprio}""")
        stamp(4)
    if bare & 1:
        e("L_svc:\ns_endpgm\nL_svc_x:")
    e(f"""{"" if bare & 1 else "L_svc:"}
s_setprio {svc0}
s_sub_u32 s56, s3, 4
s_mul_i32 s57, s56, 9
s_lshr_b32 s57, s57, 1
v_lshrrev_b32 v8, 3, v0
v_and_b32 v10, 7, v0
v_lshlrev_b32 v10, 4, v10
v_mul_u32_u24 v31, 1152, v8
v_add_u32 v31, v31, v10
s_mov_b32 s58, 0
s_mov_b32 s59, -1
s_sub_u32 s78, s96, 5
s_cmp_lt_u32 s78, 2
s_cbranch_scc1 L_tq
s_and_b32 s78, s49, 1
s_add_u32 s78, s78, 4
s_cmp_ge_u32 s96, s78
s_cbranch_scc1 L_notask
s_mul_i32 s80, s49, 9
s_lshr_b32 s80, s80, 1
s_add_u32 s80, s80, s96
s_lshl_b32 s51, s80, 10
s_add_u32 s51, s51, {GU}
s_cmp_ge_u32 s80, 72
s_cselect_b32 s40, s18, s16
s_cselect_b32 s41, s19, s17
s_cselect_b32 s78, 72, 0
s_mov_b32 s42, {576*9216}
s_sub_u32 s80, s80, s78
s_movk_i32 s50, 9216
s_branch L_task
L_tq:
s_lshl_b32 s80, s49, 1
s_add_u32 s80, s80, s78
s_lshl_b32 s51, s80, 10
s_add_u32 s51, s51, {QW}
s_mov_b32 s40, s10
s_mov_b32 s41, s11
s_mov_b32 s42, {576*8192}
s_movk_i32 s50, 8192
L_task:
s_mov_b32 s43, 0x20000
s_mul_i32 s36, s56, 1152
s_add_u32 s36, s4, s36
s_addc_u32 s37, s5, 0
s_mov_b32 s38, 1152
s_mov_b32 s39, 0x20000
v_lshlrev_b32 v7, 2, v0""")
    for j in range(5):
        e(f"buffer_load_dword v{2+j}, v7, s[36:39], 0 offen offset:{256*j}")
    e(f"""v_mul_u32_u24 v8, s50, v8
v_add_u32 v8, v8, v10
s_lshl_b32 s78, s80, 7
s_mul_i32 s79, s56, 144
s_mul_i32 s79, s79, s50
s_add_u32 s78, s78, s79
s_lshl_b32 s82, s50, 3
s_lshl_b32 s79, s56, 8
s_add_u32 s51, s51, s79
s_mul_i32 s79, s56, {18*1024}""")
    dma(18, "s82", FT, 8)
    e("s_barrier\ns_waitcnt vmcnt(18)")
    def wave_sum(r, t):
        for k in (8, 4, 2, 1):
            e(f"s_nop 1\nv_add_f32_dpp v{r}, v{r}, v{r} row_ror:{k} {DP}")
        for sw in (16, 32):
            e(f"v_mov_b32 v{t}, v{r}\ns_nop 1\nv_permlane{sw}_swap_b32 v{r}, v{t}\ns_nop 0\nv_add_f32 v{r}, v{r}, v{t}")
    def rbf(d, s):
        e(f"v_cvt_pk_bf16_f32 v{d}, v{s}, v{s}\nv_and_b32 v{d}, 0xffff0000, v{d}")
    for j in range(5):
        e(f"v_lshlrev_b32 v{10+2*j}, 16, v{2+j}\nv_and_b32 v{11+2*j}, 0xffff0000, v{2+j}")
    e("v_add_f32 v20, v10, v11")
    for j in range(12, 20):
        e(f"v_add_f32 v20, v20, v{j}")
    wave_sum(20, 21)
    e("v_mul_f32 v20, 0x3ae38e39, v20")
    e("v_cmp_gt_u32 vcc, 32, v0")
    for j in range(10):
        e(f"v_sub_f32 v{22+j if j < 8 else 2+j-8}, v{10+j}, v20")
    e("v_cndmask_b32 v2, 0, v2, vcc\nv_cndmask_b32 v3, 0, v3, vcc")
    e("v_mul_f32 v21, v2, v2\nv_fmac_f32 v21, v3, v3")
    for j in range(8):
        e(f"v_fmac_f32 v21, v{22+j}, v{22+j}")
    wave_sum(21, 22)
    e("v_mul_f32 v21, 0x3ae38e39, v21")
    rbf(21, 21)
    e("v_add_f32 v21, 0x3727c5ac, v21")
    rbf(21, 21)
    e("v_sqrt_f32 v21, v21\ns_nop 0")
    rbf(21, 21)
    e("v_rcp_f32 v21, v21")
    rbf(20, 20)
    for j in range(10):
        e(f"v_sub_f32 v{10+j}, v{10+j}, v20")
    for j in range(5):
        e(f"v_cvt_pk_bf16_f32 v{2+j}, v{10+2*j}, v{11+2*j}")
    for j in range(5):
        e(f"v_lshlrev_b32 v{10+2*j}, 16, v{2+j}\nv_and_b32 v{11+2*j}, 0xffff0000, v{2+j}")
    for j in range(10):
        e(f"v_mul_f32 v{10+j}, v{10+j}, v21")
    for j in range(5):
        e(f"v_cvt_pk_bf16_f32 v{2+j}, v{10+2*j}, v{11+2*j}")
    e("s_mul_i32 s78, s56, 1152\nv_add_u32 v7, s78, v7")
    for j in range(4):
        e(f"ds_write_b32 v7, v{2+j} offset:{XN+256*j}")
    e(f"s_mov_b64 exec, 0xffffffff\nds_write_b32 v7, v6 offset:{XN+1024}\ns_mov_b64 exec, -1")
    e(f"""v_lshrrev_b32 v8, 4, v0
v_lshlrev_b32 v9, 4, v8
v_lshlrev_b32 v8, 3, v8
v_bfe_u32 v10, v0, 2, 2
v_add_u32 v8, v8, v10
v_lshlrev_b32 v8, 7, v8
v_and_b32 v10, 3, v0
v_lshl_add_u32 v8, v10, 3, v8
v_mul_u32_u24 v10, 1152, v10
v_add_u32 v9, v9, v10
s_lshl_b32 s78, s56, 5
s_add_u32 s78, s78, {FT}
v_add_u32 v11, s78, v8
v_add_u32 v12, {9*4096}, v11
v_lshlrev_b32 v13, 2, v0""")
    for r in range(16, 20):
        e(f"v_mov_b32 v{r}, 0")
    e(f"""v_mov_b32 v29, {CNT}
v_mov_b32 v30, 1
s_mov_b32 s83, {spin}
s_waitcnt vmcnt(0) lgkmcnt(0)
s_add_u32 s94, s94, 1
s_mov_b32 s38, 0xffff0000
s_mov_b32 s39, 0xffff0000
s_mov_b64 exec, 1
ds_add_u32 v29, v30
s_mov_b64 exec, -1
L_wxn:
ds_read_b32 v30, v29
s_sub_u32 s83, s83, 1
s_cbranch_scc1 L_wxn_ok
s_waitcnt lgkmcnt(0)
v_cmp_gt_u32 vcc, 4, v30
s_cbranch_vccnz L_wxn
L_wxn_ok:
s_waitcnt lgkmcnt(0)""")
    stamp(1)
    def rd(s):
        base = 32 + (s % 5) * 8
        e(f"ds_read_b128 v[{base}:{base+3}], v9 offset:{XN+64*s}")
        sg, so = divmod(s, 9)
        e(f"ds_read_b64_tr_b16 v[{base+4}:{base+5}], v{11+sg} offset:{4096*so}")
        e(f"ds_read_b64_tr_b16 v[{base+6}:{base+7}], v{11+sg} offset:{4096*so+512}")
    for s in range(4):
        rd(s)
    for s in range(18):
        e(f"s_waitcnt lgkmcnt({min(3, 17-s)*3})")
        base = 32 + (s % 5) * 8
        e(f"v_mfma_f32_16x16x32_bf16 v[16:19], v[{base}:{base+3}], v[{base+4}:{base+7}], v[16:19]")
        if s + 4 < 18:
            rd(s + 4)
    e("v_mov_b32 v21, s94\ns_mov_b32 s78, 0x07060100\ns_nop 5")
    pick_batch(20, 16)
    e("""v_cvt_pk_bf16_f32 v20, v20, v20
v_perm_b32 v20, v20, v21, s78
buffer_store_dword v20, v13, s[44:47], s51 offen sc1""")
    stamp(2)
    qfetch()
    if not defer:
        proj_tiles(53, WOT, WDT)
    e("s_branch L_tick\nL_notask:")
    if not defer:
        all_proj()
    e("s_barrier\ns_waitcnt lgkmcnt(0)\ns_add_u32 s94, s94, 1\ns_mov_b32 s38, 0xffff0000\ns_mov_b32 s39, 0xffff0000")
    qfetch()
    e(f"""L_tick:
s_cmp_lg_u32 s56, 3
s_cbranch_scc1 L_gu
s_cmp_ge_u32 s2, 128
s_cbranch_scc1 L_gu
s_lshl_b32 s79, s94, 16
v_mov_b32 v3, s79
v_lshlrev_b32 v2, 2, v0
s_mov_b64 exec, 0xffffffff
s_lshl_b32 s79, s2, 7
s_add_u32 s79, s79, {CW}
buffer_store_dword v3, v2, s[44:47], s79 offen sc1
s_mov_b64 exec, -1""")
    e(f"""L_gu:
v_min_u32 v8, 35, v0
v_lshrrev_b32 v9, 2, v8
v_lshlrev_b32 v9, 8, v9
v_and_b32 v24, 3, v8
v_lshl_add_u32 v24, v24, 4, v9
v_lshlrev_b32 v26, 3, v8
s_mul_i32 s78, s56, 288
v_add_u32 v26, s78, v26
s_mul_i32 s78, s52, 2304
s_lshl_b32 s79, s56, 6
s_add_u32 s78, s78, s79
s_add_u32 s78, s78, {GU}
s_add_u32 s79, s78, 73728
v_mov_b32 v29, {CNT}
s_mov_b32 s83, {spin}
L_late:
s_sleep {hsleep}
ds_read_b32 v30, v29 offset:8
s_sub_u32 s83, s83, 1
s_cbranch_scc1 L_late_ok
s_waitcnt lgkmcnt(0)
v_cmp_eq_u32 vcc, 0, v30
s_cbranch_vccnz L_late
L_late_ok:
s_waitcnt lgkmcnt(0)
s_mov_b32 s83, {spin}
L_ph:
buffer_load_dwordx4 v[32:35], v24, s[44:47], s78 offen sc1
buffer_load_dwordx4 v[36:39], v24, s[44:47], s79 offen sc1
s_sub_u32 s83, s83, 1
s_cbranch_scc1 L_ph_done
s_waitcnt vmcnt(0)
v_xor_b32 v8, s94, v32""")
    for r in range(33, 40):
        e(f"v_bitop3_b32 v8, v8, v{r}, s94 {OR_XOR}")
    e("""v_and_b32 v8, 0xffff, v8
v_cmp_ne_u32 vcc, 0, v8
s_cbranch_vccnz L_ph
L_ph_done:
s_waitcnt vmcnt(0)""")
    for r in range(32, 40):
        e(f"v_and_b32 v{r}, 0xffff0000, v{r}")
    e("s_mov_b32 s78, 0x3d372713\ns_mov_b32 s79, 0xc0135761")
    for r in range(4):
        g = 32 + r; t = 40 + r
        e(f"""v_mul_f32 v{t}, v{g}, v{g}
v_mul_f32 v{t}, v{t}, v{g}
v_fma_f32 v{t}, v{t}, s78, v{g}
v_mul_f32 v{t}, s79, v{t}
v_exp_f32 v{t}, v{t}
s_nop 0
v_add_f32 v{t}, 1.0, v{t}
v_rcp_f32 v{t}, v{t}
s_nop 0
v_mul_f32 v{t}, v{t}, v{g}""")
        rbf(t, t)
        e(f"v_mul_f32 v{t}, v{t}, v{36+r}")
    e(f"""v_cvt_pk_bf16_f32 v16, v40, v41
v_cvt_pk_bf16_f32 v17, v42, v43
ds_write_b64 v26, v[16:17] offset:{HL}""")
    stamp(3)
    e(f"""v_lshrrev_b32 v8, 4, v0
v_bfe_u32 v10, v0, 2, 2
v_lshl_add_u32 v11, v8, 2, v10
v_lshl_add_u32 v10, v8, 3, v10
v_lshlrev_b32 v10, 7, v10
v_lshlrev_b32 v11, 7, v11
v_and_b32 v12, 3, v0
v_lshlrev_b32 v13, 3, v12
s_lshl_b32 s78, s56, 5
v_add3_u32 v10, v10, v13, s78
v_add3_u32 v11, v11, v13, s78
v_add_u32 v4, {WDT}, v10
v_add_u32 v5, {WDT+128*128}, v11
v_add_u32 v6, {WOT}, v10
v_add_u32 v100, {FT+16384}, v10
v_add_u32 v101, {FT+16384+128*128}, v11
v_add_u32 v102, {FT}, v10
v_mul_u32_u24 v13, 288, v12
v_lshl_add_u32 v7, v8, 3, v13
v_lshl_add_u32 v3, v8, 4, v13
v_lshlrev_b32 v12, 8, v12
v_lshl_add_u32 v30, v8, 4, v12
s_lshl_b32 s79, s56, 9
v_lshl_add_u32 v112, v0, 3, s79
v_and_b32 v113, 7, v0
v_lshlrev_b32 v113, 6, v113
s_lshl_b32 s79, s56, 4
v_add_u32 v113, s79, v113
s_lshl_b32 s88, s52, 14
s_add_u32 s88, s88, {PO}
s_add_u32 s89, s88, 4096
s_add_u32 s90, s88, 8192
s_add_u32 s91, s88, 12288
s_lshl_b32 s92, s52, 9
s_add_u32 s92, s92, {PM}
v_and_b32 v29, 15, v0
v_lshlrev_b32 v29, 4, v29
v_lshl_add_u32 v29, v8, 2, v29
s_lshl_b32 s79, s56, 8
v_add_u32 v29, s79, v29
v_lshlrev_b32 v114, 2, v0
s_lshl_b32 s93, s52, 10
s_add_u32 s93, s93, s79
s_add_u32 s93, s93, {YW}
s_add_u32 s87, s93, {8*32768}
s_lshl_b32 s79, s53, 15
s_add_u32 s93, s93, s79
s_movk_i32 s82, 0xff
v_mov_b32 v115, s94""")
    for r in list(range(24, 28)) + list(range(116, 120)):
        e(f"v_mov_b32 v{r}, 0")
    e(f"""s_mov_b32 s83, {spin}
s_waitcnt vmcnt(0) lgkmcnt(0)
s_barrier""")
    stamp(5)
    if notail:
        e("s_barrier\ns_branch L_done")
    P = [10 + 2 * s if s < 7 else 120 for s in range(8)]
    def gather(first):
        e("buffer_load_dwordx4 v[124:127], v113, s[44:47], s92 offen sc1")
        for s in range(8):
            if not first:
                e(f"s_bitcmp1_b32 s86, {s}\ns_cbranch_scc1 L_g{s}")
            e(f"buffer_load_dwordx2 v[{P[s]}:{P[s]+1}], v112, s[44:47], s{88+s//2} offen offset:{2048*(s&1)} sc1")
            if not first:
                e(f"L_g{s}:")
    def hid_frags():
        for s in range(4):
            e(f"ds_read_b128 v[{48+4*s}:{51+4*s}], v3 offset:{HL+64*s}")
        e(f"ds_read_b64 v[66:67], v7 offset:{HL+256}")
    def wd_frags(va, vb):
        for s in range(4):
            e(f"ds_read_b64_tr_b16 v[{32+4*s}:{33+4*s}], v{va} offset:{4096*s}")
            e(f"ds_read_b64_tr_b16 v[{34+4*s}:{35+4*s}], v{va} offset:{4096*s+512}")
        e(f"ds_read_b64_tr_b16 v[64:65], v{vb}")
    def down_mfma(acc):
        for s in range(4):
            e(f"v_mfma_f32_16x16x32_bf16 v[{acc}:{acc+3}], v[{48+4*s}:{51+4*s}], v[{32+4*s}:{35+4*s}], v[{acc}:{acc+3}]")
        e(f"s_nop 5\nv_mfma_f32_16x16x16_bf16 v[{acc}:{acc+3}], v[66:67], v[64:65], v[{acc}:{acc+3}]")
    def wo_frags(vo, wob):
        for s in range(4):
            e(f"ds_read_b64_tr_b16 v[{wob+4*s}:{wob+1+4*s}], v{vo} offset:{4096*s}")
            e(f"ds_read_b64_tr_b16 v[{wob+2+4*s}:{wob+3+4*s}], v{vo} offset:{4096*s+512}")
    def down_all(tag):
        wd_frags(4, 5)
        e("s_waitcnt lgkmcnt(0)")
        down_mfma(24)
        wo_frags(6, 68)
        e(f"s_cmp_eq_u32 s98, 0\ns_cbranch_scc1 L_dn{tag}\ns_waitcnt lgkmcnt(0)")
        wd_frags(100, 101)
        e("s_waitcnt lgkmcnt(0)")
        down_mfma(116)
        wo_frags(102, 84)
        e(f"L_dn{tag}:")
    gather(True)
    if defer:
        all_proj()
    hid_frags()
    if not defer:
        down_all(0)
    e("s_branch L_h1\nL_h1_again:\ns_mov_b32 s86, 0")
    for s in range(8):
        e(f"""v_xor_b32 v122, s94, v{P[s]}
v_bitop3_b32 v122, v122, v{P[s]+1}, s94 {OR_XOR}
v_and_b32 v122, 0xff, v122
v_cmp_ne_u32 vcc, 0, v122
s_cmp_eq_u64 vcc, 0
s_cselect_b32 s84, {1 << s}, 0
s_or_b32 s86, s86, s84""")
    gather(False)
    e("""L_h1:
s_sub_u32 s83, s83, 1
s_cbranch_scc1 L_h1_done
s_waitcnt vmcnt(0)
v_xor_b32 v122, s94, v10
v_xor_b32 v123, s94, v11""")
    for r in list(range(12, 24)) + [120, 121]:
        e(f"v_bitop3_b32 v{122+(r&1)}, v{122+(r&1)}, v{r}, s94 {OR_XOR}")
    e(f"""v_or_b32 v122, v122, v123
v_and_b32 v122, 0xff, v122
v_bitop3_b32 v122, v122, v126, s94 {OR_XOR}
v_bitop3_b32 v122, v122, v127, s94 {OR_XOR}
v_mov_b32 v8, v124
v_mov_b32 v9, v125
v_cmp_ne_u32 vcc, 0, v122
s_cbranch_vccnz L_h1_again
L_h1_done:""")
    stamp(6)
    e(f"""v_max_f32_dpp v122, v8, v8 quad_perm:[1,0,3,2] {DP}
s_nop 1
v_max_f32_dpp v122, v122, v122 quad_perm:[2,3,0,1] {DP}
s_nop 1
v_max_f32_dpp v122, v122, v122 row_half_mirror {DP}
v_sub_f32 v8, v8, v122
v_mul_f32 v8, s85, v8
v_exp_f32 v8, v8
s_nop 0
v_mul_f32 v9, v9, v8
s_nop 0
v_mul_f32_dpp v122, v8, v10 row_newbcast:0 {DP}
v_add_f32_dpp v9, v9, v9 quad_perm:[1,0,3,2] {DP}
v_mul_f32_dpp v123, v8, v11 row_newbcast:0 {DP}
v_fmac_f32_dpp v122, v8, v12 row_newbcast:1 {DP}
v_add_f32_dpp v9, v9, v9 quad_perm:[2,3,0,1] {DP}
v_fmac_f32_dpp v123, v8, v13 row_newbcast:1 {DP}
v_fmac_f32_dpp v122, v8, v14 row_newbcast:2 {DP}
v_add_f32_dpp v9, v9, v9 row_half_mirror {DP}
v_fmac_f32_dpp v123, v8, v15 row_newbcast:2 {DP}
v_rcp_f32 v9, v9""")
    for s in range(3, 8):
        e(f"v_fmac_f32_dpp v122, v8, v{P[s]} row_newbcast:{s} {DP}")
        e(f"v_fmac_f32_dpp v123, v8, v{P[s]+1} row_newbcast:{s} {DP}")
    e(f"""v_mul_f32 v122, v122, v9
v_mul_f32 v123, v123, v9
v_cvt_pk_bf16_f32 v122, v122, v123
ds_write_b32 v29, v122 offset:{OL}
s_waitcnt lgkmcnt(0)
s_barrier""")
    OF = 8 if defer else 48
    for s in range(4):
        e(f"ds_read_b128 v[{OF+4*s}:{OF+3+4*s}], v30 offset:{OL+64*s}")
    if defer:
        down_all(1)
        e("s_waitcnt lgkmcnt(0)")
    for s in range(4):
        if not defer:
            e(f"s_waitcnt lgkmcnt({3-s})")
        e(f"v_mfma_f32_16x16x32_bf16 v[24:27], v[{OF+4*s}:{OF+3+4*s}], v[{68+4*s}:{71+4*s}], v[24:27]")
    e("s_cmp_eq_u32 s98, 0\ns_cbranch_scc1 L_y1")
    for s in range(4):
        e(f"v_mfma_f32_16x16x32_bf16 v[116:119], v[{OF+4*s}:{OF+3+4*s}], v[{84+4*s}:{87+4*s}], v[116:119]")
    e("s_nop 7")
    pick_batch(116, 116)
    e("""v_bfi_b32 v116, s82, v115, v116
buffer_store_dword v116, v114, s[44:47], s87 offen sc1
L_y1:
s_nop 7""")
    pick_batch(24, 24)
    e("""v_bfi_b32 v24, s82, v115, v24
buffer_store_dword v24, v114, s[44:47], s93 offen sc1
L_done:
s_mov_b64 exec, -1""")
    if stamps:
        e("s_waitcnt vmcnt(0)")
        stamp(7)
        e(f"""s_lshl_b32 s78, s2, {2 if bare & 8 else 3}
s_add_u32 s78, s78, s3
s_lshl_b32 s78, s78, 6
s_add_u32 s78, s78, {STAMP}
s_getreg_b32 s79, hwreg(HW_REG_XCC_ID, 0, 4)
v_mov_b32 v1, s78""")
        for k in range(8):
            e(f"v_mov_b32 v{4+k}, s{60+2*k}")
        e("""v_mov_b32 v12, s97
v_mov_b32 v13, s79
global_store_dwordx4 v1, v[4:7], s[26:27]
global_store_dwordx4 v1, v[8:11], s[26:27] offset:16
global_store_dwordx2 v1, v[12:13], s[26:27] offset:32""")
    e(f"""L_end:
s_endpgm
.section .rodata,"a"
.p2align 6
.amdhsa_kernel {KN}
  .amdhsa_next_free_vgpr {NV}
  .amdhsa_next_free_sgpr 100
  .amdhsa_accum_offset {(NV+3)//4*4}
  .amdhsa_group_segment_fixed_size 0
  .amdhsa_kernarg_size 96
  .amdhsa_user_sgpr_count 2
  .amdhsa_user_sgpr_kernarg_segment_ptr 1
  .amdhsa_system_sgpr_workgroup_id_x 1
  .amdhsa_float_denorm_mode_32 3
.end_amdhsa_kernel""")
    return HEADER + e.text()

if __name__ == "__main__":
    kw = eval("dict(%s)" % (sys.argv[1] if len(sys.argv) > 1 else ""))
    sys.stdout.write(gen(**kw))
```

```python
import sys
KN = "parallel_sum__mha_block_cached__geglu_ffn__decode_kernel"

PO = 0x20000
PM = 0xA0000
YW = 0xB0000
QW = 0x100000
GU = 0x180000
CW = 0x1A8000
EW = 0x1B0000
WS_SIZE = 0x1B0080
STAMP = 0x200000
XN = 0; HL = 5632; OL = 6912; CNT = 7936; QL = 8192
FT = 12288; WOT = 86016; WDT = 102400
LDS_SIZE = 120832

LOG2E = 0x3fb8aa3b
SCALE = 0x3db504f3
DP = "row_mask:0xf bank_mask:0xf"
OR_XOR = "bitop3:0xf6"

HEADER = """; Kernarg layout for this problem (96 bytes, ptrs only, base s[0:1]):
"""

class A:
    def __init__(self):
        self.o = []
    def __call__(self, s):
        for ln in s.strip("\n").split("\n"):
            ln = ln.strip()
            if ln:
                self.o.append(ln if ln.endswith(":") or ln.startswith((".", ";")) else "    " + ln)
    def text(self):
        return "\n".join(self.o) + "\n"

def gen(NB=4, S=24, wflag="nt", kvflag="nt", stamps=0, spin=1 << 20, thr=1, svcprio=1, svc0=3, hsleep=32,
        defer=0, bal=1, one=12, four=36, sh=0, cmax=8, sub=0, first=0, mix=0, mul=1, bare=0, drain=1, fixdur=0, ad=0, k4=4, k2=2, c0=1, nocomp=0, noq=0, notail=0):
    e = A()
    NBK = NB // 2
    assert NB % 2 == 0 and S > NBK
    LIM = 256 - 8 * S
    def stamp(k):
        if stamps and not (bare & 16 and k in (1, 3, 4, 6)):
            e(f"s_memrealtime s[{60+2*k}:{61+2*k}]\ns_waitcnt lgkmcnt(0)")
    KB = 32
    NV = max(KB + NB * 32, 132)
    e(f"; @launch grid=(256,1,1) block=({256 if bare & 8 else 512},1,1) lds={LDS_SIZE}")
    e(f""".amdgcn_target "amdgcn-amd-amdhsa--gfx950"
.text
.globl {KN}
.p2align 8
.type {KN},@function
{KN}:
s_cmp_ge_u32 s2, 256
s_cbranch_scc1 L_end
s_load_dwordx16 s[4:19], s[0:1], 0
s_load_dwordx8 s[20:27], s[0:1], 64""")
    if stamps:
        for k in range(8):
            e(f"s_mov_b32 s{60+2*k}, 0")
        e("s_mov_b32 s97, 0")
    stamp(0)
    if fixdur:
        e("s_memrealtime s[60:61]")
    e("""v_lshrrev_b32 v1, 6, v0
v_and_b32 v0, 63, v0
v_readfirstlane_b32 s3, v1
s_and_b32 s48, s2, 7
s_lshr_b32 s49, s2, 3""")
    if bal == 0:
        e("""s_and_b32 s52, s49, 3
s_lshl_b32 s53, s48, 2
s_add_u32 s52, s52, s53
s_lshr_b32 s53, s2, 5
s_add_u32 s96, s48, s53
s_and_b32 s96, s96, 7
s_cmp_eq_u32 s96, 7
s_cselect_b32 s98, 1, 0""")
    else:
        e("""s_bfe_u32 s52, s49, 0x20001
s_lshl_b32 s53, s48, 2
s_add_u32 s52, s52, s53
s_lshr_b32 s53, s49, 3
s_lshl_b32 s53, s53, 1
s_add_u32 s96, s48, s53
s_and_b32 s96, s96, 7
s_and_b32 s78, s49, 1
s_add_u32 s53, s53, s78
s_lshl_b32 s79, 1, s96
s_and_b32 s79, s79, 0x90
s_cselect_b32 s98, 1, 0
s_andn2_b32 s98, s98, s78""")
    e(f"""v_lshlrev_b32 v1, 4, v0
s_mov_b32 s85, {LOG2E}
v_mov_b32 v8, {CNT}
v_mov_b32 v10, 0
v_mov_b32 v11, 0
v_mov_b32 v12, 0
v_mov_b32 v13, 0
s_cmp_lg_u32 s3, 0
s_cbranch_scc1 L_b0
ds_write_b128 v8, v[10:13]
ds_write_b128 v8, v[10:13] offset:16
L_b0:
s_waitcnt lgkmcnt(0)
s_mov_b32 s94, {EW}
{"" if bare & 2 else "s_load_dword s94, s[26:27], s94"}
s_mov_b32 s44, s26
s_mov_b32 s45, s27
s_mov_b32 s46, {WS_SIZE}
s_mov_b32 s47, 0x20000
s_cmp_ge_u32 s3, 4
s_cbranch_scc1 L_svc""")

    e(f"""s_add_u32 s56, s3, s48
s_and_b32 s56, s56, 3
s_lshl_b32 s58, s56, 5
s_add_u32 s58, s58, s49
s_lshl_b32 s59, s58, 21
s_add_u32 s28, s6, s59
s_addc_u32 s29, s7, 0
s_mov_b32 s30, {2<<20}
s_mov_b32 s31, 0x20000
s_add_u32 s32, s8, s59
s_addc_u32 s33, s9, 0
s_mov_b32 s34, {2<<20}
s_mov_b32 s35, 0x20000
s_and_b32 s50, s48, 1
{"s_mov_b32 s51, 0" if mix else "s_lshr_b32 s51, s48, 1"}
s_lshl_b32 s54, s50, 13
s_lshl_b32 s58, s58, 7
s_add_u32 s58, s58, {CW}
s_add_u32 s36, s26, s58
s_addc_u32 s37, s27, 0
{"" if bare & 1 else "s_barrier"}""")
    def issue_k(buf, so=76):
        for j in range(4):
            r = KB + buf * 32 + j * 4
            e(f"buffer_load_dwordx4 v[{r}:{r+3}], v1, s[28:31], s{so} offen offset:{j*1024} {kvflag}")
    def issue_v(buf, so=76):
        for j in range(4):
            r = KB + buf * 32 + 16 + j * 4
            e(f"buffer_load_dwordx4 v[{r}:{r+3}], v1, s[32:35], s{so} offen offset:{j*1024} {kvflag}")
    def static_next():
        if mix:
            e(f"""s_mul_i32 s76, s51, {mix}
s_add_u32 s76, s76, s48
s_and_b32 s76, s76, 7
s_lshl_b32 s77, s51, 3
s_add_u32 s76, s76, s77
s_lshl_b32 s76, s76, 13
s_add_u32 s77, s76, 4096
s_add_u32 s51, s51, 1""")
            return
        e("""s_lshl_b32 s76, s51, 14
s_add_u32 s76, s76, s54
s_add_u32 s77, s76, 4096
s_add_u32 s51, s51, 4""")
    for b in range(NB):
        if b % 2 == 0:
            static_next()
        issue_k(b, 76 + (b & 1)); issue_v(b, 76 + (b & 1))
    stamp(1)
    e(f"""s_lshl_b32 s78, s56, 2
v_mov_b32 v2, s78
v_and_b32 v3, 15, v0
v_lshlrev_b32 v3, 4, v3
s_lshl_b32 s78, s56, 8
v_add_u32 v3, s78, v3
s_mov_b32 s83, {spin}
{"s_branch L_q_ok" if bare & 4 else ""}
L_qw:
ds_read_b32 v8, v2 offset:{CNT+16}
ds_read_b128 v[4:7], v3 offset:{QL}
s_sub_u32 s83, s83, 1
s_cbranch_scc1 L_q_ok
s_waitcnt lgkmcnt(0)
v_cmp_eq_u32 vcc, 0, v8
{"" if noq else "s_cbranch_vccnz L_qw"}
L_q_ok:
s_waitcnt lgkmcnt(0)
s_add_u32 s94, s94, 1""")
    stamp(3)
    for r in range(8, 16):
        e(f"v_mov_b32 v{r}, 0")
    e(f"""v_mov_b32 v16, 0xff7fffff
v_mov_b32 v17, 0
s_mov_b32 s84, {SCALE}
s_mov_b32 s86, 0xffff0000
s_mov_b32 s87, {S - NBK}
s_mov_b32 s88, {NB}
s_mov_b32 s89, 0
s_mov_b32 s77, 0
s_mov_b32 s55, {first}
s_mov_b32 s59, {c0}
s_mov_b32 s58, 0
s_mov_b32 s99, 31
s_and_b32 s95, s94, 0xffff""")

    nw = [0]
    def tile(buf, last=False):
        k = KB + buf * 32
        v = k + 16
        def wait(extra):
            if not last:
                e(f"s_waitcnt vmcnt({8*NB-4})")
                return
            n = nw[0]; nw[0] += 1
            for j in range(NB - 1, 0, -1):
                e(f"s_cmp_lg_u32 s88, {j}\ns_cbranch_scc1 L_w{n}_{j}\ns_waitcnt vmcnt({8*j+extra})\ns_branch L_w{n}\nL_w{n}_{j}:")
            e(f"s_waitcnt vmcnt({extra})\nL_w{n}:")
        wait(4)
        if nocomp:
            if not last:
                issue_k(buf)
            wait(0)
            if not last:
                issue_v(buf)
            return
        for j in range(4):
            e(f"v_dot2_f32_bf16 v{18+j}, v{k+4*j}, v4, 0")
        for i in range(1, 4):
            for j in range(4):
                e(f"v_dot2c_f32_bf16 v{18+j}, v{k+4*j+i}, v{4+i}")
        if last:
            e("s_nop 1")
        else:
            issue_k(buf)
        e(f"""v_add_f32_dpp v22, v18, v18 row_ror:8 row_mask:0xf bank_mask:0x3
v_add_f32_dpp v23, v20, v20 row_ror:8 row_mask:0xf bank_mask:0x3
v_add_f32_dpp v22, v19, v19 row_ror:8 row_mask:0xf bank_mask:0xc
v_add_f32_dpp v23, v21, v21 row_ror:8 row_mask:0xf bank_mask:0xc
s_nop 0
v_add_f32_dpp v24, v22, v22 row_half_mirror row_mask:0xf bank_mask:0x5
v_add_f32_dpp v24, v23, v23 row_half_mirror row_mask:0xf bank_mask:0xa
s_nop 1
v_add_f32_dpp v24, v24, v24 quad_perm:[1,0,3,2] {DP}
s_nop 1
v_add_f32_dpp v24, v24, v24 quad_perm:[2,3,0,1] {DP}
v_cvt_pk_bf16_f32 v24, v24, v24
v_and_b32 v24, s86, v24
v_mul_f32 v24, s84, v24
v_cvt_pk_bf16_f32 v24, v24, v24
v_and_b32 v24, s86, v24
s_nop 1
v_max_f32_dpp v25, v24, v24 row_ror:8 {DP}
s_nop 1
v_max_f32_dpp v25, v25, v25 row_ror:4 {DP}
v_max_f32 v25, v16, v25
v_sub_f32 v24, v24, v25
v_sub_f32 v26, v16, v25
v_mul_f32 v24, s85, v24
v_mul_f32 v26, s85, v26
v_exp_f32 v24, v24
v_exp_f32 v26, v26
v_mov_b32 v16, v25
v_cvt_pk_bf16_f32 v27, v24, 0
v_fma_f32 v17, v17, v26, v24
v_lshlrev_b32 v28, 16, v27""")
        for r in range(8, 16):
            e(f"v_mul_f32 v{r}, v26, v{r}")
        wait(0)
        for j in range(4):
            ln = (0, 8, 4, 12)[j]
            for i in range(4):
                e(f"v_dot2c_f32_bf16_dpp v{8+2*i}, v27, v{v+4*j+i} row_newbcast:{ln} {DP}")
                e(f"v_dot2c_f32_bf16_dpp v{9+2*i}, v28, v{v+4*j+i} row_newbcast:{ln} {DP}")
        if not last:
            issue_v(buf)
    e("L_loop:")
    for u in range(NB):
        e(f"""s_cmp_eq_u32 s77, 0
s_cbranch_scc1 L_need{u}
L_have{u}:
s_sub_u32 s77, s77, 1
s_lshr_b32 s76, s57, 1
s_lshl_b32 s76, s76, 2
s_and_b32 s92, s57, 1
s_add_u32 s76, s76, s92
s_lshl_b32 s76, s76, 12
s_add_u32 s76, s76, s54
s_add_u32 s57, s57, 1
L_go{u}:""")
        tile(u)
        if drain:
            if u == NB - 1:
                e("s_branch L_loop")
        elif u < NB - 1:
            e("s_cmp_eq_u32 s88, 0\ns_cbranch_scc1 L_sdone")
        else:
            e("s_cmp_lg_u32 s88, 0\ns_cbranch_scc1 L_loop\ns_branch L_sdone")
    fixed = f"s_mul_i32 s91, s91, {mul}\ns_add_u32 s55, s55, s91"
    adapt = f"""s_sub_u32 s92, s55, s58
s_lshr_b32 s92, s92, s99
s_cmp_eq_u32 s99, 31
s_cselect_b32 s92, 5, s92
s_max_u32 s92, s92, 2
s_mov_b32 s58, s55
s_mov_b32 s99, s59
s_lshl_b32 s91, s92, s59
s_add_u32 s91, s91, s55
s_sub_i32 s91, {LIM}, s91
s_mul_i32 s93, s92, {k2}
s_cmp_ge_i32 s91, s93
s_cselect_b32 s59, 1, 0
s_mul_i32 s93, s92, {k4}
s_cmp_ge_i32 s91, s93
s_cselect_b32 s59, 2, s59"""
    plain = "s_lshl_b32 s57, s51, 1\ns_add_u32 s51, s51, 4"
    mixs = f"""s_mul_i32 s57, s51, {mix}
s_add_u32 s57, s57, s48
s_and_b32 s54, s57, 1
s_lshl_b32 s54, s54, 13
s_and_b32 s57, s57, 6
s_lshl_b32 s92, s51, 3
s_add_u32 s57, s57, s92
s_add_u32 s51, s51, 1"""
    for u in range(NB):
        e(f"""L_need{u}:
s_cmp_eq_u32 s87, 0
s_cbranch_scc1 L_dyn{u}
s_sub_u32 s87, s87, 1
{mixs if mix else plain}
s_mov_b32 s77, 2
s_cmp_lg_u32 s87, 0
s_cbranch_scc1 L_have{u}
v_mov_b32 v29, {CNT}
v_mov_b32 v30, 1
ds_write_b32 v29, v30 offset:8
s_mov_b32 s83, {spin}""")
        stamp(6)
        if LIM == 0:
            e("s_mov_b32 s89, 2")
        e(f"""s_branch L_have{u}
L_dyn{u}:
s_cmp_eq_u32 s89, 2
s_cbranch_scc1 L_none{u}
L_early{u}:
s_sub_u32 s83, s83, 1
s_cbranch_scc1 L_fin{u}
""")
        if ad:
            e("s_lshl_b32 s91, 1, s59")
        elif sh:
            assert LIM + 8 * cmax + 16 < 256
            e(f"s_sub_u32 s91, {LIM - sub}, s55\ns_ashr_i32 s91, s91, {sh}\ns_min_i32 s91, s91, {cmax}\ns_max_i32 s91, s91, 1")
        else:
            e(f"s_cmp_lt_u32 s55, {max(LIM - one, 0)}\ns_cselect_b32 s91, 2, 1")
            if four:
                e(f"s_cmp_lt_u32 s55, {four}\ns_cselect_b32 s91, 4, s91")
        e(f"""s_lshl_b32 s93, s50, 3
s_lshl_b32 s90, s91, s93
s_atomic_add s90, s[36:37], 0 glc
s_waitcnt lgkmcnt(0)
s_lshr_b32 s92, s90, 16
s_cmp_lg_u32 s92, s95
s_cbranch_scc1 L_early{u}
s_lshr_b32 s55, s90, s93
s_and_b32 s55, s55, 0xff
s_cmp_lt_u32 s55, {LIM}
s_cbranch_scc1 L_got{u}
s_cmp_eq_u32 s89, 1
s_cbranch_scc1 L_fin{u}
s_xor_b32 s93, s93, 8
s_lshr_b32 s55, s90, s93
s_and_b32 s55, s55, 0xff
s_cmp_ge_u32 s55, {max(LIM - thr + 1, 0)}
s_cbranch_scc1 L_fin{u}
s_mov_b32 s89, 1
s_mov_b32 s59, 0
s_mov_b32 s99, 31
s_xor_b32 s50, s50, 1
s_xor_b32 s54, s54, 0x2000
s_branch L_early{u}
L_fin{u}:
s_mov_b32 s89, 2
L_none{u}:
s_mov_b32 s76, 0x400000
{"" if drain else "s_sub_u32 s88, s88, 1"}
s_branch {"L_dr" if drain else "L_go"}{u}
L_got{u}:
s_lshl_b32 s54, s50, 13
s_sub_u32 s77, {LIM}, s55
s_min_u32 s77, s77, s91
s_add_u32 s57, s55, {8*S}
{adapt if ad else fixed}""")
        if stamps:
            e("s_add_u32 s97, s97, s77")
        e(f"s_branch L_have{u}")
    if drain:
        for u in range(NB):
            e(f"L_dr{u}:\ns_sub_u32 s88, s88, 1")
            tile(u, True)
            e("s_cmp_eq_u32 s88, 0\ns_cbranch_scc1 L_sdone" if u < NB - 1 else "s_cmp_lg_u32 s88, 0\ns_cbranch_scc1 L_dr0")
    e("L_sdone:")
    stamp(5)
    e(f"""v_mov_b32 v18, v16
v_mov_b32 v19, v16
s_lshl_b32 s78, s2, 11
s_lshl_b32 s79, s56, 9
v_permlane16_swap_b32 v18, v19
s_add_u32 s78, s78, s79
v_max_f32 v18, v18, v19
v_mov_b32 v19, v18
s_add_u32 s78, s78, {PO}
s_lshl_b32 s79, s2, 6
v_permlane32_swap_b32 v18, v19
s_lshl_b32 s80, s56, 4
v_max_f32 v18, v18, v19
v_sub_f32 v20, v16, v18
v_mul_f32 v20, s85, v20
v_exp_f32 v20, v20
s_add_u32 s79, s79, s80
v_mul_f32 v17, v17, v20""")
    for r in range(8, 16):
        e(f"v_mul_f32 v{r}, v20, v{r}")
    e(f"""v_add_f32_dpp v17, v17, v17 row_ror:8 {DP}
s_add_u32 s79, s79, {PM}
v_permlane32_swap_b32 v8, v12
v_permlane32_swap_b32 v9, v13
v_add_f32_dpp v17, v17, v17 row_ror:4 {DP}
v_permlane32_swap_b32 v10, v14
v_permlane32_swap_b32 v11, v15
v_mov_b32 v19, v17
v_add_f32 v8, v8, v12
v_add_f32 v9, v9, v13
v_add_f32 v10, v10, v14
v_add_f32 v11, v11, v15
v_permlane16_swap_b32 v17, v19
v_mov_b32 v20, s94
v_permlane16_swap_b32 v8, v10
v_permlane16_swap_b32 v9, v11
v_add_f32 v17, v17, v19
v_add_f32 v8, v8, v10
v_mov_b32 v19, v17
v_add_f32 v9, v9, v11
s_movk_i32 s80, 0xff
v_permlane32_swap_b32 v17, v19
v_lshlrev_b32 v22, 3, v0
v_bfi_b32 v8, s80, v20, v8
v_bfi_b32 v9, s80, v20, v9
v_add_f32 v19, v17, v19
buffer_store_dwordx2 v[8:9], v22, s[44:47], s78 offen sc1
v_mov_b32 v21, s94
s_mov_b64 exec, 1
buffer_store_dwordx4 v[18:21], v1, s[44:47], s79 offen sc1
s_mov_b64 exec, -1
s_barrier""")
    e(f"""s_cmp_ge_u32 s3, {0 if notail else 2}
s_cbranch_scc1 L_bar_done
s_cmp_eq_u32 s3, 0
s_cbranch_scc1 L_red
s_cmp_eq_u32 s98, 0
s_cbranch_scc1 L_bar_done
s_mov_b32 s53, 8
L_red:
s_bfe_u32 s78, s52, 0x20001
s_mul_i32 s78, s78, 1152
s_lshr_b32 s79, s52, 3
s_lshl_b32 s79, s79, 5
s_add_u32 s78, s78, s79
s_and_b32 s79, s52, 1
s_lshl_b32 s79, s79, 4
s_add_u32 s78, s78, s79
s_lshl_b32 s79, s53, 7
s_add_u32 s78, s78, s79
v_and_b32 v9, 1, v0
v_lshlrev_b32 v10, 3, v9
s_mov_b32 s28, s4
s_mov_b32 s29, s5
s_mov_b32 s30, 4608
s_mov_b32 s31, 0x20000
buffer_load_dwordx2 v[16:17], v10, s[28:31], s78 offen
s_mov_b32 s40, s22
s_mov_b32 s41, s23
s_mov_b32 s42, 4608
s_mov_b32 s43, 0x20000
v_lshrrev_b32 v8, 1, v0
v_lshlrev_b32 v8, 10, v8
v_lshl_add_u32 v8, v9, 4, v8
s_lshl_b32 s79, s53, 15
s_lshl_b32 s80, s52, 5
s_add_u32 s79, s79, s80
s_add_u32 s79, s79, {YW}
s_mov_b32 s83, {spin}
s_barrier
L_h2:
buffer_load_dwordx4 v[12:15], v8, s[44:47], s79 offen sc1
s_sub_u32 s83, s83, 1
s_cbranch_scc1 L_h2_done
s_waitcnt vmcnt(0)
v_xor_b32 v20, s94, v12
v_bitop3_b32 v20, v20, v13, s94 {OR_XOR}
v_bitop3_b32 v20, v20, v14, s94 {OR_XOR}
v_bitop3_b32 v20, v20, v15, s94 {OR_XOR}
v_and_b32 v20, 0xff, v20
v_cmp_ne_u32 vcc, 0, v20
s_and_b64 exec, exec, vcc
s_cbranch_execnz L_h2
L_h2_done:
s_mov_b64 exec, -1
s_waitcnt vmcnt(0)""")
    for dpp in ("quad_perm:[2,3,0,1]", "row_ror:4", "row_ror:8"):
        for r in range(12, 16):
            e(f"v_add_f32_dpp v{r}, v{r}, v{r} {dpp} {DP}")
    for sw in (16, 32):
        for r in range(4):
            e(f"v_mov_b32 v{20+r}, v{12+r}")
        for r in range(4):
            e(f"v_permlane{sw}_swap_b32 v{12+r}, v{20+r}")
        for r in range(4):
            e(f"v_add_f32 v{12+r}, v{12+r}, v{20+r}")
    e(f"""v_lshlrev_b32 v20, 16, v16
v_and_b32 v21, 0xffff0000, v16
v_lshlrev_b32 v22, 16, v17
v_and_b32 v23, 0xffff0000, v17
v_add_f32 v12, v12, v20
v_add_f32 v13, v13, v21
v_add_f32 v14, v14, v22
v_add_f32 v15, v15, v23
v_cvt_pk_bf16_f32 v12, v12, v13
v_cvt_pk_bf16_f32 v13, v14, v15
s_mov_b64 exec, 3
buffer_store_dwordx2 v[12:13], v10, s[40:43], s78 offen
s_add_u32 s78, s2, s3
s_cmp_lg_u32 s78, 0
s_cbranch_scc1 L_done
v_mov_b32 v12, s94
v_mov_b32 v13, {EW}
s_mov_b64 exec, 1
buffer_store_dword v12, v13, s[44:47], 0 offen sc1
s_branch L_done
L_bar_done:
s_barrier
s_branch L_done""")

    def srd(ptr, nbytes):
        e(f"s_mov_b32 s40, s{ptr}\ns_mov_b32 s41, s{ptr+1}\ns_mov_b32 s42, {nbytes}\ns_mov_b32 s43, 0x20000")
    def dma(n_ins, step, ldsbase, vreg):
        for n in range(n_ins):
            e(f"s_add_u32 m0, s79, {ldsbase + 1024*n}")
            e(f"s_add_u32 s78, s78, {step}" if n else "s_nop 0")
            e(f"buffer_load_dwordx4 v{vreg}, s[40:43], s78 offen {wflag} lds")
    def proj_tiles(stripe_sreg, wo_base, wd_base):
        srd(12, 4096 * 1152)
        e(f"""s_lshl_b32 s81, s{stripe_sreg}, 7
s_mul_i32 s78, s52, {128*1152}
s_add_u32 s78, s78, s81
s_mul_i32 s79, s56, {32*1152}
s_add_u32 s78, s78, s79
s_lshl_b32 s79, s56, 12""")
        dma(4, 8 * 1152, wo_base, 31)
        srd(20, 4608 * 1152)
        e(f"""s_mul_i32 s78, s52, {144*1152}
s_add_u32 s78, s78, s81
s_mul_i32 s79, s57, {8*1152}
s_add_u32 s78, s78, s79
s_lshl_b32 s79, s57, 10""")
        dma(5, 8 * 1152, wd_base, 31)
    npj = [0]
    def all_proj():
        n = npj[0]; npj[0] += 1
        proj_tiles(53, WOT, WDT)
        e(f"s_cmp_eq_u32 s98, 0\ns_cbranch_scc1 L_pj{n}\ns_mov_b32 s80, 8")
        proj_tiles(80, FT, FT + 16384)
        e(f"L_pj{n}:")
    def pick_batch(d, a):
        e(f"""v_cndmask_b32 v{a}, v{a}, v{a+1}, s[38:39]
v_cndmask_b32 v{a+2}, v{a+2}, v{a+3}, s[38:39]
v_cndmask_b32 v{d}, v{a}, v{a+2}, s[58:59]""")
    qn = [0]
    def qfetch():
        n = qn[0]; qn[0] += 1
        e(f"""v_lshrrev_b32 v14, 3, v0
v_lshlrev_b32 v14, 8, v14
v_and_b32 v15, 7, v0
v_lshl_add_u32 v14, v15, 3, v14
s_lshl_b32 s88, s56, 6
s_lshl_b32 s89, s49, 11
s_add_u32 s88, s88, s89
s_add_u32 s88, s88, {QW}
s_lshl_b32 s89, s56, 8
v_lshl_add_u32 v3, v0, 2, s89
s_lshl_b32 s89, s56, 2
v_mov_b32 v2, s89
s_mov_b32 s83, {spin}
L_q_again{n}:
buffer_load_dwordx2 v[16:17], v14, s[44:47], s88 offen sc1
s_sub_u32 s83, s83, 1
s_cbranch_scc1 L_q_got{n}
s_waitcnt vmcnt(0)
v_xor_b32 v15, s94, v16
v_bitop3_b32 v15, v15, v17, s94 {OR_XOR}
v_and_b32 v15, 0xffff, v15
v_cmp_ne_u32 vcc, 0, v15
s_and_b64 exec, exec, vcc
s_cbranch_execnz L_q_again{n}
L_q_got{n}:
s_mov_b64 exec, -1
s_mov_b32 s89, 0x07060302
v_perm_b32 v16, v17, v16, s89
v_mov_b32 v15, 1
ds_write_b32 v3, v16 offset:{QL}
ds_write_b32 v2, v15 offset:{CNT+16}
s_setprio {svcprio}""")
        stamp(4)
    if bare & 1:
        e("L_svc:\ns_endpgm\nL_svc_x:")
    e(f"""{"" if bare & 1 else "L_svc:"}
s_setprio {svc0}
s_sub_u32 s56, s3, 4
s_mul_i32 s57, s56, 9
s_lshr_b32 s57, s57, 1
v_lshrrev_b32 v8, 3, v0
v_and_b32 v10, 7, v0
v_lshlrev_b32 v10, 4, v10
v_mul_u32_u24 v31, 1152, v8
v_add_u32 v31, v31, v10
s_mov_b32 s58, 0
s_mov_b32 s59, -1
s_sub_u32 s78, s96, 5
s_cmp_lt_u32 s78, 2
s_cbranch_scc1 L_tq
s_and_b32 s78, s49, 1
s_add_u32 s78, s78, 4
s_cmp_ge_u32 s96, s78
s_cbranch_scc1 L_notask
s_mul_i32 s80, s49, 9
s_lshr_b32 s80, s80, 1
s_add_u32 s80, s80, s96
s_lshl_b32 s51, s80, 10
s_add_u32 s51, s51, {GU}
s_cmp_ge_u32 s80, 72
s_cselect_b32 s40, s18, s16
s_cselect_b32 s41, s19, s17
s_cselect_b32 s78, 72, 0
s_mov_b32 s42, {576*9216}
s_sub_u32 s80, s80, s78
s_movk_i32 s50, 9216
s_branch L_task
L_tq:
s_lshl_b32 s80, s49, 1
s_add_u32 s80, s80, s78
s_lshl_b32 s51, s80, 10
s_add_u32 s51, s51, {QW}
s_mov_b32 s40, s10
s_mov_b32 s41, s11
s_mov_b32 s42, {576*8192}
s_movk_i32 s50, 8192
L_task:
s_mov_b32 s43, 0x20000
s_mul_i32 s36, s56, 1152
s_add_u32 s36, s4, s36
s_addc_u32 s37, s5, 0
s_mov_b32 s38, 1152
s_mov_b32 s39, 0x20000
v_lshlrev_b32 v7, 2, v0""")
    for j in range(5):
        e(f"buffer_load_dword v{2+j}, v7, s[36:39], 0 offen offset:{256*j}")
    e(f"""v_mul_u32_u24 v8, s50, v8
v_add_u32 v8, v8, v10
s_lshl_b32 s78, s80, 7
s_mul_i32 s79, s56, 144
s_mul_i32 s79, s79, s50
s_add_u32 s78, s78, s79
s_lshl_b32 s82, s50, 3
s_lshl_b32 s79, s56, 8
s_add_u32 s51, s51, s79
s_mul_i32 s79, s56, {18*1024}""")
    dma(18, "s82", FT, 8)
    e("s_barrier\ns_waitcnt vmcnt(18)")
    def wave_sum(r, t):
        for k in (8, 4, 2, 1):
            e(f"s_nop 1\nv_add_f32_dpp v{r}, v{r}, v{r} row_ror:{k} {DP}")
        for sw in (16, 32):
            e(f"v_mov_b32 v{t}, v{r}\ns_nop 1\nv_permlane{sw}_swap_b32 v{r}, v{t}\ns_nop 0\nv_add_f32 v{r}, v{r}, v{t}")
    def rbf(d, s):
        e(f"v_cvt_pk_bf16_f32 v{d}, v{s}, v{s}\nv_and_b32 v{d}, 0xffff0000, v{d}")
    for j in range(5):
        e(f"v_lshlrev_b32 v{10+2*j}, 16, v{2+j}\nv_and_b32 v{11+2*j}, 0xffff0000, v{2+j}")
    e("v_add_f32 v20, v10, v11")
    for j in range(12, 20):
        e(f"v_add_f32 v20, v20, v{j}")
    wave_sum(20, 21)
    e("v_mul_f32 v20, 0x3ae38e39, v20")
    e("v_cmp_gt_u32 vcc, 32, v0")
    for j in range(10):
        e(f"v_sub_f32 v{22+j if j < 8 else 2+j-8}, v{10+j}, v20")
    e("v_cndmask_b32 v2, 0, v2, vcc\nv_cndmask_b32 v3, 0, v3, vcc")
    e("v_mul_f32 v21, v2, v2\nv_fmac_f32 v21, v3, v3")
    for j in range(8):
        e(f"v_fmac_f32 v21, v{22+j}, v{22+j}")
    wave_sum(21, 22)
    e("v_mul_f32 v21, 0x3ae38e39, v21")
    rbf(21, 21)
    e("v_add_f32 v21, 0x3727c5ac, v21")
    rbf(21, 21)
    e("v_sqrt_f32 v21, v21\ns_nop 0")
    rbf(21, 21)
    e("v_rcp_f32 v21, v21")
    rbf(20, 20)
    for j in range(10):
        e(f"v_sub_f32 v{10+j}, v{10+j}, v20")
    for j in range(5):
        e(f"v_cvt_pk_bf16_f32 v{2+j}, v{10+2*j}, v{11+2*j}")
    for j in range(5):
        e(f"v_lshlrev_b32 v{10+2*j}, 16, v{2+j}\nv_and_b32 v{11+2*j}, 0xffff0000, v{2+j}")
    for j in range(10):
        e(f"v_mul_f32 v{10+j}, v{10+j}, v21")
    for j in range(5):
        e(f"v_cvt_pk_bf16_f32 v{2+j}, v{10+2*j}, v{11+2*j}")
    e("s_mul_i32 s78, s56, 1152\nv_add_u32 v7, s78, v7")
    for j in range(4):
        e(f"ds_write_b32 v7, v{2+j} offset:{XN+256*j}")
    e(f"s_mov_b64 exec, 0xffffffff\nds_write_b32 v7, v6 offset:{XN+1024}\ns_mov_b64 exec, -1")
    e(f"""v_lshrrev_b32 v8, 4, v0
v_lshlrev_b32 v9, 4, v8
v_lshlrev_b32 v8, 3, v8
v_bfe_u32 v10, v0, 2, 2
v_add_u32 v8, v8, v10
v_lshlrev_b32 v8, 7, v8
v_and_b32 v10, 3, v0
v_lshl_add_u32 v8, v10, 3, v8
v_mul_u32_u24 v10, 1152, v10
v_add_u32 v9, v9, v10
s_lshl_b32 s78, s56, 5
s_add_u32 s78, s78, {FT}
v_add_u32 v11, s78, v8
v_add_u32 v12, {9*4096}, v11
v_lshlrev_b32 v13, 2, v0""")
    for r in range(16, 20):
        e(f"v_mov_b32 v{r}, 0")
    e(f"""v_mov_b32 v29, {CNT}
v_mov_b32 v30, 1
s_mov_b32 s83, {spin}
s_waitcnt vmcnt(0) lgkmcnt(0)
s_add_u32 s94, s94, 1
s_mov_b32 s38, 0xffff0000
s_mov_b32 s39, 0xffff0000
s_mov_b64 exec, 1
ds_add_u32 v29, v30
s_mov_b64 exec, -1
L_wxn:
ds_read_b32 v30, v29
s_sub_u32 s83, s83, 1
s_cbranch_scc1 L_wxn_ok
s_waitcnt lgkmcnt(0)
v_cmp_gt_u32 vcc, 4, v30
s_cbranch_vccnz L_wxn
L_wxn_ok:
s_waitcnt lgkmcnt(0)""")
    stamp(1)
    def rd(s):
        base = 32 + (s % 5) * 8
        e(f"ds_read_b128 v[{base}:{base+3}], v9 offset:{XN+64*s}")
        sg, so = divmod(s, 9)
        e(f"ds_read_b64_tr_b16 v[{base+4}:{base+5}], v{11+sg} offset:{4096*so}")
        e(f"ds_read_b64_tr_b16 v[{base+6}:{base+7}], v{11+sg} offset:{4096*so+512}")
    for s in range(4):
        rd(s)
    for s in range(18):
        e(f"s_waitcnt lgkmcnt({min(3, 17-s)*3})")
        base = 32 + (s % 5) * 8
        e(f"v_mfma_f32_16x16x32_bf16 v[16:19], v[{base}:{base+3}], v[{base+4}:{base+7}], v[16:19]")
        if s + 4 < 18:
            rd(s + 4)
    e("v_mov_b32 v21, s94\ns_mov_b32 s78, 0x07060100\ns_nop 5")
    pick_batch(20, 16)
    e("""v_cvt_pk_bf16_f32 v20, v20, v20
v_perm_b32 v20, v20, v21, s78
buffer_store_dword v20, v13, s[44:47], s51 offen sc1""")
    stamp(2)
    qfetch()
    if not defer:
        proj_tiles(53, WOT, WDT)
    e("s_branch L_tick\nL_notask:")
    if not defer:
        all_proj()
    e("s_barrier\ns_waitcnt lgkmcnt(0)\ns_add_u32 s94, s94, 1\ns_mov_b32 s38, 0xffff0000\ns_mov_b32 s39, 0xffff0000")
    qfetch()
    e(f"""L_tick:
s_cmp_lg_u32 s56, 3
s_cbranch_scc1 L_gu
s_cmp_ge_u32 s2, 128
s_cbranch_scc1 L_gu
s_lshl_b32 s79, s94, 16
v_mov_b32 v3, s79
v_lshlrev_b32 v2, 2, v0
s_mov_b64 exec, 0xffffffff
s_lshl_b32 s79, s2, 7
s_add_u32 s79, s79, {CW}
buffer_store_dword v3, v2, s[44:47], s79 offen sc1
s_mov_b64 exec, -1""")
    e(f"""L_gu:
v_min_u32 v8, 35, v0
v_lshrrev_b32 v9, 2, v8
v_lshlrev_b32 v9, 8, v9
v_and_b32 v24, 3, v8
v_lshl_add_u32 v24, v24, 4, v9
v_lshlrev_b32 v26, 3, v8
s_mul_i32 s78, s56, 288
v_add_u32 v26, s78, v26
s_mul_i32 s78, s52, 2304
s_lshl_b32 s79, s56, 6
s_add_u32 s78, s78, s79
s_add_u32 s78, s78, {GU}
s_add_u32 s79, s78, 73728
v_mov_b32 v29, {CNT}
s_mov_b32 s83, {spin}
L_late:
s_sleep {hsleep}
ds_read_b32 v30, v29 offset:8
s_sub_u32 s83, s83, 1
s_cbranch_scc1 L_late_ok
s_waitcnt lgkmcnt(0)
v_cmp_eq_u32 vcc, 0, v30
s_cbranch_vccnz L_late
L_late_ok:
s_waitcnt lgkmcnt(0)
s_mov_b32 s83, {spin}
L_ph:
buffer_load_dwordx4 v[32:35], v24, s[44:47], s78 offen sc1
buffer_load_dwordx4 v[36:39], v24, s[44:47], s79 offen sc1
s_sub_u32 s83, s83, 1
s_cbranch_scc1 L_ph_done
s_waitcnt vmcnt(0)
v_xor_b32 v8, s94, v32""")
    for r in range(33, 40):
        e(f"v_bitop3_b32 v8, v8, v{r}, s94 {OR_XOR}")
    e("""v_and_b32 v8, 0xffff, v8
v_cmp_ne_u32 vcc, 0, v8
s_cbranch_vccnz L_ph
L_ph_done:
s_waitcnt vmcnt(0)""")
    for r in range(32, 40):
        e(f"v_and_b32 v{r}, 0xffff0000, v{r}")
    e("s_mov_b32 s78, 0x3d372713\ns_mov_b32 s79, 0xc0135761")
    for r in range(4):
        g = 32 + r; t = 40 + r
        e(f"""v_mul_f32 v{t}, v{g}, v{g}
v_mul_f32 v{t}, v{t}, v{g}
v_fma_f32 v{t}, v{t}, s78, v{g}
v_mul_f32 v{t}, s79, v{t}
v_exp_f32 v{t}, v{t}
s_nop 0
v_add_f32 v{t}, 1.0, v{t}
v_rcp_f32 v{t}, v{t}
s_nop 0
v_mul_f32 v{t}, v{t}, v{g}""")
        rbf(t, t)
        e(f"v_mul_f32 v{t}, v{t}, v{36+r}")
    e(f"""v_cvt_pk_bf16_f32 v16, v40, v41
v_cvt_pk_bf16_f32 v17, v42, v43
ds_write_b64 v26, v[16:17] offset:{HL}""")
    stamp(3)
    e(f"""v_lshrrev_b32 v8, 4, v0
v_bfe_u32 v10, v0, 2, 2
v_lshl_add_u32 v11, v8, 2, v10
v_lshl_add_u32 v10, v8, 3, v10
v_lshlrev_b32 v10, 7, v10
v_lshlrev_b32 v11, 7, v11
v_and_b32 v12, 3, v0
v_lshlrev_b32 v13, 3, v12
s_lshl_b32 s78, s56, 5
v_add3_u32 v10, v10, v13, s78
v_add3_u32 v11, v11, v13, s78
v_add_u32 v4, {WDT}, v10
v_add_u32 v5, {WDT+128*128}, v11
v_add_u32 v6, {WOT}, v10
v_add_u32 v100, {FT+16384}, v10
v_add_u32 v101, {FT+16384+128*128}, v11
v_add_u32 v102, {FT}, v10
v_mul_u32_u24 v13, 288, v12
v_lshl_add_u32 v7, v8, 3, v13
v_lshl_add_u32 v3, v8, 4, v13
v_lshlrev_b32 v12, 8, v12
v_lshl_add_u32 v30, v8, 4, v12
s_lshl_b32 s79, s56, 9
v_lshl_add_u32 v112, v0, 3, s79
v_and_b32 v113, 7, v0
v_lshlrev_b32 v113, 6, v113
s_lshl_b32 s79, s56, 4
v_add_u32 v113, s79, v113
s_lshl_b32 s88, s52, 14
s_add_u32 s88, s88, {PO}
s_add_u32 s89, s88, 4096
s_add_u32 s90, s88, 8192
s_add_u32 s91, s88, 12288
s_lshl_b32 s92, s52, 9
s_add_u32 s92, s92, {PM}
v_and_b32 v29, 15, v0
v_lshlrev_b32 v29, 4, v29
v_lshl_add_u32 v29, v8, 2, v29
s_lshl_b32 s79, s56, 8
v_add_u32 v29, s79, v29
v_lshlrev_b32 v114, 2, v0
s_lshl_b32 s93, s52, 10
s_add_u32 s93, s93, s79
s_add_u32 s93, s93, {YW}
s_add_u32 s87, s93, {8*32768}
s_lshl_b32 s79, s53, 15
s_add_u32 s93, s93, s79
s_movk_i32 s82, 0xff
v_mov_b32 v115, s94""")
    for r in list(range(24, 28)) + list(range(116, 120)):
        e(f"v_mov_b32 v{r}, 0")
    e(f"""s_mov_b32 s83, {spin}
s_waitcnt vmcnt(0) lgkmcnt(0)
s_barrier""")
    stamp(5)
    if notail:
        e("s_barrier\ns_branch L_done")
    P = [10 + 2 * s if s < 7 else 120 for s in range(8)]
    def gather(first):
        e("buffer_load_dwordx4 v[124:127], v113, s[44:47], s92 offen sc1")
        for s in range(8):
            if not first:
                e(f"s_bitcmp1_b32 s86, {s}\ns_cbranch_scc1 L_g{s}")
            e(f"buffer_load_dwordx2 v[{P[s]}:{P[s]+1}], v112, s[44:47], s{88+s//2} offen offset:{2048*(s&1)} sc1")
            if not first:
                e(f"L_g{s}:")
    def hid_frags():
        for s in range(4):
            e(f"ds_read_b128 v[{48+4*s}:{51+4*s}], v3 offset:{HL+64*s}")
        e(f"ds_read_b64 v[66:67], v7 offset:{HL+256}")
    def wd_frags(va, vb):
        for s in range(4):
            e(f"ds_read_b64_tr_b16 v[{32+4*s}:{33+4*s}], v{va} offset:{4096*s}")
            e(f"ds_read_b64_tr_b16 v[{34+4*s}:{35+4*s}], v{va} offset:{4096*s+512}")
        e(f"ds_read_b64_tr_b16 v[64:65], v{vb}")
    def down_mfma(acc):
        for s in range(4):
            e(f"v_mfma_f32_16x16x32_bf16 v[{acc}:{acc+3}], v[{48+4*s}:{51+4*s}], v[{32+4*s}:{35+4*s}], v[{acc}:{acc+3}]")
        e(f"s_nop 5\nv_mfma_f32_16x16x16_bf16 v[{acc}:{acc+3}], v[66:67], v[64:65], v[{acc}:{acc+3}]")
    def wo_frags(vo, wob):
        for s in range(4):
            e(f"ds_read_b64_tr_b16 v[{wob+4*s}:{wob+1+4*s}], v{vo} offset:{4096*s}")
            e(f"ds_read_b64_tr_b16 v[{wob+2+4*s}:{wob+3+4*s}], v{vo} offset:{4096*s+512}")
    def down_all(tag):
        wd_frags(4, 5)
        e("s_waitcnt lgkmcnt(0)")
        down_mfma(24)
        wo_frags(6, 68)
        e(f"s_cmp_eq_u32 s98, 0\ns_cbranch_scc1 L_dn{tag}\ns_waitcnt lgkmcnt(0)")
        wd_frags(100, 101)
        e("s_waitcnt lgkmcnt(0)")
        down_mfma(116)
        wo_frags(102, 84)
        e(f"L_dn{tag}:")
    gather(True)
    if defer:
        all_proj()
    hid_frags()
    if not defer:
        down_all(0)
    e("s_branch L_h1\nL_h1_again:\ns_mov_b32 s86, 0")
    for s in range(8):
        e(f"""v_xor_b32 v122, s94, v{P[s]}
v_bitop3_b32 v122, v122, v{P[s]+1}, s94 {OR_XOR}
v_and_b32 v122, 0xff, v122
v_cmp_ne_u32 vcc, 0, v122
s_cmp_eq_u64 vcc, 0
s_cselect_b32 s84, {1 << s}, 0
s_or_b32 s86, s86, s84""")
    gather(False)
    e("""L_h1:
s_sub_u32 s83, s83, 1
s_cbranch_scc1 L_h1_done
s_waitcnt vmcnt(0)
v_xor_b32 v122, s94, v10
v_xor_b32 v123, s94, v11""")
    for r in list(range(12, 24)) + [120, 121]:
        e(f"v_bitop3_b32 v{122+(r&1)}, v{122+(r&1)}, v{r}, s94 {OR_XOR}")
    e(f"""v_or_b32 v122, v122, v123
v_and_b32 v122, 0xff, v122
v_bitop3_b32 v122, v122, v126, s94 {OR_XOR}
v_bitop3_b32 v122, v122, v127, s94 {OR_XOR}
v_mov_b32 v8, v124
v_mov_b32 v9, v125
v_cmp_ne_u32 vcc, 0, v122
s_cbranch_vccnz L_h1_again
L_h1_done:""")
    stamp(6)
    e(f"""v_max_f32_dpp v122, v8, v8 quad_perm:[1,0,3,2] {DP}
s_nop 1
v_max_f32_dpp v122, v122, v122 quad_perm:[2,3,0,1] {DP}
s_nop 1
v_max_f32_dpp v122, v122, v122 row_half_mirror {DP}
v_sub_f32 v8, v8, v122
v_mul_f32 v8, s85, v8
v_exp_f32 v8, v8
s_nop 0
v_mul_f32 v9, v9, v8
s_nop 0
v_mul_f32_dpp v122, v8, v10 row_newbcast:0 {DP}
v_add_f32_dpp v9, v9, v9 quad_perm:[1,0,3,2] {DP}
v_mul_f32_dpp v123, v8, v11 row_newbcast:0 {DP}
v_fmac_f32_dpp v122, v8, v12 row_newbcast:1 {DP}
v_add_f32_dpp v9, v9, v9 quad_perm:[2,3,0,1] {DP}
v_fmac_f32_dpp v123, v8, v13 row_newbcast:1 {DP}
v_fmac_f32_dpp v122, v8, v14 row_newbcast:2 {DP}
v_add_f32_dpp v9, v9, v9 row_half_mirror {DP}
v_fmac_f32_dpp v123, v8, v15 row_newbcast:2 {DP}
v_rcp_f32 v9, v9""")
    for s in range(3, 8):
        e(f"v_fmac_f32_dpp v122, v8, v{P[s]} row_newbcast:{s} {DP}")
        e(f"v_fmac_f32_dpp v123, v8, v{P[s]+1} row_newbcast:{s} {DP}")
    e(f"""v_mul_f32 v122, v122, v9
v_mul_f32 v123, v123, v9
v_cvt_pk_bf16_f32 v122, v122, v123
ds_write_b32 v29, v122 offset:{OL}
s_waitcnt lgkmcnt(0)
s_barrier""")
    OF = 8 if defer else 48
    for s in range(4):
        e(f"ds_read_b128 v[{OF+4*s}:{OF+3+4*s}], v30 offset:{OL+64*s}")
    if defer:
        down_all(1)
        e("s_waitcnt lgkmcnt(0)")
    for s in range(4):
        if not defer:
            e(f"s_waitcnt lgkmcnt({3-s})")
        e(f"v_mfma_f32_16x16x32_bf16 v[24:27], v[{OF+4*s}:{OF+3+4*s}], v[{68+4*s}:{71+4*s}], v[24:27]")
    e("s_cmp_eq_u32 s98, 0\ns_cbranch_scc1 L_y1")
    for s in range(4):
        e(f"v_mfma_f32_16x16x32_bf16 v[116:119], v[{OF+4*s}:{OF+3+4*s}], v[{84+4*s}:{87+4*s}], v[116:119]")
    e("s_nop 7")
    pick_batch(116, 116)
    e("""v_bfi_b32 v116, s82, v115, v116
buffer_store_dword v116, v114, s[44:47], s87 offen sc1
L_y1:
s_nop 7""")
    pick_batch(24, 24)
    e("""v_bfi_b32 v24, s82, v115, v24
buffer_store_dword v24, v114, s[44:47], s93 offen sc1
L_done:
s_mov_b64 exec, -1""")
    if fixdur:
        e(f"""L_fix:
s_memrealtime s[62:63]
s_waitcnt lgkmcnt(0)
s_sub_u32 s62, s62, s60
s_cmp_lt_u32 s62, {fixdur*100}
s_cbranch_scc1 L_fix""")
    if stamps:
        e("s_waitcnt vmcnt(0)")
        stamp(7)
        e(f"""s_lshl_b32 s78, s2, {2 if bare & 8 else 3}
s_add_u32 s78, s78, s3
s_lshl_b32 s78, s78, 6
s_add_u32 s78, s78, {STAMP}
s_getreg_b32 s79, hwreg(HW_REG_XCC_ID, 0, 4)
v_mov_b32 v1, s78""")
        for k in range(8):
            e(f"v_mov_b32 v{4+k}, s{60+2*k}")
        e("""v_mov_b32 v12, s97
v_mov_b32 v13, s79
global_store_dwordx4 v1, v[4:7], s[26:27]
global_store_dwordx4 v1, v[8:11], s[26:27] offset:16
global_store_dwordx2 v1, v[12:13], s[26:27] offset:32""")
    e(f"""L_end:
s_endpgm
.section .rodata,"a"
.p2align 6
.amdhsa_kernel {KN}
  .amdhsa_next_free_vgpr {NV}
  .amdhsa_next_free_sgpr 100
  .amdhsa_accum_offset {(NV+3)//4*4}
  .amdhsa_group_segment_fixed_size 0
  .amdhsa_kernarg_size 96
  .amdhsa_user_sgpr_count 2
  .amdhsa_user_sgpr_kernarg_segment_ptr 1
  .amdhsa_system_sgpr_workgroup_id_x 1
  .amdhsa_float_denorm_mode_32 3
.end_amdhsa_kernel""")
    return HEADER + e.text()

if __name__ == "__main__":
    kw = eval("dict(%s)" % (sys.argv[1] if len(sys.argv) > 1 else ""))
    sys.stdout.write(gen(**kw))
```

```python
import sys
KN = "parallel_sum__mha_block_cached__geglu_ffn__decode_kernel"

PO = 0x20000
PM = 0xA0000
YW = 0xB0000
QW = 0x100000
GU = 0x180000
CW = 0x1A8000
EW = 0x1B0000
WS_SIZE = 0x1B0080
STAMP = 0x200000
XN = 0; HL = 5632; OL = 6912; CNT = 7936; QL = 8192
FT = 12288; WOT = 86016; WDT = 102400
LDS_SIZE = 120832

LOG2E = 0x3fb8aa3b
SCALE = 0x3db504f3
DP = "row_mask:0xf bank_mask:0xf"
OR_XOR = "bitop3:0xf6"

HEADER = """; Kernarg layout for this problem (96 bytes, ptrs only, base s[0:1]):
"""

class A:
    def __init__(self):
        self.o = []
    def __call__(self, s):
        for ln in s.strip("\n").split("\n"):
            ln = ln.strip()
            if ln:
                self.o.append(ln if ln.endswith(":") or ln.startswith((".", ";")) else "    " + ln)
    def text(self):
        return "\n".join(self.o) + "\n"

def gen(NB=4, S=24, wflag="nt", kvflag="nt", stamps=0, spin=1 << 20, thr=1, svcprio=1, svc0=3, hsleep=0,
        defer=0, bal=1, one=8, four=44, eight=0, sh=0, cmax=8, sub=0, first=0, mix=0, mul=1, bare=0, drain=1, pj0=2, swz=1, tlb=0, trig=0, st2=0, quit=0, mlw=3, eearly=1, stf="sc1", ldf="sc1", ad=0, k4=4, k2=2, c0=1, nocomp=0, noq=0, notail=0):
    e = A()
    PM = 0xA0000 if mlw == 0 else 0x120000
    NBK = NB // 2
    assert NB % 2 == 0 and S > NBK
    LIM = 256 - 8 * S
    def stamp(k):
        if stamps and not (bare & 16 and k in (1, 3, 4, 6)):
            e(f"s_memrealtime s[{60+2*k}:{61+2*k}]\ns_waitcnt lgkmcnt(0)")
    KB = 32
    NV = max(KB + NB * 32, 132)
    e(f"; @launch grid=(256,1,1) block=({256 if bare & 8 else 512},1,1) lds={LDS_SIZE}")
    e(f""".amdgcn_target "amdgcn-amd-amdhsa--gfx950"
.text
.globl {KN}
.p2align 8
.type {KN},@function
{KN}:
s_cmp_ge_u32 s2, 256
s_cbranch_scc1 L_end
s_load_dwordx16 s[4:19], s[0:1], 0
s_load_dwordx8 s[20:27], s[0:1], 64""")
    if stamps:
        for k in range(8):
            e(f"s_mov_b32 s{60+2*k}, 0")
        e("s_mov_b32 s97, 0")
    stamp(0)
    e("""v_lshrrev_b32 v1, 6, v0
v_and_b32 v0, 63, v0
v_readfirstlane_b32 s3, v1
s_and_b32 s48, s2, 7
s_lshr_b32 s49, s2, 3""")
    if bal == 0:
        e("""s_and_b32 s52, s49, 3
s_lshl_b32 s53, s48, 2
s_add_u32 s52, s52, s53
s_lshr_b32 s53, s2, 5
s_add_u32 s96, s48, s53
s_and_b32 s96, s96, 7
s_cmp_eq_u32 s96, 7
s_cselect_b32 s98, 1, 0""")
    else:
        e("""s_bfe_u32 s52, s49, 0x20001
s_lshl_b32 s53, s48, 2
s_add_u32 s52, s52, s53
s_lshr_b32 s53, s49, 3
s_lshl_b32 s53, s53, 1
s_add_u32 s96, s48, s53
s_and_b32 s96, s96, 7
s_and_b32 s78, s49, 1
s_add_u32 s53, s53, s78
s_lshl_b32 s79, 1, s96
s_and_b32 s79, s79, 0x90
s_cselect_b32 s98, 1, 0
s_andn2_b32 s98, s98, s78""")
    e(f"""v_lshlrev_b32 v1, 4, v0
s_mov_b32 s85, {LOG2E}
v_mov_b32 v8, {CNT}
v_mov_b32 v10, 0
v_mov_b32 v11, 0
v_mov_b32 v12, 0
v_mov_b32 v13, 0
s_cmp_lg_u32 s3, 0
s_cbranch_scc1 L_b0
ds_write_b128 v8, v[10:13]
ds_write_b128 v8, v[10:13] offset:16
L_b0:
s_waitcnt lgkmcnt(0)
s_mov_b32 s94, {EW}
{"" if bare & 2 else "s_load_dword s94, s[26:27], s94"}
s_mov_b32 s44, s26
s_mov_b32 s45, s27
s_mov_b32 s46, {WS_SIZE}
s_mov_b32 s47, 0x20000
s_cmp_ge_u32 s3, 4
s_cbranch_scc1 L_svc""")

    e(f"""s_add_u32 s56, s3, s48
s_and_b32 s56, s56, 3
s_lshl_b32 s58, s56, 5
s_add_u32 s58, s58, s49
s_lshl_b32 s59, s58, 21
s_add_u32 s28, s6, s59
s_addc_u32 s29, s7, 0
s_mov_b32 s30, {2<<20}
s_mov_b32 s31, 0x20000
s_add_u32 s32, s8, s59
s_addc_u32 s33, s9, 0
s_mov_b32 s34, {2<<20}
s_mov_b32 s35, 0x20000
s_and_b32 s50, s48, 1
{"s_mov_b32 s51, 0" if mix else "s_lshr_b32 s51, s48, 1"}
s_lshl_b32 s54, s50, 13
s_lshl_b32 s58, s58, 7
s_add_u32 s58, s58, {CW}
s_add_u32 s36, s26, s58
s_addc_u32 s37, s27, 0
""")
    if tlb == 1:
        e(f"""s_mov_b64 exec, 1
buffer_load_dword v2, v1, s[28:31], s54 offen nt
buffer_load_dword v3, v1, s[32:35], s54 offen nt
s_mov_b64 exec, -1""")
    if tlb == 2:
        static_next0 = True
    if not bare & 1 and tlb < 2:
        e("s_barrier")
    def issue_k(buf, so=76):
        for j in range(4):
            r = KB + buf * 32 + j * 4
            e(f"buffer_load_dwordx4 v[{r}:{r+3}], v1, s[28:31], s{so} offen offset:{j*1024} {kvflag}")
    def issue_v(buf, so=76):
        for j in range(4):
            r = KB + buf * 32 + 16 + j * 4
            e(f"buffer_load_dwordx4 v[{r}:{r+3}], v1, s[32:35], s{so} offen offset:{j*1024} {kvflag}")
    def static_next():
        if mix:
            e(f"""s_mul_i32 s76, s51, {mix}
s_add_u32 s76, s76, s48
s_and_b32 s76, s76, 7
s_lshl_b32 s77, s51, 3
s_add_u32 s76, s76, s77
s_lshl_b32 s76, s76, 13
s_add_u32 s77, s76, 4096
s_add_u32 s51, s51, 1""")
            return
        e("""s_lshl_b32 s76, s51, 14
s_add_u32 s76, s76, s54
s_add_u32 s77, s76, 4096
s_add_u32 s51, s51, 4""")
    for b in range(NB):
        if b % 2 == 0:
            static_next()
        issue_k(b, 76 + (b & 1))
        if tlb == 2 and b == 0:
            e("s_barrier")
        issue_v(b, 76 + (b & 1))
        if tlb == 3 and b == 0:
            e("s_barrier")
    stamp(1)
    e(f"""s_lshl_b32 s78, s56, 2
v_mov_b32 v2, s78
v_and_b32 v3, 15, v0
v_lshlrev_b32 v3, 4, v3
s_lshl_b32 s78, s56, 8
v_add_u32 v3, s78, v3
s_mov_b32 s83, {spin}
{"s_branch L_q_ok" if bare & 4 else ""}
L_qw:
ds_read_b32 v8, v2 offset:{CNT+16}
ds_read_b128 v[4:7], v3 offset:{QL}
s_sub_u32 s83, s83, 1
s_cbranch_scc1 L_q_ok
s_waitcnt lgkmcnt(0)
v_cmp_eq_u32 vcc, 0, v8
{"" if noq else "s_cbranch_vccnz L_qw"}
L_q_ok:
s_waitcnt lgkmcnt(0)
s_add_u32 s94, s94, 1""")
    stamp(3)
    for r in range(8, 16):
        e(f"v_mov_b32 v{r}, 0")
    e(f"""v_mov_b32 v16, 0xff7fffff
v_mov_b32 v17, 0
s_mov_b32 s84, {SCALE}
s_mov_b32 s86, 0xffff0000
s_mov_b32 s87, {S - NBK}
s_mov_b32 s88, {NB}
s_mov_b32 s89, 0
s_mov_b32 s77, 0
s_cmp_eq_u32 s50, 1
s_cselect_b32 s39, {LIM - quit}, -1
s_mov_b32 s55, {first}
s_mov_b32 s59, {c0}
s_mov_b32 s58, 0
s_mov_b32 s99, 31
s_and_b32 s95, s94, 0xffff""")

    nw = [0]
    def tile(buf, last=False):
        k = KB + buf * 32
        v = k + 16
        def wait(extra):
            if not last:
                e(f"s_waitcnt vmcnt({8*NB-4})")
                return
            n = nw[0]; nw[0] += 1
            for j in range(NB - 1, 0, -1):
                e(f"s_cmp_lg_u32 s88, {j}\ns_cbranch_scc1 L_w{n}_{j}\ns_waitcnt vmcnt({8*j+extra})\ns_branch L_w{n}\nL_w{n}_{j}:")
            e(f"s_waitcnt vmcnt({extra})\nL_w{n}:")
        wait(4)
        if nocomp:
            if not last:
                issue_k(buf)
            wait(0)
            if not last:
                issue_v(buf)
            return
        for j in range(4):
            e(f"v_dot2_f32_bf16 v{18+j}, v{k+4*j}, v4, 0")
        for i in range(1, 4):
            for j in range(4):
                e(f"v_dot2c_f32_bf16 v{18+j}, v{k+4*j+i}, v{4+i}")
        if last:
            e("s_nop 1")
        else:
            issue_k(buf)
        e(f"""v_add_f32_dpp v22, v18, v18 row_ror:8 row_mask:0xf bank_mask:0x3
v_add_f32_dpp v23, v20, v20 row_ror:8 row_mask:0xf bank_mask:0x3
v_add_f32_dpp v22, v19, v19 row_ror:8 row_mask:0xf bank_mask:0xc
v_add_f32_dpp v23, v21, v21 row_ror:8 row_mask:0xf bank_mask:0xc
s_nop 0
v_add_f32_dpp v24, v22, v22 row_half_mirror row_mask:0xf bank_mask:0x5
v_add_f32_dpp v24, v23, v23 row_half_mirror row_mask:0xf bank_mask:0xa
s_nop 1
v_add_f32_dpp v24, v24, v24 quad_perm:[1,0,3,2] {DP}
s_nop 1
v_add_f32_dpp v24, v24, v24 quad_perm:[2,3,0,1] {DP}
v_cvt_pk_bf16_f32 v24, v24, v24
v_and_b32 v24, s86, v24
v_mul_f32 v24, s84, v24
v_cvt_pk_bf16_f32 v24, v24, v24
v_and_b32 v24, s86, v24
s_nop 1
v_max_f32_dpp v25, v24, v24 row_ror:8 {DP}
s_nop 1
v_max_f32_dpp v25, v25, v25 row_ror:4 {DP}
v_max_f32 v25, v16, v25
v_sub_f32 v24, v24, v25
v_sub_f32 v26, v16, v25
v_mul_f32 v24, s85, v24
v_mul_f32 v26, s85, v26
v_exp_f32 v24, v24
v_exp_f32 v26, v26
v_mov_b32 v16, v25
v_cvt_pk_bf16_f32 v27, v24, 0
v_fma_f32 v17, v17, v26, v24
v_lshlrev_b32 v28, 16, v27""")
        for r in range(8, 16):
            e(f"v_mul_f32 v{r}, v26, v{r}")
        wait(0)
        for j in range(4):
            ln = (0, 8, 4, 12)[j]
            for i in range(4):
                e(f"v_dot2c_f32_bf16_dpp v{8+2*i}, v27, v{v+4*j+i} row_newbcast:{ln} {DP}")
                e(f"v_dot2c_f32_bf16_dpp v{9+2*i}, v28, v{v+4*j+i} row_newbcast:{ln} {DP}")
        if not last:
            issue_v(buf)
    e("L_loop:")
    for u in range(NB):
        e(f"""s_cmp_eq_u32 s77, 0
s_cbranch_scc1 L_need{u}
L_have{u}:
s_sub_u32 s77, s77, 1
s_lshr_b32 s76, s57, 1
s_lshl_b32 s76, s76, 2
s_and_b32 s92, s57, 1
s_add_u32 s76, s76, s92
s_lshl_b32 s76, s76, 12
s_add_u32 s76, s76, s54
s_add_u32 s57, s57, 1
L_go{u}:""")
        tile(u)
        if drain:
            if u == NB - 1:
                e("s_branch L_loop")
        elif u < NB - 1:
            e("s_cmp_eq_u32 s88, 0\ns_cbranch_scc1 L_sdone")
        else:
            e("s_cmp_lg_u32 s88, 0\ns_cbranch_scc1 L_loop\ns_branch L_sdone")
    fixed = f"s_mul_i32 s91, s91, {mul}\ns_add_u32 s55, s55, s91"
    adapt = f"""s_sub_u32 s92, s55, s58
s_lshr_b32 s92, s92, s99
s_cmp_eq_u32 s99, 31
s_cselect_b32 s92, 5, s92
s_max_u32 s92, s92, 2
s_mov_b32 s58, s55
s_mov_b32 s99, s59
s_lshl_b32 s91, s92, s59
s_add_u32 s91, s91, s55
s_sub_i32 s91, {LIM}, s91
s_mul_i32 s93, s92, {k2}
s_cmp_ge_i32 s91, s93
s_cselect_b32 s59, 1, 0
s_mul_i32 s93, s92, {k4}
s_cmp_ge_i32 s91, s93
s_cselect_b32 s59, 2, s59"""
    plain = "s_lshl_b32 s57, s51, 1\ns_add_u32 s51, s51, 4"
    mixs = f"""s_mul_i32 s57, s51, {mix}
s_add_u32 s57, s57, s48
s_and_b32 s54, s57, 1
s_lshl_b32 s54, s54, 13
s_and_b32 s57, s57, 6
s_lshl_b32 s92, s51, 3
s_add_u32 s57, s57, s92
s_add_u32 s51, s51, 1"""
    for u in range(NB):
        e(f"""L_need{u}:
s_cmp_eq_u32 s87, 0
s_cbranch_scc1 L_dyn{u}
s_sub_u32 s87, s87, 1
{mixs if mix else plain}
s_mov_b32 s77, 2
s_cmp_lg_u32 s87, 0
s_cbranch_scc1 L_have{u}
v_mov_b32 v29, {CNT}
v_mov_b32 v30, 1
ds_write_b32 v29, v30 offset:8
s_mov_b32 s83, {spin}""")
        stamp(6)
        if LIM == 0:
            e("s_mov_b32 s89, 2")
        e(f"""s_branch L_have{u}
L_dyn{u}:
s_cmp_eq_u32 s89, 2
s_cbranch_scc1 L_none{u}
L_early{u}:
s_sub_u32 s83, s83, 1
s_cbranch_scc1 L_fin{u}
""")
        if quit:
            e(f"s_cmp_ge_u32 s55, s39\ns_cbranch_scc1 L_fin{u}")
        if ad:
            e("s_lshl_b32 s91, 1, s59")
        elif sh:
            assert LIM + 8 * cmax + 16 < 256
            e(f"s_sub_u32 s91, {LIM - sub}, s55\ns_ashr_i32 s91, s91, {sh}\ns_min_i32 s91, s91, {cmax}\ns_max_i32 s91, s91, 1")
        else:
            e(f"s_cmp_lt_u32 s55, {max(LIM - one, 0)}\ns_cselect_b32 s91, 2, 1")
            if four:
                e(f"s_cmp_lt_u32 s55, {four}\ns_cselect_b32 s91, 4, s91")
            if eight:
                e(f"s_cmp_lt_u32 s55, {eight}\ns_cselect_b32 s91, 8, s91")
        e(f"""s_lshl_b32 s93, s50, 3
s_lshl_b32 s90, s91, s93
s_atomic_add s90, s[36:37], 0 glc
s_waitcnt lgkmcnt(0)
s_lshr_b32 s92, s90, 16
s_cmp_lg_u32 s92, s95
s_cbranch_scc1 L_early{u}
s_lshr_b32 s55, s90, s93
s_and_b32 s55, s55, 0xff
s_cmp_lt_u32 s55, {LIM}
s_cbranch_scc1 L_got{u}
s_cmp_eq_u32 s89, 1
s_cbranch_scc1 L_fin{u}
s_xor_b32 s93, s93, 8
s_lshr_b32 s55, s90, s93
s_and_b32 s55, s55, 0xff
s_cmp_ge_u32 s55, {max(LIM - thr + 1, 0)}
s_cbranch_scc1 L_fin{u}
s_mov_b32 s89, 1
s_mov_b32 s59, 0
s_mov_b32 s99, 31
s_xor_b32 s50, s50, 1
s_xor_b32 s54, s54, 0x2000
s_branch L_early{u}
L_fin{u}:
s_mov_b32 s89, 2
L_none{u}:
s_mov_b32 s76, 0x400000
{"" if drain else "s_sub_u32 s88, s88, 1"}
s_branch {"L_dr" if drain else "L_go"}{u}
L_got{u}:
s_lshl_b32 s54, s50, 13
s_sub_u32 s77, {LIM}, s55
s_min_u32 s77, s77, s91
s_add_u32 s57, s55, {8*S}
{adapt if ad else fixed}""")
        if stamps:
            e("s_add_u32 s97, s97, s77")
        e(f"s_branch L_have{u}")
    if drain:
        for u in range(NB):
            e(f"L_dr{u}:\ns_sub_u32 s88, s88, 1")
            if trig >= 2:
                e(f"s_cmp_lg_u32 s88, {trig - 2}\ns_cbranch_scc1 L_tg{u}")
                e(f"v_mov_b32 v29, {CNT}\nv_mov_b32 v30, 1\nds_write_b32 v29, v30 offset:12")
                e(f"L_tg{u}:")
            tile(u, True)
            e("s_cmp_eq_u32 s88, 0\ns_cbranch_scc1 L_sdone" if u < NB - 1 else "s_cmp_lg_u32 s88, 0\ns_cbranch_scc1 L_dr0")
    e("L_sdone:")
    if trig == 1:
        e(f"v_mov_b32 v29, {CNT}\nv_mov_b32 v30, 1\nds_write_b32 v29, v30 offset:12")
    stamp(5)
    e(f"""v_mov_b32 v18, v16
v_mov_b32 v19, v16
s_lshl_b32 s78, s2, 11
s_lshl_b32 s79, s56, 9
v_permlane16_swap_b32 v18, v19
s_add_u32 s78, s78, s79
v_max_f32 v18, v18, v19
v_mov_b32 v19, v18
s_add_u32 s78, s78, {PO}
s_lshl_b32 s79, s2, {6 + mlw}
v_permlane32_swap_b32 v18, v19
s_lshl_b32 s80, s56, {4 + mlw}
v_max_f32 v18, v18, v19
v_sub_f32 v20, v16, v18
v_mul_f32 v20, s85, v20
v_exp_f32 v20, v20
s_add_u32 s79, s79, s80
v_mul_f32 v17, v17, v20""")
    for r in range(8, 16):
        e(f"v_mul_f32 v{r}, v20, v{r}")
    e(f"""v_add_f32_dpp v17, v17, v17 row_ror:8 {DP}
s_add_u32 s79, s79, {PM}
v_permlane32_swap_b32 v8, v12
v_permlane32_swap_b32 v9, v13
v_add_f32_dpp v17, v17, v17 row_ror:4 {DP}
v_permlane32_swap_b32 v10, v14
v_permlane32_swap_b32 v11, v15
v_mov_b32 v19, v17
v_add_f32 v8, v8, v12
v_add_f32 v9, v9, v13
v_add_f32 v10, v10, v14
v_add_f32 v11, v11, v15
v_permlane16_swap_b32 v17, v19
v_mov_b32 v20, s94
v_permlane16_swap_b32 v8, v10
v_permlane16_swap_b32 v9, v11
v_add_f32 v17, v17, v19
v_add_f32 v8, v8, v10
v_mov_b32 v19, v17
v_add_f32 v9, v9, v11
s_movk_i32 s80, 0xff
v_permlane32_swap_b32 v17, v19
v_lshlrev_b32 v22, 3, v0
v_bfi_b32 v8, s80, v20, v8
v_bfi_b32 v9, s80, v20, v9
v_add_f32 v19, v17, v19
buffer_store_dwordx2 v[8:9], v22, s[44:47], s78 offen sc1
v_mov_b32 v21, s94
s_mov_b64 exec, {(1 << (1 << mlw)) - 1}
buffer_store_dwordx4 v[18:21], v1, s[44:47], s79 offen sc1
s_mov_b64 exec, -1
s_barrier""")
    e(f"""s_cmp_ge_u32 s3, {0 if notail else 2}
s_cbranch_scc1 L_bar_done
s_cmp_eq_u32 s3, 0
s_cbranch_scc1 L_red
s_cmp_eq_u32 s98, 0
s_cbranch_scc1 L_bar_done
s_mov_b32 s53, 8
L_red:
s_bfe_u32 s78, s52, 0x20001
s_mul_i32 s78, s78, 1152
s_lshr_b32 s79, s52, 3
s_lshl_b32 s79, s79, 5
s_add_u32 s78, s78, s79
s_and_b32 s79, s52, 1
s_lshl_b32 s79, s79, 4
s_add_u32 s78, s78, s79
s_lshl_b32 s79, s53, 7
s_add_u32 s78, s78, s79
v_and_b32 v9, 1, v0
v_lshlrev_b32 v10, 3, v9
s_mov_b32 s28, s4
s_mov_b32 s29, s5
s_mov_b32 s30, 4608
s_mov_b32 s31, 0x20000
buffer_load_dwordx2 v[16:17], v10, s[28:31], s78 offen
s_mov_b32 s40, s22
s_mov_b32 s41, s23
s_mov_b32 s42, 4608
s_mov_b32 s43, 0x20000
v_lshrrev_b32 v8, 1, v0
v_lshlrev_b32 v8, 10, v8
v_lshl_add_u32 v8, v9, 4, v8
s_lshl_b32 s79, s53, 15
s_lshl_b32 s80, s52, 5
s_add_u32 s79, s79, s80
s_add_u32 s79, s79, {YW}
s_mov_b32 s83, {spin}
s_barrier
L_h2:
buffer_load_dwordx4 v[12:15], v8, s[44:47], s79 offen sc1
s_sub_u32 s83, s83, 1
s_cbranch_scc1 L_h2_done
s_waitcnt vmcnt(0)
v_xor_b32 v20, s94, v12
v_bitop3_b32 v20, v20, v13, s94 {OR_XOR}
v_bitop3_b32 v20, v20, v14, s94 {OR_XOR}
v_bitop3_b32 v20, v20, v15, s94 {OR_XOR}
v_and_b32 v20, 0xff, v20
v_cmp_ne_u32 vcc, 0, v20
s_and_b64 exec, exec, vcc
s_cbranch_execnz L_h2
L_h2_done:
s_mov_b64 exec, -1
s_waitcnt vmcnt(0)""")
    if eearly:
        e(f"""s_add_u32 s79, s2, s3
s_cmp_lg_u32 s79, 0
s_cbranch_scc1 L_noe
v_mov_b32 v24, s94
v_mov_b32 v25, {EW}
s_mov_b64 exec, 1
buffer_store_dword v24, v25, s[44:47], 0 offen
s_mov_b64 exec, -1
L_noe:""")
    for dpp in ("quad_perm:[2,3,0,1]", "row_ror:4", "row_ror:8"):
        for r in range(12, 16):
            e(f"v_add_f32_dpp v{r}, v{r}, v{r} {dpp} {DP}")
    for sw in (16, 32):
        for r in range(4):
            e(f"v_mov_b32 v{20+r}, v{12+r}")
        for r in range(4):
            e(f"v_permlane{sw}_swap_b32 v{12+r}, v{20+r}")
        for r in range(4):
            e(f"v_add_f32 v{12+r}, v{12+r}, v{20+r}")
    e(f"""v_lshlrev_b32 v20, 16, v16
v_and_b32 v21, 0xffff0000, v16
v_lshlrev_b32 v22, 16, v17
v_and_b32 v23, 0xffff0000, v17
v_add_f32 v12, v12, v20
v_add_f32 v13, v13, v21
v_add_f32 v14, v14, v22
v_add_f32 v15, v15, v23
v_cvt_pk_bf16_f32 v12, v12, v13
v_cvt_pk_bf16_f32 v13, v14, v15
s_mov_b64 exec, 3
buffer_store_dwordx2 v[12:13], v10, s[40:43], s78 offen
s_add_u32 s78, s2, s3
s_cmp_lg_u32 s78, 0
{"s_branch L_done" if eearly else "s_cbranch_scc1 L_done"}
v_mov_b32 v12, s94
v_mov_b32 v13, {EW}
s_mov_b64 exec, 1
buffer_store_dword v12, v13, s[44:47], 0 offen sc1
s_branch L_done
L_bar_done:
s_barrier
s_branch L_done""")

    def srd(ptr, nbytes):
        e(f"s_mov_b32 s40, s{ptr}\ns_mov_b32 s41, s{ptr+1}\ns_mov_b32 s42, {nbytes}\ns_mov_b32 s43, 0x20000")
    def dma(n_ins, step, ldsbase, vreg, alt=False):
        for n in range(n_ins):
            e(f"s_add_u32 m0, s79, {ldsbase + 1024*n}")
            e(f"s_add_u32 s78, s78, {step}" if n else "s_nop 0")
            e(f"buffer_load_dwordx4 v{vreg + (n & 1 if alt else 0)}, s[40:43], s78 offen {wflag} lds")
    def proj_tiles(stripe_sreg, wo_base, wd_base, late=False):
        e(f"s_lshl_b32 s81, s{stripe_sreg}, 7")
        if late or defer != 2:
            srd(12, 4096 * 1152)
            e(f"""s_mul_i32 s78, s52, {128*1152}
s_add_u32 s78, s78, s81
s_mul_i32 s79, s56, {32*1152}
s_add_u32 s78, s78, s79
s_lshl_b32 s79, s56, 12""")
            dma(4, 8 * 1152, wo_base, 31)
        if late and defer == 2:
            return
        srd(20, 4608 * 1152)
        e(f"""s_mul_i32 s78, s52, {144*1152}
s_add_u32 s78, s78, s81
s_mul_i32 s79, s57, {8*1152}
s_add_u32 s78, s78, s79
s_lshl_b32 s79, s57, 10""")
        dma(5, 8 * 1152, wd_base, 31)
    npj = [0]
    def all_proj(late=False):
        n = npj[0]; npj[0] += 1
        proj_tiles(53, WOT, WDT, late)
        e(f"s_cmp_eq_u32 s98, 0\ns_cbranch_scc1 L_pj{n}\ns_mov_b32 s80, 8")
        proj_tiles(80, FT, FT + 16384, late)
        e(f"L_pj{n}:")
    def pick_batch(d, a):
        e(f"""v_cndmask_b32 v{a}, v{a}, v{a+1}, s[38:39]
v_cndmask_b32 v{a+2}, v{a+2}, v{a+3}, s[38:39]
v_cndmask_b32 v{d}, v{a}, v{a+2}, s[58:59]""")
    qn = [0]
    def qfetch():
        n = qn[0]; qn[0] += 1
        e(f"""v_lshrrev_b32 v14, 3, v0
v_lshlrev_b32 v14, 8, v14
v_and_b32 v15, 7, v0
v_lshl_add_u32 v14, v15, 3, v14
s_lshl_b32 s88, s56, 6
s_lshl_b32 s89, s49, 11
s_add_u32 s88, s88, s89
s_add_u32 s88, s88, {QW}
s_lshl_b32 s89, s56, 8
v_lshl_add_u32 v3, v0, 2, s89
s_lshl_b32 s89, s56, 2
v_mov_b32 v2, s89
s_mov_b32 s83, {spin}
L_q_again{n}:
buffer_load_dwordx2 v[16:17], v14, s[44:47], s88 offen sc1
s_sub_u32 s83, s83, 1
s_cbranch_scc1 L_q_got{n}
s_waitcnt vmcnt(0)
v_xor_b32 v15, s94, v16
v_bitop3_b32 v15, v15, v17, s94 {OR_XOR}
v_and_b32 v15, 0xffff, v15
v_cmp_ne_u32 vcc, 0, v15
s_and_b64 exec, exec, vcc
s_cbranch_execnz L_q_again{n}
L_q_got{n}:
s_mov_b64 exec, -1
s_mov_b32 s89, 0x07060302
v_perm_b32 v16, v17, v16, s89
v_mov_b32 v15, 1
ds_write_b32 v3, v16 offset:{QL}
ds_write_b32 v2, v15 offset:{CNT+16}
s_setprio {svcprio}""")
        stamp(4)
    if bare & 1:
        e("L_svc:\ns_endpgm\nL_svc_x:")
    e(f"""{"" if bare & 1 else "L_svc:"}
s_setprio {svc0}
s_sub_u32 s56, s3, 4
s_mul_i32 s57, s56, 9
s_lshr_b32 s57, s57, 1
v_lshrrev_b32 v8, 3, v0
v_and_b32 v10, 7, v0
v_lshlrev_b32 v10, 4, v10
v_mul_u32_u24 v31, 1152, v8
v_add_u32 v31, v31, v10
s_mov_b32 s58, 0
s_mov_b32 s59, -1
s_sub_u32 s78, s96, 5
s_cmp_lt_u32 s78, 2
s_cbranch_scc1 L_tq
s_and_b32 s78, s49, 1
s_add_u32 s78, s78, 4
s_cmp_ge_u32 s96, s78
s_cbranch_scc1 L_notask
s_mul_i32 s80, s49, 9
s_lshr_b32 s80, s80, 1
s_add_u32 s80, s80, s96
s_lshl_b32 s51, s80, 10
s_add_u32 s51, s51, {GU}
s_cmp_ge_u32 s80, 72
s_cselect_b32 s40, s18, s16
s_cselect_b32 s41, s19, s17
s_cselect_b32 s78, 72, 0
s_mov_b32 s42, {576*9216}
s_sub_u32 s80, s80, s78
s_movk_i32 s50, 9216
s_branch L_task
L_tq:
s_lshl_b32 s80, s49, 1
s_add_u32 s80, s80, s78
s_lshl_b32 s51, s80, 10
s_add_u32 s51, s51, {QW}
s_mov_b32 s40, s10
s_mov_b32 s41, s11
s_mov_b32 s42, {576*8192}
s_movk_i32 s50, 8192
L_task:
s_mov_b32 s43, 0x20000
s_mul_i32 s36, s56, 1152
s_add_u32 s36, s4, s36
s_addc_u32 s37, s5, 0
s_mov_b32 s38, 1152
s_mov_b32 s39, 0x20000
v_lshlrev_b32 v7, 2, v0""")
    if st2 == 1:
        stamp(2)
    for j in range(5):
        e(f"buffer_load_dword v{2+j}, v7, s[36:39], 0 offen offset:{256*j}")
    if swz:
        e("""v_bfe_u32 v9, v0, 4, 1
v_lshlrev_b32 v9, 5, v9
v_xor_b32 v10, v10, v9""")
    e(f"""v_mul_u32_u24 v8, s50, v8
v_add_u32 v8, v8, v10
v_xor_b32 v9, 64, v8
s_lshl_b32 s78, s80, 7
s_mul_i32 s79, s56, 144
s_mul_i32 s79, s79, s50
s_add_u32 s78, s78, s79
s_lshl_b32 s82, s50, 3
s_lshl_b32 s79, s56, 8
s_add_u32 s51, s51, s79
s_mul_i32 s79, s56, {18*1024}""")
    dma(18, "s82", FT, 8, bool(swz))
    if pj0 == 1:
        proj_tiles(53, WOT, WDT)
    if st2 == 4:
        stamp(2)
    e("s_barrier")
    if pj0 == 2:
        proj_tiles(53, WOT, WDT)
    NPJ = 0 if not pj0 else (5 if defer == 2 else 9)
    if st2 == 2:
        stamp(2)
    e(f"s_waitcnt vmcnt({18 + NPJ})")
    if st2 == 3:
        stamp(2)
    def wave_sum(r, t):
        for k in (8, 4, 2, 1):
            e(f"s_nop 1\nv_add_f32_dpp v{r}, v{r}, v{r} row_ror:{k} {DP}")
        for sw in (16, 32):
            e(f"v_mov_b32 v{t}, v{r}\ns_nop 1\nv_permlane{sw}_swap_b32 v{r}, v{t}\ns_nop 0\nv_add_f32 v{r}, v{r}, v{t}")
    def rbf(d, s):
        e(f"v_cvt_pk_bf16_f32 v{d}, v{s}, v{s}\nv_and_b32 v{d}, 0xffff0000, v{d}")
    for j in range(5):
        e(f"v_lshlrev_b32 v{10+2*j}, 16, v{2+j}\nv_and_b32 v{11+2*j}, 0xffff0000, v{2+j}")
    e("v_add_f32 v20, v10, v11")
    for j in range(12, 20):
        e(f"v_add_f32 v20, v20, v{j}")
    wave_sum(20, 21)
    e("v_mul_f32 v20, 0x3ae38e39, v20")
    e("v_cmp_gt_u32 vcc, 32, v0")
    for j in range(10):
        e(f"v_sub_f32 v{22+j if j < 8 else 2+j-8}, v{10+j}, v20")
    e("v_cndmask_b32 v2, 0, v2, vcc\nv_cndmask_b32 v3, 0, v3, vcc")
    e("v_mul_f32 v21, v2, v2\nv_fmac_f32 v21, v3, v3")
    for j in range(8):
        e(f"v_fmac_f32 v21, v{22+j}, v{22+j}")
    wave_sum(21, 22)
    e("v_mul_f32 v21, 0x3ae38e39, v21")
    rbf(21, 21)
    e("v_add_f32 v21, 0x3727c5ac, v21")
    rbf(21, 21)
    e("v_sqrt_f32 v21, v21\ns_nop 0")
    rbf(21, 21)
    e("v_rcp_f32 v21, v21")
    rbf(20, 20)
    for j in range(10):
        e(f"v_sub_f32 v{10+j}, v{10+j}, v20")
    for j in range(5):
        e(f"v_cvt_pk_bf16_f32 v{2+j}, v{10+2*j}, v{11+2*j}")
    for j in range(5):
        e(f"v_lshlrev_b32 v{10+2*j}, 16, v{2+j}\nv_and_b32 v{11+2*j}, 0xffff0000, v{2+j}")
    for j in range(10):
        e(f"v_mul_f32 v{10+j}, v{10+j}, v21")
    for j in range(5):
        e(f"v_cvt_pk_bf16_f32 v{2+j}, v{10+2*j}, v{11+2*j}")
    e("s_mul_i32 s78, s56, 1152\nv_add_u32 v7, s78, v7")
    for j in range(4):
        e(f"ds_write_b32 v7, v{2+j} offset:{XN+256*j}")
    e(f"s_mov_b64 exec, 0xffffffff\nds_write_b32 v7, v6 offset:{XN+1024}\ns_mov_b64 exec, -1")
    e(f"""v_lshrrev_b32 v8, 4, v0
v_lshlrev_b32 v9, 4, v8
v_lshlrev_b32 v8, 3, v8
v_bfe_u32 v10, v0, 2, 2
v_add_u32 v8, v8, v10
v_lshlrev_b32 v8, 7, v8
v_and_b32 v10, 3, v0
v_lshl_add_u32 v8, v10, 3, v8
v_mul_u32_u24 v10, 1152, v10
v_add_u32 v9, v9, v10
s_lshl_b32 s78, s56, 5
v_bfe_u32 v14, v0, 3, 2
v_lshlrev_b32 v14, 5, v14
v_and_b32 v14, {0x60 if swz else 0}, v14
v_xor_b32 v14, s78, v14
v_add_u32 v11, {FT}, v8
v_add_u32 v11, v11, v14
v_add_u32 v12, {9*4096}, v11
v_lshlrev_b32 v13, 2, v0""")
    for r in range(16, 20):
        e(f"v_mov_b32 v{r}, 0")
    e(f"""v_mov_b32 v29, {CNT}
v_mov_b32 v30, 1
s_mov_b32 s83, {spin}
s_waitcnt vmcnt({NPJ}) lgkmcnt(0)
s_add_u32 s94, s94, 1
s_mov_b32 s38, 0xffff0000
s_mov_b32 s39, 0xffff0000
s_mov_b64 exec, 1
ds_add_u32 v29, v30
s_mov_b64 exec, -1
L_wxn:
ds_read_b32 v30, v29
s_sub_u32 s83, s83, 1
s_cbranch_scc1 L_wxn_ok
s_waitcnt lgkmcnt(0)
v_cmp_gt_u32 vcc, 4, v30
s_cbranch_vccnz L_wxn
L_wxn_ok:
s_waitcnt lgkmcnt(0)""")
    stamp(1)
    def rd(s):
        base = 32 + (s % 5) * 8
        e(f"ds_read_b128 v[{base}:{base+3}], v9 offset:{XN+64*s}")
        sg, so = divmod(s, 9)
        e(f"ds_read_b64_tr_b16 v[{base+4}:{base+5}], v{11+sg} offset:{4096*so}")
        e(f"ds_read_b64_tr_b16 v[{base+6}:{base+7}], v{11+sg} offset:{4096*so+512}")
    for s in range(4):
        rd(s)
    for s in range(18):
        e(f"s_waitcnt lgkmcnt({min(3, 17-s)*3})")
        base = 32 + (s % 5) * 8
        e(f"v_mfma_f32_16x16x32_bf16 v[16:19], v[{base}:{base+3}], v[{base+4}:{base+7}], v[16:19]")
        if s + 4 < 18:
            rd(s + 4)
    e("v_mov_b32 v21, s94\ns_mov_b32 s78, 0x07060100\ns_nop 5")
    pick_batch(20, 16)
    e("""v_cvt_pk_bf16_f32 v20, v20, v20
v_perm_b32 v20, v20, v21, s78
buffer_store_dword v20, v13, s[44:47], s51 offen sc1""")
    if not st2:
        stamp(2)
    qfetch()
    if not defer and not pj0:
        proj_tiles(53, WOT, WDT)
    e("s_branch L_tick\nL_notask:")
    if defer != 1:
        all_proj()
    e("s_barrier\ns_waitcnt lgkmcnt(0)\ns_add_u32 s94, s94, 1\ns_mov_b32 s38, 0xffff0000\ns_mov_b32 s39, 0xffff0000")
    qfetch()
    e(f"""L_tick:
s_cmp_lg_u32 s56, 3
s_cbranch_scc1 L_gu
s_cmp_ge_u32 s2, 128
s_cbranch_scc1 L_gu
s_lshl_b32 s79, s94, 16
v_mov_b32 v3, s79
v_lshlrev_b32 v2, 2, v0
s_mov_b64 exec, 0xffffffff
s_lshl_b32 s79, s2, 7
s_add_u32 s79, s79, {CW}
buffer_store_dword v3, v2, s[44:47], s79 offen sc1
s_mov_b64 exec, -1""")
    e(f"""L_gu:
v_min_u32 v8, 35, v0
v_lshrrev_b32 v9, 2, v8
v_lshlrev_b32 v9, 8, v9
v_and_b32 v24, 3, v8
v_lshl_add_u32 v24, v24, 4, v9
v_lshlrev_b32 v26, 3, v8
s_mul_i32 s78, s56, 288
v_add_u32 v26, s78, v26
s_mul_i32 s78, s52, 2304
s_lshl_b32 s79, s56, 6
s_add_u32 s78, s78, s79
s_add_u32 s78, s78, {GU}
s_add_u32 s79, s78, 73728
v_mov_b32 v29, {CNT}
s_mov_b32 s83, {spin}
{"" if hsleep else "s_setprio 0"}
L_late:
{f"s_sleep {hsleep}" if hsleep else ""}
ds_read_b32 v30, v29 offset:8
s_sub_u32 s83, s83, 1
s_cbranch_scc1 L_late_ok
s_waitcnt lgkmcnt(0)
v_cmp_eq_u32 vcc, 0, v30
s_cbranch_vccnz L_late
L_late_ok:
s_setprio {svcprio}
s_waitcnt lgkmcnt(0)
s_mov_b32 s83, {spin}
L_ph:
buffer_load_dwordx4 v[32:35], v24, s[44:47], s78 offen sc1
buffer_load_dwordx4 v[36:39], v24, s[44:47], s79 offen sc1
s_sub_u32 s83, s83, 1
s_cbranch_scc1 L_ph_done
s_waitcnt vmcnt(0)
v_xor_b32 v8, s94, v32""")
    for r in range(33, 40):
        e(f"v_bitop3_b32 v8, v8, v{r}, s94 {OR_XOR}")
    e("""v_and_b32 v8, 0xffff, v8
v_cmp_ne_u32 vcc, 0, v8
s_cbranch_vccnz L_ph
L_ph_done:
s_waitcnt vmcnt(0)""")
    for r in range(32, 40):
        e(f"v_and_b32 v{r}, 0xffff0000, v{r}")
    e("s_mov_b32 s78, 0x3d372713\ns_mov_b32 s79, 0xc0135761")
    for r in range(4):
        g = 32 + r; t = 40 + r
        e(f"""v_mul_f32 v{t}, v{g}, v{g}
v_mul_f32 v{t}, v{t}, v{g}
v_fma_f32 v{t}, v{t}, s78, v{g}
v_mul_f32 v{t}, s79, v{t}
v_exp_f32 v{t}, v{t}
s_nop 0
v_add_f32 v{t}, 1.0, v{t}
v_rcp_f32 v{t}, v{t}
s_nop 0
v_mul_f32 v{t}, v{t}, v{g}""")
        rbf(t, t)
        e(f"v_mul_f32 v{t}, v{t}, v{36+r}")
    e(f"""v_cvt_pk_bf16_f32 v16, v40, v41
v_cvt_pk_bf16_f32 v17, v42, v43
ds_write_b64 v26, v[16:17] offset:{HL}""")
    stamp(3)
    e(f"""v_lshrrev_b32 v8, 4, v0
v_bfe_u32 v10, v0, 2, 2
v_lshl_add_u32 v11, v8, 2, v10
v_lshl_add_u32 v10, v8, 3, v10
v_lshlrev_b32 v10, 7, v10
v_lshlrev_b32 v11, 7, v11
v_and_b32 v12, 3, v0
v_lshlrev_b32 v13, 3, v12
s_lshl_b32 s78, s56, 5
v_add3_u32 v10, v10, v13, s78
v_add3_u32 v11, v11, v13, s78
v_add_u32 v4, {WDT}, v10
v_add_u32 v5, {WDT+128*128}, v11
v_add_u32 v6, {WOT}, v10
v_add_u32 v100, {FT+16384}, v10
v_add_u32 v101, {FT+16384+128*128}, v11
v_add_u32 v102, {FT}, v10
v_mul_u32_u24 v13, 288, v12
v_lshl_add_u32 v7, v8, 3, v13
v_lshl_add_u32 v3, v8, 4, v13
v_lshlrev_b32 v12, 8, v12
v_lshl_add_u32 v30, v8, 4, v12
s_lshl_b32 s79, s56, 9
v_lshl_add_u32 v112, v0, 3, s79
v_and_b32 v113, 7, v0
v_lshlrev_b32 v113, {6 + mlw}, v113
s_lshl_b32 s79, s56, {4 + mlw}
v_add_u32 v113, s79, v113
s_lshl_b32 s88, s52, 14
s_add_u32 s88, s88, {PO}
s_add_u32 s89, s88, 4096
s_add_u32 s90, s88, 8192
s_add_u32 s91, s88, 12288
s_lshl_b32 s92, s52, {9 + mlw}
s_add_u32 s92, s92, {PM}
v_and_b32 v29, 15, v0
v_lshlrev_b32 v29, 4, v29
v_lshl_add_u32 v29, v8, 2, v29
s_lshl_b32 s79, s56, 8
v_add_u32 v29, s79, v29
v_lshlrev_b32 v114, 2, v0
s_lshl_b32 s93, s52, 10
s_add_u32 s93, s93, s79
s_add_u32 s93, s93, {YW}
s_add_u32 s87, s93, {8*32768}
s_lshl_b32 s79, s53, 15
s_add_u32 s93, s93, s79
s_movk_i32 s82, 0xff
v_mov_b32 v115, s94""")
    for r in list(range(24, 28)) + list(range(116, 120)):
        e(f"v_mov_b32 v{r}, 0")
    e("s_waitcnt vmcnt(0) lgkmcnt(0)")
    if trig:
        e(f"""v_mov_b32 v8, {CNT}
s_mov_b32 s83, {spin}
L_wtr:
s_sleep 2
ds_read_b32 v9, v8 offset:12
s_sub_u32 s83, s83, 1
s_cbranch_scc1 L_wtr_ok
s_waitcnt lgkmcnt(0)
v_cmp_eq_u32 vcc, 0, v9
s_cbranch_vccnz L_wtr
L_wtr_ok:""")
        all_proj(True)
    e(f"""s_mov_b32 s83, {spin}
s_barrier""")
    stamp(5)
    if notail:
        e("s_barrier\ns_branch L_done")
    P = [10 + 2 * s if s < 7 else 120 for s in range(8)]
    def gather(first):
        e("buffer_load_dwordx4 v[124:127], v113, s[44:47], s92 offen sc1")
        for s in range(8):
            if not first:
                e(f"s_bitcmp1_b32 s86, {s}\ns_cbranch_scc1 L_g{s}")
            e(f"buffer_load_dwordx2 v[{P[s]}:{P[s]+1}], v112, s[44:47], s{88+s//2} offen offset:{2048*(s&1)} sc1")
            if not first:
                e(f"L_g{s}:")
    def hid_frags():
        for s in range(4):
            e(f"ds_read_b128 v[{48+4*s}:{51+4*s}], v3 offset:{HL+64*s}")
        e(f"ds_read_b64 v[66:67], v7 offset:{HL+256}")
    def wd_frags(va, vb):
        for s in range(4):
            e(f"ds_read_b64_tr_b16 v[{32+4*s}:{33+4*s}], v{va} offset:{4096*s}")
            e(f"ds_read_b64_tr_b16 v[{34+4*s}:{35+4*s}], v{va} offset:{4096*s+512}")
        e(f"ds_read_b64_tr_b16 v[64:65], v{vb}")
    def down_mfma(acc):
        for s in range(4):
            e(f"v_mfma_f32_16x16x32_bf16 v[{acc}:{acc+3}], v[{48+4*s}:{51+4*s}], v[{32+4*s}:{35+4*s}], v[{acc}:{acc+3}]")
        e(f"s_nop 5\nv_mfma_f32_16x16x16_bf16 v[{acc}:{acc+3}], v[66:67], v[64:65], v[{acc}:{acc+3}]")
    def wo_frags(vo, wob):
        for s in range(4):
            e(f"ds_read_b64_tr_b16 v[{wob+4*s}:{wob+1+4*s}], v{vo} offset:{4096*s}")
            e(f"ds_read_b64_tr_b16 v[{wob+2+4*s}:{wob+3+4*s}], v{vo} offset:{4096*s+512}")
    def down_all(tag):
        wd_frags(4, 5)
        e("s_waitcnt lgkmcnt(0)")
        down_mfma(24)
        if defer != 2:
            wo_frags(6, 68)
        e(f"s_cmp_eq_u32 s98, 0\ns_cbranch_scc1 L_dn{tag}\ns_waitcnt lgkmcnt(0)")
        wd_frags(100, 101)
        e("s_waitcnt lgkmcnt(0)")
        down_mfma(116)
        if defer != 2:
            wo_frags(102, 84)
        e(f"L_dn{tag}:")
    gather(True)
    if defer and not trig:
        all_proj(True)
    hid_frags()
    if defer != 1:
        down_all(0)
    e("s_branch L_h1\nL_h1_again:\ns_mov_b32 s86, 0")
    for s in range(8):
        e(f"""v_xor_b32 v122, s94, v{P[s]}
v_bitop3_b32 v122, v122, v{P[s]+1}, s94 {OR_XOR}
v_and_b32 v122, 0xff, v122
v_cmp_ne_u32 vcc, 0, v122
s_cmp_eq_u64 vcc, 0
s_cselect_b32 s84, {1 << s}, 0
s_or_b32 s86, s86, s84""")
    gather(False)
    e("""L_h1:
s_sub_u32 s83, s83, 1
s_cbranch_scc1 L_h1_done
s_waitcnt vmcnt(0)
v_xor_b32 v122, s94, v10
v_xor_b32 v123, s94, v11""")
    for r in list(range(12, 24)) + [120, 121]:
        e(f"v_bitop3_b32 v{122+(r&1)}, v{122+(r&1)}, v{r}, s94 {OR_XOR}")
    e(f"""v_or_b32 v122, v122, v123
v_and_b32 v122, 0xff, v122
v_bitop3_b32 v122, v122, v126, s94 {OR_XOR}
v_bitop3_b32 v122, v122, v127, s94 {OR_XOR}
v_mov_b32 v8, v124
v_mov_b32 v9, v125
v_cmp_ne_u32 vcc, 0, v122
s_cbranch_vccnz L_h1_again
L_h1_done:""")
    stamp(6)
    e(f"""v_max_f32_dpp v122, v8, v8 quad_perm:[1,0,3,2] {DP}
s_nop 1
v_max_f32_dpp v122, v122, v122 quad_perm:[2,3,0,1] {DP}
s_nop 1
v_max_f32_dpp v122, v122, v122 row_half_mirror {DP}
v_sub_f32 v8, v8, v122
v_mul_f32 v8, s85, v8
v_exp_f32 v8, v8
s_nop 0
v_mul_f32 v9, v9, v8
s_nop 0
v_mul_f32_dpp v122, v8, v10 row_newbcast:0 {DP}
v_add_f32_dpp v9, v9, v9 quad_perm:[1,0,3,2] {DP}
v_mul_f32_dpp v123, v8, v11 row_newbcast:0 {DP}
v_fmac_f32_dpp v122, v8, v12 row_newbcast:1 {DP}
v_add_f32_dpp v9, v9, v9 quad_perm:[2,3,0,1] {DP}
v_fmac_f32_dpp v123, v8, v13 row_newbcast:1 {DP}
v_fmac_f32_dpp v122, v8, v14 row_newbcast:2 {DP}
v_add_f32_dpp v9, v9, v9 row_half_mirror {DP}
v_fmac_f32_dpp v123, v8, v15 row_newbcast:2 {DP}
v_rcp_f32 v9, v9""")
    for s in range(3, 8):
        e(f"v_fmac_f32_dpp v122, v8, v{P[s]} row_newbcast:{s} {DP}")
        e(f"v_fmac_f32_dpp v123, v8, v{P[s]+1} row_newbcast:{s} {DP}")
    e(f"""v_mul_f32 v122, v122, v9
v_mul_f32 v123, v123, v9
v_cvt_pk_bf16_f32 v122, v122, v123
ds_write_b32 v29, v122 offset:{OL}
s_waitcnt lgkmcnt(0)
s_barrier""")
    OF = 8 if defer else 48
    for s in range(4):
        e(f"ds_read_b128 v[{OF+4*s}:{OF+3+4*s}], v30 offset:{OL+64*s}")
    if defer == 1:
        down_all(1)
        e("s_waitcnt lgkmcnt(0)")
    if defer == 2:
        wo_frags(6, 68)
        e("s_cmp_eq_u32 s98, 0\ns_cbranch_scc1 L_wf\ns_waitcnt lgkmcnt(0)")
        wo_frags(102, 84)
        e("L_wf:\ns_waitcnt lgkmcnt(0)")
    for s in range(4):
        if not defer:
            e(f"s_waitcnt lgkmcnt({3-s})")
        e(f"v_mfma_f32_16x16x32_bf16 v[24:27], v[{OF+4*s}:{OF+3+4*s}], v[{68+4*s}:{71+4*s}], v[24:27]")
    e("s_cmp_eq_u32 s98, 0\ns_cbranch_scc1 L_y1")
    for s in range(4):
        e(f"v_mfma_f32_16x16x32_bf16 v[116:119], v[{OF+4*s}:{OF+3+4*s}], v[{84+4*s}:{87+4*s}], v[116:119]")
    e("s_nop 7")
    pick_batch(116, 116)
    e("""v_bfi_b32 v116, s82, v115, v116
buffer_store_dword v116, v114, s[44:47], s87 offen sc1
L_y1:
s_nop 7""")
    pick_batch(24, 24)
    e("""v_bfi_b32 v24, s82, v115, v24
buffer_store_dword v24, v114, s[44:47], s93 offen sc1
L_done:
s_mov_b64 exec, -1""")
    if stamps:
        e("s_waitcnt vmcnt(0)")
        stamp(7)
        e(f"""s_lshl_b32 s78, s2, {2 if bare & 8 else 3}
s_add_u32 s78, s78, s3
s_lshl_b32 s78, s78, 6
s_add_u32 s78, s78, {STAMP}
s_getreg_b32 s79, hwreg(HW_REG_XCC_ID, 0, 4)
v_mov_b32 v1, s78""")
        for k in range(8):
            e(f"v_mov_b32 v{4+k}, s{60+2*k}")
        e("""v_mov_b32 v12, s97
v_mov_b32 v13, s79
global_store_dwordx4 v1, v[4:7], s[26:27]
global_store_dwordx4 v1, v[8:11], s[26:27] offset:16
global_store_dwordx2 v1, v[12:13], s[26:27] offset:32""")
    e(f"""L_end:
s_endpgm
.section .rodata,"a"
.p2align 6
.amdhsa_kernel {KN}
  .amdhsa_next_free_vgpr {NV}
  .amdhsa_next_free_sgpr 100
  .amdhsa_accum_offset {(NV+3)//4*4}
  .amdhsa_group_segment_fixed_size 0
  .amdhsa_kernarg_size 96
  .amdhsa_user_sgpr_count 2
  .amdhsa_user_sgpr_kernarg_segment_ptr 1
  .amdhsa_system_sgpr_workgroup_id_x 1
  .amdhsa_float_denorm_mode_32 3
.end_amdhsa_kernel""")
    out = []
    for ln in e.o:
        if ln.rstrip().endswith(" sc1") and "buffer_store" in ln:
            ln = ln.rstrip()[:-3] + stf
        elif ln.rstrip().endswith(" sc1") and "buffer_load" in ln:
            ln = ln.rstrip()[:-3] + ldf
        out.append(ln)
    e.o = out
    return HEADER + e.text()

if __name__ == "__main__":
    kw = eval("dict(%s)" % (sys.argv[1] if len(sys.argv) > 1 else ""))
    sys.stdout.write(gen(**kw))
```

```python
import sys
KN = "parallel_sum__mha_block_cached__geglu_ffn__decode_kernel"

PO = 0x20000
PM = 0xA0000
YW = 0xB0000
QW = 0x100000
GU = 0x180000
CW = 0x1A8000
SCW = 0x200000
EW = 0x600000
WS_SIZE = 0x600080
STAMP = 0x700000
XN = 0; HL = 5632; OL = 6912; CNT = 7936; QL = 8192
FT = 12288; WOT = 86016; WDT = 102400
SCL = 120832
LDS_SIZE = 129024

LOG2E = 0x3fb8aa3b
SCALE = 0x3db504f3
DP = "row_mask:0xf bank_mask:0xf"
OR_XOR = "bitop3:0xf6"

HEADER = """; Kernarg layout for this problem (96 bytes, ptrs only, base s[0:1]):
"""

class A:
    def __init__(self):
        self.o = []
    def __call__(self, s):
        for ln in s.strip("\n").split("\n"):
            ln = ln.strip()
            if ln:
                self.o.append(ln if ln.endswith(":") or ln.startswith((".", ";")) else "    " + ln)
    def text(self):
        return "\n".join(self.o) + "\n"

def gen(R=4, S=24, v2=24, v4=0, k4=0, wflag="nt", kvflag="nt", stamps=0, spin=1 << 20, svcprio=1, svc0=3,
        bal=1, noq=0, notail=0, pj0=2, swz=1, mlw=3, stf="sc1", ldf="sc1", nopub=0, rot=0, alt=0, lay=1, mix=0, mul=1, pubf="sc1 ", scf="sc1 "):
    hsleep = defer = trig = st2 = bare = 0
    eearly = 1
    e = A()
    PM = 0xA0000 if mlw == 0 else 0x120000
    S1 = S2 = S
    assert S % 2 == 0 and R % 2 == 0 and S > 2 * R + 2
    LIM1 = 128 - 4 * S1
    LIM2 = 128 - 4 * S2
    def stamp(k):
        if stamps and not (bare & 16 and k in (1, 3, 4, 6)):
            e(f"s_memrealtime s[{60+2*k}:{61+2*k}]\ns_waitcnt lgkmcnt(0)")
    KB = 32
    SB = KB + R * 32
    NV = (SB + R + 3) // 4 * 4
    e(f"; @launch grid=(256,1,1) block=({256 if bare & 8 else 512},1,1) lds={LDS_SIZE}")
    e(f""".amdgcn_target "amdgcn-amd-amdhsa--gfx950"
.text
.globl {KN}
.p2align 8
.type {KN},@function
{KN}:
s_cmp_ge_u32 s2, 256
s_cbranch_scc1 L_end
s_load_dwordx16 s[4:19], s[0:1], 0
s_load_dwordx8 s[20:27], s[0:1], 64""")
    if stamps:
        for k in range(8):
            e(f"s_mov_b32 s{60+2*k}, 0")
        e("s_mov_b32 s97, 0")
    stamp(0)
    e("""v_lshrrev_b32 v1, 6, v0
v_and_b32 v0, 63, v0
v_readfirstlane_b32 s3, v1
s_and_b32 s48, s2, 7
s_lshr_b32 s49, s2, 3""")
    if bal == 0:
        e("""s_and_b32 s52, s49, 3
s_lshl_b32 s53, s48, 2
s_add_u32 s52, s52, s53
s_lshr_b32 s53, s2, 5
s_add_u32 s96, s48, s53
s_and_b32 s96, s96, 7
s_cmp_eq_u32 s96, 7
s_cselect_b32 s98, 1, 0""")
    else:
        e("""s_bfe_u32 s52, s49, 0x20001
s_lshl_b32 s53, s48, 2
s_add_u32 s52, s52, s53
s_lshr_b32 s53, s49, 3
s_lshl_b32 s53, s53, 1
s_add_u32 s96, s48, s53
s_and_b32 s96, s96, 7
s_and_b32 s78, s49, 1
s_add_u32 s53, s53, s78
s_lshl_b32 s79, 1, s96
s_and_b32 s79, s79, 0x90
s_cselect_b32 s98, 1, 0
s_andn2_b32 s98, s98, s78""")
    e(f"""v_lshlrev_b32 v1, 4, v0
s_mov_b32 s85, {LOG2E}
v_mov_b32 v8, {CNT}
v_mov_b32 v10, 0
v_mov_b32 v11, 0
v_mov_b32 v12, 0
v_mov_b32 v13, 0
s_cmp_lg_u32 s3, 0
s_cbranch_scc1 L_b0
ds_write_b128 v8, v[10:13]
ds_write_b128 v8, v[10:13] offset:16
L_b0:
s_waitcnt lgkmcnt(0)
s_mov_b32 s94, {EW}
{"" if bare & 2 else "s_load_dword s94, s[26:27], s94"}
s_mov_b32 s44, s26
s_mov_b32 s45, s27
s_mov_b32 s46, {WS_SIZE}
s_mov_b32 s47, 0x20000
s_cmp_ge_u32 s3, 4
s_cbranch_scc1 L_svc""")

    e(f"""s_add_u32 s56, s3, s48
s_and_b32 s56, s56, 3
s_lshl_b32 s58, s56, 5
s_add_u32 s58, s58, s49
s_lshl_b32 s59, s58, 21
s_add_u32 s28, s6, s59
s_addc_u32 s29, s7, 0
s_mov_b32 s30, {2<<20}
s_mov_b32 s31, 0x20000
s_add_u32 s32, s8, s59
s_addc_u32 s33, s9, 0
s_and_b32 s50, s48, 1
{"s_mov_b32 s51, 0" if mix else ("s_and_b32 s51, s48, 6" if alt else "s_lshr_b32 s51, s48, 1")}
s_lshl_b32 s54, s50, 13
s_mul_i32 s82, s58, {rot}
s_and_b32 s82, s82, 127
s_lshl_b32 s82, s82, 14
s_lshl_b32 s34, s58, 14
s_add_u32 s34, s34, {SCW}
s_lshl_b32 s58, s58, 7
s_add_u32 s58, s58, {CW}
s_add_u32 s36, s26, s58
s_addc_u32 s37, s27, 0
s_lshl_b32 s35, s3, 11
s_add_u32 s35, s35, {SCL}
""")
    if lay:
        e("""v_bfe_u32 v3, v0, 4, 1
v_lshlrev_b32 v3, 15, v3
v_bfe_u32 v2, v0, 5, 1
v_lshl_or_b32 v3, v2, 8, v3
v_and_b32 v2, 15, v0
v_lshl_or_b32 v2, v2, 4, v3""")
    else:
        e("v_add_u32 v2, 4096, v1")
    e("s_barrier")
    def baddr(src):
        if not lay:
            return f"s_lshl_b32 s76, {src}, 14\ns_add_u32 s76, s76, s54"
        return f"""s_lshr_b32 s76, {src}, 2
s_lshl_b32 s76, s76, 16
s_and_b32 s92, {src}, 1
s_lshl_b32 s92, s92, 12
s_add_u32 s76, s76, s92
s_and_b32 s92, {src}, 2
s_lshl_b32 s92, s92, 13
s_add_u32 s76, s76, s92
s_add_u32 s76, s76, s54"""
    def issue(u):
        if rot:
            e("s_add_u32 s76, s76, s82\ns_and_b32 s76, s76, 0x1fffff")
        for j in range(8):
            r = KB + u * 32 + j * 4
            if lay:
                e(f"buffer_load_dwordx4 v[{r}:{r+3}], v2, s[28:31], s76 offen offset:{j*512} {kvflag}")
            else:
                e(f"buffer_load_dwordx4 v[{r}:{r+3}], v{1 + (j >> 2)}, s[28:31], s76 offen offset:{(j&3)*1024} {kvflag}")
    if mix:
        snext = """s_add_u32 s76, s51, s48
s_and_b32 s76, s76, 7
s_lshl_b32 s92, s51, 3
s_add_u32 s76, s76, s92
s_lshl_b32 s76, s76, 13
s_add_u32 s51, s51, 1"""
    else:
        snext = baddr("s51") + "\n" + ("s_bitcmp1_b32 s51, 0\ns_cselect_b32 s92, 7, 1\ns_add_u32 s51, s51, s92" if alt else "s_add_u32 s51, s51, 4")
    for u in range(R):
        e(snext + f"\ns_add_u32 s{10+u}, s35, {64*u}")
        issue(u)
    stamp(1)
    e(f"""s_lshl_b32 s78, s56, 2
v_mov_b32 v9, s78
v_and_b32 v3, 15, v0
v_lshlrev_b32 v3, 4, v3
s_lshl_b32 s78, s56, 8
v_add_u32 v3, s78, v3
s_mov_b32 s83, {spin}
L_qw:
ds_read_b32 v8, v9 offset:{CNT+16}
ds_read_b128 v[4:7], v3 offset:{QL}
s_sub_u32 s83, s83, 1
s_cbranch_scc1 L_q_ok
s_waitcnt lgkmcnt(0)
v_cmp_eq_u32 vcc, 0, v8
{"" if noq else "s_cbranch_vccnz L_qw"}
L_q_ok:
s_waitcnt lgkmcnt(0)
s_add_u32 s94, s94, 1""")
    stamp(3)
    for r in range(8, 16):
        e(f"v_mov_b32 v{r}, 0")
    e(f"""v_mov_b32 v16, 0xff7fffff
v_mov_b32 v17, 0
s_mov_b32 s84, {SCALE}
s_mov_b32 s86, 0xffff0000
s_and_b32 s95, s94, 0xfff
v_and_b32 v28, 0x3c, v0
v_lshlrev_b32 v3, 1, v28
v_lshrrev_b32 v30, 1, v0
v_lshlrev_b32 v30, 2, v30
v_and_b32 v31, 1, v0
v_add_lshl_u32 v30, v30, v31, 2
v_lshlrev_b32 v31, 2, v0
s_mov_b32 s87, {R}
s_mov_b32 s88, {R}
s_mov_b32 s77, 0
s_mov_b32 s55, 0
s_mov_b32 s89, 0
s_mov_b32 s99, 0
s_mov_b32 s80, 0xaaaaaaaa
s_mov_b32 s81, 0xaaaaaaaa
s_mov_b32 s83, {spin}""")
    def boundary_out(ph, u, have, none):
        S = (S1, S2)[ph]; LIM = (LIM1, LIM2)[ph]
        nm = f"{ph}{have}"
        e(f"""L_need{nm}:
s_cmp_ge_u32 s87, {S}
s_cbranch_scc1 L_dyn{nm}
{snext}
s_lshl_b32 s42, s87, 6
s_add_u32 s42, s42, s35
s_add_u32 s87, s87, 1""")
        if ph == 0:
            e(f"""s_cmp_lg_u32 s87, {S}
s_cbranch_scc1 {have}_go
v_mov_b32 v26, {CNT}
v_mov_b32 v27, 1
ds_write_b32 v26, v27 offset:8""")
        else:
            e(f"""s_cmp_lg_u32 s87, {2*R+2}
s_cbranch_scc1 {have}_go
s_mov_b32 s90, 0x10000
s_atomic_add s90, s[36:37], 4""")
        e(f"s_branch {have}_go\nL_dyn{nm}:")
        if LIM == 0:
            e(f"s_branch {none}")
            return
        e(f"""L_early{nm}:
s_sub_u32 s83, s83, 1
s_cbranch_scc1 {none}""")
        if ph == 0:
            e(f"s_cmp_lt_u32 s55, {k4}\ns_cselect_b32 s91, 4, 2")
        else:
            e(f"s_cmp_lt_u32 s55, {v2}\ns_cselect_b32 s91, 2, 1")
            if v4:
                e(f"s_cmp_lt_u32 s55, {v4}\ns_cselect_b32 s91, 4, s91")
        e(f"""s_lshl_b32 s93, s50, 3
s_lshl_b32 s90, s91, s93
s_atomic_add s90, s[36:37], {4*ph} glc
s_waitcnt lgkmcnt(0)
s_lshr_b32 s92, s90, 20
s_cmp_lg_u32 s92, s95
s_cbranch_scc1 L_early{nm}
s_lshr_b32 s55, s90, s93
s_and_b32 s55, s55, 0xff
s_cmp_lt_u32 s55, {LIM}
s_cbranch_scc1 L_got{nm}
s_cmp_eq_u32 s89, 1
s_cbranch_scc1 {none}
s_xor_b32 s93, s93, 8
s_lshr_b32 s55, s90, s93
s_and_b32 s55, s55, 0xff
s_cmp_ge_u32 s55, {LIM}
s_cbranch_scc1 {none}
s_mov_b32 s89, 1
s_xor_b32 s50, s50, 1
s_xor_b32 s54, s54, 0x2000
s_branch L_early{nm}
L_got{nm}:""")
        if ph == 1 and not nopub:
            e(f"""L_vd{nm}:
s_bfe_u32 s92, s90, 0x40010
s_cmp_ge_u32 s92, 8
s_cbranch_scc1 L_vok{nm}
s_sub_u32 s83, s83, 1
s_cbranch_scc1 L_vok{nm}
s_mov_b32 s90, 0
s_atomic_add s90, s[36:37], 4 glc
s_waitcnt lgkmcnt(0)
s_branch L_vd{nm}
L_vok{nm}:""")
        e(f"""s_sub_u32 s77, {LIM}, s55
s_min_u32 s77, s77, s91
s_add_u32 s57, s55, {4*S}
s_mul_i32 s91, s91, {mul}
s_add_u32 s55, s55, s91""")
        if stamps:
            e(f"s_lshl_b32 s92, s77, {16*ph}\ns_add_u32 s97, s97, s92")
        e(f"s_branch {have}")
    def boundary_in(ph, have):
        e(f"""s_cmp_eq_u32 s77, 0
s_cbranch_scc1 L_need{ph}{have}
{have}:
s_sub_u32 s77, s77, 1
{baddr("s57")}
s_lshr_b32 s42, s57, 1
s_lshl_b32 s42, s42, 8
s_lshr_b32 s92, s54, 6
s_add_u32 s42, s42, s92
s_and_b32 s92, s57, 1
s_lshl_b32 s92, s92, {2*ph}
s_and_b32 s92, s92, 4
s_add_u32 s42, s42, s92
s_add_u32 s42, s42, s34
s_add_u32 s57, s57, 1
{have}_go:""")
    nf = [0]
    def score_fetch(u):
        n = nf[0]; nf[0] += 1
        r = SB + u
        e(f"""s_cmp_ge_u32 s42, {SCW}
s_cbranch_scc1 L_sf{n}
v_add_u32 v26, s42, v28
ds_read_b32 v{r}, v26
s_branch L_sg{n}
L_sf{n}:
{"" if nopub & 2 else f"buffer_load_dword v{r}, v3, s[44:47], s42 offen {scf};"}
L_sg{n}:""")
    def kstep(u, nextv):
        k = KB + u * 32
        e(f"s_waitcnt vmcnt({8*(R-1)})")
        for j in range(8):
            e(f"v_dot2_f32_bf16 v{18+j}, v{k+4*j}, v4, 0")
        for i in range(1, 4):
            for j in range(8):
                e(f"v_dot2c_f32_bf16 v{18+j}, v{k+4*j+i}, v{4+i}")
        e(f"s_mov_b32 s43, s{10+u}")
        if nextv:
            score_fetch(u)
        else:
            e(f"s_mov_b32 s{10+u}, s42")
        issue(u)
        n = nf[0]; nf[0] += 1
        e(f"""v_add_f32_dpp v26, v18, v18 row_ror:8 row_mask:0xf bank_mask:0x3
v_add_f32_dpp v27, v20, v20 row_ror:8 row_mask:0xf bank_mask:0x3
v_add_f32_dpp v26, v19, v19 row_ror:8 row_mask:0xf bank_mask:0xc
v_add_f32_dpp v27, v21, v21 row_ror:8 row_mask:0xf bank_mask:0xc
v_add_f32_dpp v20, v22, v22 row_ror:8 row_mask:0xf bank_mask:0x3
v_add_f32_dpp v21, v24, v24 row_ror:8 row_mask:0xf bank_mask:0x3
v_add_f32_dpp v20, v23, v23 row_ror:8 row_mask:0xf bank_mask:0xc
v_add_f32_dpp v21, v25, v25 row_ror:8 row_mask:0xf bank_mask:0xc
v_add_f32_dpp v18, v26, v26 row_half_mirror row_mask:0xf bank_mask:0x5
v_add_f32_dpp v18, v27, v27 row_half_mirror row_mask:0xf bank_mask:0xa
v_add_f32_dpp v19, v20, v20 row_half_mirror row_mask:0xf bank_mask:0x5
v_add_f32_dpp v19, v21, v21 row_half_mirror row_mask:0xf bank_mask:0xa
s_nop 0
v_add_f32_dpp v18, v18, v18 quad_perm:[1,0,3,2] {DP}
v_add_f32_dpp v19, v19, v19 quad_perm:[1,0,3,2] {DP}
s_nop 0
v_add_f32_dpp v18, v18, v18 quad_perm:[2,3,0,1] {DP}
v_add_f32_dpp v19, v19, v19 quad_perm:[2,3,0,1] {DP}
v_cvt_pk_bf16_f32 v18, v18, v19
v_lshlrev_b32 v20, 16, v18
v_and_b32 v21, s86, v18
v_mul_f32 v20, s84, v20
v_mul_f32 v21, s84, v21
v_cvt_pk_bf16_f32 v18, v20, v21
s_cmp_ge_u32 s43, {SCW}
s_cbranch_scc1 L_pub{n}
v_add_u32 v26, s43, v28
ds_write_b32 v26, v18
s_branch L_pe{n}
L_pub{n}:""")
        if u % 2 == 0:
            e("v_mov_b32 v29, v18")
        else:
            e(f"""v_cndmask_b32 v18, v29, v18, s[80:81]
ds_bpermute_b32 v19, v30, v18
s_mov_b64 exec, 0xffffffff
s_waitcnt lgkmcnt(0)
{"" if nopub & 1 else f"buffer_store_dword v19, v31, s[44:47], s43 offen {pubf};"}
s_mov_b64 exec, -1""")
        e(f"L_pe{n}:")
    nw = [0]
    def vstep(u, last):
        v = KB + u * 32
        r = SB + u
        n = nw[0]; nw[0] += 1
        if not last:
            e(f"s_waitcnt vmcnt({8*(R-1)}) lgkmcnt(0)")
        else:
            for j in range(R - 1, 0, -1):
                e(f"s_cmp_lg_u32 s88, {j}\ns_cbranch_scc1 L_w{n}_{j}\ns_waitcnt vmcnt({8*j}) lgkmcnt(0)\ns_branch L_w{n}\nL_w{n}_{j}:")
            e(f"s_waitcnt vmcnt(0) lgkmcnt(0)\nL_w{n}:")
        e(f"""v_lshlrev_b32 v20, 16, v{r}
v_and_b32 v21, s86, v{r}
v_max_f32 v22, v20, v21
s_nop 1
v_max_f32_dpp v22, v22, v22 row_ror:8 {DP}
s_nop 1
v_max_f32_dpp v22, v22, v22 row_ror:4 {DP}
v_max_f32 v22, v16, v22
v_sub_f32 v20, v20, v22
v_sub_f32 v21, v21, v22
v_sub_f32 v24, v16, v22
v_mul_f32 v20, s85, v20
v_mul_f32 v21, s85, v21
v_mul_f32 v24, s85, v24
v_exp_f32 v20, v20
v_exp_f32 v21, v21
v_exp_f32 v24, v24
v_mov_b32 v16, v22
v_cvt_pk_bf16_f32 v18, v20, 0
v_cvt_pk_bf16_f32 v22, v21, 0
v_fma_f32 v17, v17, v24, v20
v_lshlrev_b32 v19, 16, v18
v_lshlrev_b32 v23, 16, v22
v_add_f32 v17, v17, v21""")
        for i in range(4):
            e(f"v_pk_mul_f32 v[{8+2*i}:{9+2*i}], v[{8+2*i}:{9+2*i}], v[24:25] op_sel_hi:[1,0]")
        for j in range(8):
            ln = (0, 8, 4, 12)[j & 3]
            p = 18 + 4 * (j >> 2)
            for i in range(4):
                e(f"v_dot2c_f32_bf16_dpp v{8+2*i}, v{p}, v{v+4*j+i} row_newbcast:{ln} {DP}")
                e(f"v_dot2c_f32_bf16_dpp v{9+2*i}, v{p+1}, v{v+4*j+i} row_newbcast:{ln} {DP}")
        if not last:
            score_fetch(u)
            issue(u)
    late = []
    e("L_A0:")
    for u in range(R):
        if u:
            e(f"L_A{u}:")
        boundary_in(0, f"L_ha{u}")
        kstep(u, False)
    e("s_branch L_A0")
    for u in range(R):
        e(f"L_B{u}:")
        boundary_in(1, f"L_hb{u}")
        kstep(u, True)
        e(f"s_sub_u32 s88, s88, 1\ns_cmp_eq_u32 s88, 0\ns_cbranch_scc1 L_C{(u+1)%R}")
    e("s_branch L_B0")
    for u in range(R):
        e(f"L_C{u}:")
        boundary_in(1, f"L_hc{u}")
        vstep(u, False)
    e("s_branch L_C0")
    for u in range(R):
        boundary_out(0, u, f"L_ha{u}", f"L_sw{u}")
        e(f"""L_sw{u}:
s_mov_b32 s28, s32
s_mov_b32 s29, s33
s_and_b32 s50, s48, 1
{"s_mov_b32 s51, 0" if mix else ("s_and_b32 s51, s48, 6" if alt else "s_lshr_b32 s51, s48, 1")}
s_lshl_b32 s54, s50, 13
s_mov_b32 s87, 0
s_mov_b32 s55, 0
s_mov_b32 s89, 0""")
        stamp(6)
        e(f"s_branch L_B{u}")
        boundary_out(1, u, f"L_hb{u}", "L_never")
        boundary_out(1, u, f"L_hc{u}", f"L_dr{u}")
    e("L_never:\ns_branch L_sdone")
    for u in range(R):
        e(f"L_dr{u}:\ns_mov_b32 s88, {R}\nL_D{u}:\ns_sub_u32 s88, s88, 1")
        vstep(u, True)
        e(f"s_cmp_eq_u32 s88, 0\ns_cbranch_scc1 L_sdone\ns_branch L_D{(u+1)%R}")
    for t in late:
        e(t)
    e("L_sdone:")
    stamp(5)
    e(f"""v_mov_b32 v18, v16
v_mov_b32 v19, v16
s_lshl_b32 s78, s2, 11
s_lshl_b32 s79, s56, 9
v_permlane16_swap_b32 v18, v19
s_add_u32 s78, s78, s79
v_max_f32 v18, v18, v19
v_mov_b32 v19, v18
s_add_u32 s78, s78, {PO}
s_lshl_b32 s79, s2, {6 + mlw}
v_permlane32_swap_b32 v18, v19
s_lshl_b32 s80, s56, {4 + mlw}
v_max_f32 v18, v18, v19
v_sub_f32 v20, v16, v18
v_mul_f32 v20, s85, v20
v_exp_f32 v20, v20
s_add_u32 s79, s79, s80
v_mul_f32 v17, v17, v20""")
    for r in range(8, 16):
        e(f"v_mul_f32 v{r}, v20, v{r}")
    e(f"""v_add_f32_dpp v17, v17, v17 row_ror:8 {DP}
s_add_u32 s79, s79, {PM}
v_permlane32_swap_b32 v8, v12
v_permlane32_swap_b32 v9, v13
v_add_f32_dpp v17, v17, v17 row_ror:4 {DP}
v_permlane32_swap_b32 v10, v14
v_permlane32_swap_b32 v11, v15
v_mov_b32 v19, v17
v_add_f32 v8, v8, v12
v_add_f32 v9, v9, v13
v_add_f32 v10, v10, v14
v_add_f32 v11, v11, v15
v_permlane16_swap_b32 v17, v19
v_mov_b32 v20, s94
v_permlane16_swap_b32 v8, v10
v_permlane16_swap_b32 v9, v11
v_add_f32 v17, v17, v19
v_add_f32 v8, v8, v10
v_mov_b32 v19, v17
v_add_f32 v9, v9, v11
s_movk_i32 s80, 0xff
v_permlane32_swap_b32 v17, v19
v_lshlrev_b32 v22, 3, v0
v_bfi_b32 v8, s80, v20, v8
v_bfi_b32 v9, s80, v20, v9
v_add_f32 v19, v17, v19
buffer_store_dwordx2 v[8:9], v22, s[44:47], s78 offen sc1
v_mov_b32 v21, s94
s_mov_b64 exec, {(1 << (1 << mlw)) - 1}
buffer_store_dwordx4 v[18:21], v1, s[44:47], s79 offen sc1
s_mov_b64 exec, -1
s_barrier""")
    e(f"""s_cmp_ge_u32 s3, {0 if notail else 2}
s_cbranch_scc1 L_bar_done
s_cmp_eq_u32 s3, 0
s_cbranch_scc1 L_red
s_cmp_eq_u32 s98, 0
s_cbranch_scc1 L_bar_done
s_mov_b32 s53, 8
L_red:
s_bfe_u32 s78, s52, 0x20001
s_mul_i32 s78, s78, 1152
s_lshr_b32 s79, s52, 3
s_lshl_b32 s79, s79, 5
s_add_u32 s78, s78, s79
s_and_b32 s79, s52, 1
s_lshl_b32 s79, s79, 4
s_add_u32 s78, s78, s79
s_lshl_b32 s79, s53, 7
s_add_u32 s78, s78, s79
v_and_b32 v9, 1, v0
v_lshlrev_b32 v10, 3, v9
s_mov_b32 s28, s4
s_mov_b32 s29, s5
s_mov_b32 s30, 4608
s_mov_b32 s31, 0x20000
buffer_load_dwordx2 v[16:17], v10, s[28:31], s78 offen
s_mov_b32 s40, s22
s_mov_b32 s41, s23
s_mov_b32 s42, 4608
s_mov_b32 s43, 0x20000
v_lshrrev_b32 v8, 1, v0
v_lshlrev_b32 v8, 10, v8
v_lshl_add_u32 v8, v9, 4, v8
s_lshl_b32 s79, s53, 15
s_lshl_b32 s80, s52, 5
s_add_u32 s79, s79, s80
s_add_u32 s79, s79, {YW}
s_mov_b32 s83, {spin}
s_barrier
L_h2:
buffer_load_dwordx4 v[12:15], v8, s[44:47], s79 offen sc1
s_sub_u32 s83, s83, 1
s_cbranch_scc1 L_h2_done
s_waitcnt vmcnt(0)
v_xor_b32 v20, s94, v12
v_bitop3_b32 v20, v20, v13, s94 {OR_XOR}
v_bitop3_b32 v20, v20, v14, s94 {OR_XOR}
v_bitop3_b32 v20, v20, v15, s94 {OR_XOR}
v_and_b32 v20, 0xff, v20
v_cmp_ne_u32 vcc, 0, v20
s_and_b64 exec, exec, vcc
s_cbranch_execnz L_h2
L_h2_done:
s_mov_b64 exec, -1
s_waitcnt vmcnt(0)""")
    if eearly:
        e(f"""s_add_u32 s79, s2, s3
s_cmp_lg_u32 s79, 0
s_cbranch_scc1 L_noe
v_mov_b32 v24, s94
v_mov_b32 v25, {EW}
s_mov_b64 exec, 1
buffer_store_dword v24, v25, s[44:47], 0 offen
s_mov_b64 exec, -1
L_noe:""")
    for dpp in ("quad_perm:[2,3,0,1]", "row_ror:4", "row_ror:8"):
        for r in range(12, 16):
            e(f"v_add_f32_dpp v{r}, v{r}, v{r} {dpp} {DP}")
    for sw in (16, 32):
        for r in range(4):
            e(f"v_mov_b32 v{20+r}, v{12+r}")
        for r in range(4):
            e(f"v_permlane{sw}_swap_b32 v{12+r}, v{20+r}")
        for r in range(4):
            e(f"v_add_f32 v{12+r}, v{12+r}, v{20+r}")
    e(f"""v_lshlrev_b32 v20, 16, v16
v_and_b32 v21, 0xffff0000, v16
v_lshlrev_b32 v22, 16, v17
v_and_b32 v23, 0xffff0000, v17
v_add_f32 v12, v12, v20
v_add_f32 v13, v13, v21
v_add_f32 v14, v14, v22
v_add_f32 v15, v15, v23
v_cvt_pk_bf16_f32 v12, v12, v13
v_cvt_pk_bf16_f32 v13, v14, v15
s_mov_b64 exec, 3
buffer_store_dwordx2 v[12:13], v10, s[40:43], s78 offen
s_add_u32 s78, s2, s3
s_cmp_lg_u32 s78, 0
{"s_branch L_done" if eearly else "s_cbranch_scc1 L_done"}
v_mov_b32 v12, s94
v_mov_b32 v13, {EW}
s_mov_b64 exec, 1
buffer_store_dword v12, v13, s[44:47], 0 offen sc1
s_branch L_done
L_bar_done:
s_barrier
s_branch L_done""")

    def srd(ptr, nbytes):
        e(f"s_mov_b32 s40, s{ptr}\ns_mov_b32 s41, s{ptr+1}\ns_mov_b32 s42, {nbytes}\ns_mov_b32 s43, 0x20000")
    def dma(n_ins, step, ldsbase, vreg, alt=False):
        for n in range(n_ins):
            e(f"s_add_u32 m0, s79, {ldsbase + 1024*n}")
            e(f"s_add_u32 s78, s78, {step}" if n else "s_nop 0")
            e(f"buffer_load_dwordx4 v{vreg + (n & 1 if alt else 0)}, s[40:43], s78 offen {wflag} lds")
    def proj_tiles(stripe_sreg, wo_base, wd_base, late=False):
        e(f"s_lshl_b32 s81, s{stripe_sreg}, 7")
        if late or defer != 2:
            srd(12, 4096 * 1152)
            e(f"""s_mul_i32 s78, s52, {128*1152}
s_add_u32 s78, s78, s81
s_mul_i32 s79, s56, {32*1152}
s_add_u32 s78, s78, s79
s_lshl_b32 s79, s56, 12""")
            dma(4, 8 * 1152, wo_base, 31)
        if late and defer == 2:
            return
        srd(20, 4608 * 1152)
        e(f"""s_mul_i32 s78, s52, {144*1152}
s_add_u32 s78, s78, s81
s_mul_i32 s79, s57, {8*1152}
s_add_u32 s78, s78, s79
s_lshl_b32 s79, s57, 10""")
        dma(5, 8 * 1152, wd_base, 31)
    npj = [0]
    def all_proj(late=False):
        n = npj[0]; npj[0] += 1
        proj_tiles(53, WOT, WDT, late)
        e(f"s_cmp_eq_u32 s98, 0\ns_cbranch_scc1 L_pj{n}\ns_mov_b32 s80, 8")
        proj_tiles(80, FT, FT + 16384, late)
        e(f"L_pj{n}:")
    def pick_batch(d, a):
        e(f"""v_cndmask_b32 v{a}, v{a}, v{a+1}, s[38:39]
v_cndmask_b32 v{a+2}, v{a+2}, v{a+3}, s[38:39]
v_cndmask_b32 v{d}, v{a}, v{a+2}, s[58:59]""")
    qn = [0]
    def qfetch():
        n = qn[0]; qn[0] += 1
        e(f"""v_lshrrev_b32 v14, 3, v0
v_lshlrev_b32 v14, 8, v14
v_and_b32 v15, 7, v0
v_lshl_add_u32 v14, v15, 3, v14
s_lshl_b32 s88, s56, 6
s_lshl_b32 s89, s49, 11
s_add_u32 s88, s88, s89
s_add_u32 s88, s88, {QW}
s_lshl_b32 s89, s56, 8
v_lshl_add_u32 v3, v0, 2, s89
s_lshl_b32 s89, s56, 2
v_mov_b32 v2, s89
s_mov_b32 s83, {spin}
L_q_again{n}:
buffer_load_dwordx2 v[16:17], v14, s[44:47], s88 offen sc1
s_sub_u32 s83, s83, 1
s_cbranch_scc1 L_q_got{n}
s_waitcnt vmcnt(0)
v_xor_b32 v15, s94, v16
v_bitop3_b32 v15, v15, v17, s94 {OR_XOR}
v_and_b32 v15, 0xffff, v15
v_cmp_ne_u32 vcc, 0, v15
s_and_b64 exec, exec, vcc
s_cbranch_execnz L_q_again{n}
L_q_got{n}:
s_mov_b64 exec, -1
s_mov_b32 s89, 0x07060302
v_perm_b32 v16, v17, v16, s89
v_mov_b32 v15, 1
ds_write_b32 v3, v16 offset:{QL}
ds_write_b32 v2, v15 offset:{CNT+16}
s_setprio {svcprio}""")
        stamp(4)
    if bare & 1:
        e("L_svc:\ns_endpgm\nL_svc_x:")
    e(f"""{"" if bare & 1 else "L_svc:"}
s_setprio {svc0}
s_sub_u32 s56, s3, 4
s_mul_i32 s57, s56, 9
s_lshr_b32 s57, s57, 1
v_lshrrev_b32 v8, 3, v0
v_and_b32 v10, 7, v0
v_lshlrev_b32 v10, 4, v10
v_mul_u32_u24 v31, 1152, v8
v_add_u32 v31, v31, v10
s_mov_b32 s58, 0
s_mov_b32 s59, -1
s_sub_u32 s78, s96, 5
s_cmp_lt_u32 s78, 2
s_cbranch_scc1 L_tq
s_and_b32 s78, s49, 1
s_add_u32 s78, s78, 4
s_cmp_ge_u32 s96, s78
s_cbranch_scc1 L_notask
s_mul_i32 s80, s49, 9
s_lshr_b32 s80, s80, 1
s_add_u32 s80, s80, s96
s_lshl_b32 s51, s80, 10
s_add_u32 s51, s51, {GU}
s_cmp_ge_u32 s80, 72
s_cselect_b32 s40, s18, s16
s_cselect_b32 s41, s19, s17
s_cselect_b32 s78, 72, 0
s_mov_b32 s42, {576*9216}
s_sub_u32 s80, s80, s78
s_movk_i32 s50, 9216
s_branch L_task
L_tq:
s_lshl_b32 s80, s49, 1
s_add_u32 s80, s80, s78
s_lshl_b32 s51, s80, 10
s_add_u32 s51, s51, {QW}
s_mov_b32 s40, s10
s_mov_b32 s41, s11
s_mov_b32 s42, {576*8192}
s_movk_i32 s50, 8192
L_task:
s_mov_b32 s43, 0x20000
s_mul_i32 s36, s56, 1152
s_add_u32 s36, s4, s36
s_addc_u32 s37, s5, 0
s_mov_b32 s38, 1152
s_mov_b32 s39, 0x20000
v_lshlrev_b32 v7, 2, v0""")
    if st2 == 1:
        stamp(2)
    for j in range(5):
        e(f"buffer_load_dword v{2+j}, v7, s[36:39], 0 offen offset:{256*j}")
    if swz:
        e("""v_bfe_u32 v9, v0, 4, 1
v_lshlrev_b32 v9, 5, v9
v_xor_b32 v10, v10, v9""")
    e(f"""v_mul_u32_u24 v8, s50, v8
v_add_u32 v8, v8, v10
v_xor_b32 v9, 64, v8
s_lshl_b32 s78, s80, 7
s_mul_i32 s79, s56, 144
s_mul_i32 s79, s79, s50
s_add_u32 s78, s78, s79
s_lshl_b32 s82, s50, 3
s_lshl_b32 s79, s56, 8
s_add_u32 s51, s51, s79
s_mul_i32 s79, s56, {18*1024}""")
    dma(18, "s82", FT, 8, bool(swz))
    if pj0 == 1:
        proj_tiles(53, WOT, WDT)
    if st2 == 4:
        stamp(2)
    e("s_barrier")
    if pj0 == 2:
        proj_tiles(53, WOT, WDT)
    NPJ = 0 if not pj0 else (5 if defer == 2 else 9)
    if st2 == 2:
        stamp(2)
    e(f"s_waitcnt vmcnt({18 + NPJ})")
    if st2 == 3:
        stamp(2)
    def wave_sum(r, t):
        for k in (8, 4, 2, 1):
            e(f"s_nop 1\nv_add_f32_dpp v{r}, v{r}, v{r} row_ror:{k} {DP}")
        for sw in (16, 32):
            e(f"v_mov_b32 v{t}, v{r}\ns_nop 1\nv_permlane{sw}_swap_b32 v{r}, v{t}\ns_nop 0\nv_add_f32 v{r}, v{r}, v{t}")
    def rbf(d, s):
        e(f"v_cvt_pk_bf16_f32 v{d}, v{s}, v{s}\nv_and_b32 v{d}, 0xffff0000, v{d}")
    for j in range(5):
        e(f"v_lshlrev_b32 v{10+2*j}, 16, v{2+j}\nv_and_b32 v{11+2*j}, 0xffff0000, v{2+j}")
    e("v_add_f32 v20, v10, v11")
    for j in range(12, 20):
        e(f"v_add_f32 v20, v20, v{j}")
    wave_sum(20, 21)
    e("v_mul_f32 v20, 0x3ae38e39, v20")
    e("v_cmp_gt_u32 vcc, 32, v0")
    for j in range(10):
        e(f"v_sub_f32 v{22+j if j < 8 else 2+j-8}, v{10+j}, v20")
    e("v_cndmask_b32 v2, 0, v2, vcc\nv_cndmask_b32 v3, 0, v3, vcc")
    e("v_mul_f32 v21, v2, v2\nv_fmac_f32 v21, v3, v3")
    for j in range(8):
        e(f"v_fmac_f32 v21, v{22+j}, v{22+j}")
    wave_sum(21, 22)
    e("v_mul_f32 v21, 0x3ae38e39, v21")
    rbf(21, 21)
    e("v_add_f32 v21, 0x3727c5ac, v21")
    rbf(21, 21)
    e("v_sqrt_f32 v21, v21\ns_nop 0")
    rbf(21, 21)
    e("v_rcp_f32 v21, v21")
    rbf(20, 20)
    for j in range(10):
        e(f"v_sub_f32 v{10+j}, v{10+j}, v20")
    for j in range(5):
        e(f"v_cvt_pk_bf16_f32 v{2+j}, v{10+2*j}, v{11+2*j}")
    for j in range(5):
        e(f"v_lshlrev_b32 v{10+2*j}, 16, v{2+j}\nv_and_b32 v{11+2*j}, 0xffff0000, v{2+j}")
    for j in range(10):
        e(f"v_mul_f32 v{10+j}, v{10+j}, v21")
    for j in range(5):
        e(f"v_cvt_pk_bf16_f32 v{2+j}, v{10+2*j}, v{11+2*j}")
    e("s_mul_i32 s78, s56, 1152\nv_add_u32 v7, s78, v7")
    for j in range(4):
        e(f"ds_write_b32 v7, v{2+j} offset:{XN+256*j}")
    e(f"s_mov_b64 exec, 0xffffffff\nds_write_b32 v7, v6 offset:{XN+1024}\ns_mov_b64 exec, -1")
    e(f"""v_lshrrev_b32 v8, 4, v0
v_lshlrev_b32 v9, 4, v8
v_lshlrev_b32 v8, 3, v8
v_bfe_u32 v10, v0, 2, 2
v_add_u32 v8, v8, v10
v_lshlrev_b32 v8, 7, v8
v_and_b32 v10, 3, v0
v_lshl_add_u32 v8, v10, 3, v8
v_mul_u32_u24 v10, 1152, v10
v_add_u32 v9, v9, v10
s_lshl_b32 s78, s56, 5
v_bfe_u32 v14, v0, 3, 2
v_lshlrev_b32 v14, 5, v14
v_and_b32 v14, {0x60 if swz else 0}, v14
v_xor_b32 v14, s78, v14
v_add_u32 v11, {FT}, v8
v_add_u32 v11, v11, v14
v_add_u32 v12, {9*4096}, v11
v_lshlrev_b32 v13, 2, v0""")
    for r in range(16, 20):
        e(f"v_mov_b32 v{r}, 0")
    e(f"""v_mov_b32 v29, {CNT}
v_mov_b32 v30, 1
s_mov_b32 s83, {spin}
s_waitcnt vmcnt({NPJ}) lgkmcnt(0)
s_add_u32 s94, s94, 1
s_mov_b32 s38, 0xffff0000
s_mov_b32 s39, 0xffff0000
s_mov_b64 exec, 1
ds_add_u32 v29, v30
s_mov_b64 exec, -1
L_wxn:
ds_read_b32 v30, v29
s_sub_u32 s83, s83, 1
s_cbranch_scc1 L_wxn_ok
s_waitcnt lgkmcnt(0)
v_cmp_gt_u32 vcc, 4, v30
s_cbranch_vccnz L_wxn
L_wxn_ok:
s_waitcnt lgkmcnt(0)""")
    stamp(1)
    def rd(s):
        base = 32 + (s % 5) * 8
        e(f"ds_read_b128 v[{base}:{base+3}], v9 offset:{XN+64*s}")
        sg, so = divmod(s, 9)
        e(f"ds_read_b64_tr_b16 v[{base+4}:{base+5}], v{11+sg} offset:{4096*so}")
        e(f"ds_read_b64_tr_b16 v[{base+6}:{base+7}], v{11+sg} offset:{4096*so+512}")
    for s in range(4):
        rd(s)
    for s in range(18):
        e(f"s_waitcnt lgkmcnt({min(3, 17-s)*3})")
        base = 32 + (s % 5) * 8
        e(f"v_mfma_f32_16x16x32_bf16 v[16:19], v[{base}:{base+3}], v[{base+4}:{base+7}], v[16:19]")
        if s + 4 < 18:
            rd(s + 4)
    e("v_mov_b32 v21, s94\ns_mov_b32 s78, 0x07060100\ns_nop 5")
    pick_batch(20, 16)
    e("""v_cvt_pk_bf16_f32 v20, v20, v20
v_perm_b32 v20, v20, v21, s78
buffer_store_dword v20, v13, s[44:47], s51 offen sc1""")
    if not st2:
        stamp(2)
    qfetch()
    if not defer and not pj0:
        proj_tiles(53, WOT, WDT)
    e("s_branch L_tick\nL_notask:")
    if defer != 1:
        all_proj()
    e("s_barrier\ns_waitcnt lgkmcnt(0)\ns_add_u32 s94, s94, 1\ns_mov_b32 s38, 0xffff0000\ns_mov_b32 s39, 0xffff0000")
    qfetch()
    e(f"""L_tick:
s_cmp_lg_u32 s56, 3
s_cbranch_scc1 L_gu
s_cmp_ge_u32 s2, 128
s_cbranch_scc1 L_gu
s_lshl_b32 s79, s94, 20
v_mov_b32 v3, s79
v_lshlrev_b32 v2, 2, v0
s_mov_b64 exec, 0xffffffff
s_lshl_b32 s79, s2, 7
s_add_u32 s79, s79, {CW}
buffer_store_dword v3, v2, s[44:47], s79 offen sc1
s_mov_b64 exec, -1""")
    e(f"""L_gu:
v_min_u32 v8, 35, v0
v_lshrrev_b32 v9, 2, v8
v_lshlrev_b32 v9, 8, v9
v_and_b32 v24, 3, v8
v_lshl_add_u32 v24, v24, 4, v9
v_lshlrev_b32 v26, 3, v8
s_mul_i32 s78, s56, 288
v_add_u32 v26, s78, v26
s_mul_i32 s78, s52, 2304
s_lshl_b32 s79, s56, 6
s_add_u32 s78, s78, s79
s_add_u32 s78, s78, {GU}
s_add_u32 s79, s78, 73728
v_mov_b32 v29, {CNT}
s_mov_b32 s83, {spin}
{"" if hsleep else "s_setprio 0"}
L_late:
{f"s_sleep {hsleep}" if hsleep else ""}
ds_read_b32 v30, v29 offset:8
s_sub_u32 s83, s83, 1
s_cbranch_scc1 L_late_ok
s_waitcnt lgkmcnt(0)
v_cmp_eq_u32 vcc, 0, v30
s_cbranch_vccnz L_late
L_late_ok:
s_setprio {svcprio}
s_waitcnt lgkmcnt(0)
s_mov_b32 s83, {spin}
L_ph:
buffer_load_dwordx4 v[32:35], v24, s[44:47], s78 offen sc1
buffer_load_dwordx4 v[36:39], v24, s[44:47], s79 offen sc1
s_sub_u32 s83, s83, 1
s_cbranch_scc1 L_ph_done
s_waitcnt vmcnt(0)
v_xor_b32 v8, s94, v32""")
    for r in range(33, 40):
        e(f"v_bitop3_b32 v8, v8, v{r}, s94 {OR_XOR}")
    e("""v_and_b32 v8, 0xffff, v8
v_cmp_ne_u32 vcc, 0, v8
s_cbranch_vccnz L_ph
L_ph_done:
s_waitcnt vmcnt(0)""")
    for r in range(32, 40):
        e(f"v_and_b32 v{r}, 0xffff0000, v{r}")
    e("s_mov_b32 s78, 0x3d372713\ns_mov_b32 s79, 0xc0135761")
    for r in range(4):
        g = 32 + r; t = 40 + r
        e(f"""v_mul_f32 v{t}, v{g}, v{g}
v_mul_f32 v{t}, v{t}, v{g}
v_fma_f32 v{t}, v{t}, s78, v{g}
v_mul_f32 v{t}, s79, v{t}
v_exp_f32 v{t}, v{t}
s_nop 0
v_add_f32 v{t}, 1.0, v{t}
v_rcp_f32 v{t}, v{t}
s_nop 0
v_mul_f32 v{t}, v{t}, v{g}""")
        rbf(t, t)
        e(f"v_mul_f32 v{t}, v{t}, v{36+r}")
    e(f"""v_cvt_pk_bf16_f32 v16, v40, v41
v_cvt_pk_bf16_f32 v17, v42, v43
ds_write_b64 v26, v[16:17] offset:{HL}""")
    stamp(3)
    e(f"""v_lshrrev_b32 v8, 4, v0
v_bfe_u32 v10, v0, 2, 2
v_lshl_add_u32 v11, v8, 2, v10
v_lshl_add_u32 v10, v8, 3, v10
v_lshlrev_b32 v10, 7, v10
v_lshlrev_b32 v11, 7, v11
v_and_b32 v12, 3, v0
v_lshlrev_b32 v13, 3, v12
s_lshl_b32 s78, s56, 5
v_add3_u32 v10, v10, v13, s78
v_add3_u32 v11, v11, v13, s78
v_add_u32 v4, {WDT}, v10
v_add_u32 v5, {WDT+128*128}, v11
v_add_u32 v6, {WOT}, v10
v_add_u32 v100, {FT+16384}, v10
v_add_u32 v101, {FT+16384+128*128}, v11
v_add_u32 v102, {FT}, v10
v_mul_u32_u24 v13, 288, v12
v_lshl_add_u32 v7, v8, 3, v13
v_lshl_add_u32 v3, v8, 4, v13
v_lshlrev_b32 v12, 8, v12
v_lshl_add_u32 v30, v8, 4, v12
s_lshl_b32 s79, s56, 9
v_lshl_add_u32 v112, v0, 3, s79
v_and_b32 v113, 7, v0
v_lshlrev_b32 v113, {6 + mlw}, v113
s_lshl_b32 s79, s56, {4 + mlw}
v_add_u32 v113, s79, v113
s_lshl_b32 s88, s52, 14
s_add_u32 s88, s88, {PO}
s_add_u32 s89, s88, 4096
s_add_u32 s90, s88, 8192
s_add_u32 s91, s88, 12288
s_lshl_b32 s92, s52, {9 + mlw}
s_add_u32 s92, s92, {PM}
v_and_b32 v29, 15, v0
v_lshlrev_b32 v29, 4, v29
v_lshl_add_u32 v29, v8, 2, v29
s_lshl_b32 s79, s56, 8
v_add_u32 v29, s79, v29
v_lshlrev_b32 v114, 2, v0
s_lshl_b32 s93, s52, 10
s_add_u32 s93, s93, s79
s_add_u32 s93, s93, {YW}
s_add_u32 s87, s93, {8*32768}
s_lshl_b32 s79, s53, 15
s_add_u32 s93, s93, s79
s_movk_i32 s82, 0xff
v_mov_b32 v115, s94""")
    for r in list(range(24, 28)) + list(range(116, 120)):
        e(f"v_mov_b32 v{r}, 0")
    e("s_waitcnt vmcnt(0) lgkmcnt(0)")
    if trig:
        e(f"""v_mov_b32 v8, {CNT}
s_mov_b32 s83, {spin}
L_wtr:
s_sleep 2
ds_read_b32 v9, v8 offset:12
s_sub_u32 s83, s83, 1
s_cbranch_scc1 L_wtr_ok
s_waitcnt lgkmcnt(0)
v_cmp_eq_u32 vcc, 0, v9
s_cbranch_vccnz L_wtr
L_wtr_ok:""")
        all_proj(True)
    e(f"""s_mov_b32 s83, {spin}
s_barrier""")
    stamp(5)
    if notail:
        e("s_barrier\ns_branch L_done")
    P = [10 + 2 * s if s < 7 else 120 for s in range(8)]
    def gather(first):
        e("buffer_load_dwordx4 v[124:127], v113, s[44:47], s92 offen sc1")
        for s in range(8):
            if not first:
                e(f"s_bitcmp1_b32 s86, {s}\ns_cbranch_scc1 L_g{s}")
            e(f"buffer_load_dwordx2 v[{P[s]}:{P[s]+1}], v112, s[44:47], s{88+s//2} offen offset:{2048*(s&1)} sc1")
            if not first:
                e(f"L_g{s}:")
    def hid_frags():
        for s in range(4):
            e(f"ds_read_b128 v[{48+4*s}:{51+4*s}], v3 offset:{HL+64*s}")
        e(f"ds_read_b64 v[66:67], v7 offset:{HL+256}")
    def wd_frags(va, vb):
        for s in range(4):
            e(f"ds_read_b64_tr_b16 v[{32+4*s}:{33+4*s}], v{va} offset:{4096*s}")
            e(f"ds_read_b64_tr_b16 v[{34+4*s}:{35+4*s}], v{va} offset:{4096*s+512}")
        e(f"ds_read_b64_tr_b16 v[64:65], v{vb}")
    def down_mfma(acc):
        for s in range(4):
            e(f"v_mfma_f32_16x16x32_bf16 v[{acc}:{acc+3}], v[{48+4*s}:{51+4*s}], v[{32+4*s}:{35+4*s}], v[{acc}:{acc+3}]")
        e(f"s_nop 5\nv_mfma_f32_16x16x16_bf16 v[{acc}:{acc+3}], v[66:67], v[64:65], v[{acc}:{acc+3}]")
    def wo_frags(vo, wob):
        for s in range(4):
            e(f"ds_read_b64_tr_b16 v[{wob+4*s}:{wob+1+4*s}], v{vo} offset:{4096*s}")
            e(f"ds_read_b64_tr_b16 v[{wob+2+4*s}:{wob+3+4*s}], v{vo} offset:{4096*s+512}")
    def down_all(tag):
        wd_frags(4, 5)
        e("s_waitcnt lgkmcnt(0)")
        down_mfma(24)
        if defer != 2:
            wo_frags(6, 68)
        e(f"s_cmp_eq_u32 s98, 0\ns_cbranch_scc1 L_dn{tag}\ns_waitcnt lgkmcnt(0)")
        wd_frags(100, 101)
        e("s_waitcnt lgkmcnt(0)")
        down_mfma(116)
        if defer != 2:
            wo_frags(102, 84)
        e(f"L_dn{tag}:")
    gather(True)
    if defer and not trig:
        all_proj(True)
    hid_frags()
    if defer != 1:
        down_all(0)
    e("s_branch L_h1\nL_h1_again:\ns_mov_b32 s86, 0")
    for s in range(8):
        e(f"""v_xor_b32 v122, s94, v{P[s]}
v_bitop3_b32 v122, v122, v{P[s]+1}, s94 {OR_XOR}
v_and_b32 v122, 0xff, v122
v_cmp_ne_u32 vcc, 0, v122
s_cmp_eq_u64 vcc, 0
s_cselect_b32 s84, {1 << s}, 0
s_or_b32 s86, s86, s84""")
    gather(False)
    e("""L_h1:
s_sub_u32 s83, s83, 1
s_cbranch_scc1 L_h1_done
s_waitcnt vmcnt(0)
v_xor_b32 v122, s94, v10
v_xor_b32 v123, s94, v11""")
    for r in list(range(12, 24)) + [120, 121]:
        e(f"v_bitop3_b32 v{122+(r&1)}, v{122+(r&1)}, v{r}, s94 {OR_XOR}")
    e(f"""v_or_b32 v122, v122, v123
v_and_b32 v122, 0xff, v122
v_bitop3_b32 v122, v122, v126, s94 {OR_XOR}
v_bitop3_b32 v122, v122, v127, s94 {OR_XOR}
v_mov_b32 v8, v124
v_mov_b32 v9, v125
v_cmp_ne_u32 vcc, 0, v122
s_cbranch_vccnz L_h1_again
L_h1_done:""")
    stamp(6)
    e(f"""v_max_f32_dpp v122, v8, v8 quad_perm:[1,0,3,2] {DP}
s_nop 1
v_max_f32_dpp v122, v122, v122 quad_perm:[2,3,0,1] {DP}
s_nop 1
v_max_f32_dpp v122, v122, v122 row_half_mirror {DP}
v_sub_f32 v8, v8, v122
v_mul_f32 v8, s85, v8
v_exp_f32 v8, v8
s_nop 0
v_mul_f32 v9, v9, v8
s_nop 0
v_mul_f32_dpp v122, v8, v10 row_newbcast:0 {DP}
v_add_f32_dpp v9, v9, v9 quad_perm:[1,0,3,2] {DP}
v_mul_f32_dpp v123, v8, v11 row_newbcast:0 {DP}
v_fmac_f32_dpp v122, v8, v12 row_newbcast:1 {DP}
v_add_f32_dpp v9, v9, v9 quad_perm:[2,3,0,1] {DP}
v_fmac_f32_dpp v123, v8, v13 row_newbcast:1 {DP}
v_fmac_f32_dpp v122, v8, v14 row_newbcast:2 {DP}
v_add_f32_dpp v9, v9, v9 row_half_mirror {DP}
v_fmac_f32_dpp v123, v8, v15 row_newbcast:2 {DP}
v_rcp_f32 v9, v9""")
    for s in range(3, 8):
        e(f"v_fmac_f32_dpp v122, v8, v{P[s]} row_newbcast:{s} {DP}")
        e(f"v_fmac_f32_dpp v123, v8, v{P[s]+1} row_newbcast:{s} {DP}")
    e(f"""v_mul_f32 v122, v122, v9
v_mul_f32 v123, v123, v9
v_cvt_pk_bf16_f32 v122, v122, v123
ds_write_b32 v29, v122 offset:{OL}
s_waitcnt lgkmcnt(0)
s_barrier""")
    OF = 8 if defer else 48
    for s in range(4):
        e(f"ds_read_b128 v[{OF+4*s}:{OF+3+4*s}], v30 offset:{OL+64*s}")
    if defer == 1:
        down_all(1)
        e("s_waitcnt lgkmcnt(0)")
    if defer == 2:
        wo_frags(6, 68)
        e("s_cmp_eq_u32 s98, 0\ns_cbranch_scc1 L_wf\ns_waitcnt lgkmcnt(0)")
        wo_frags(102, 84)
        e("L_wf:\ns_waitcnt lgkmcnt(0)")
    for s in range(4):
        if not defer:
            e(f"s_waitcnt lgkmcnt({3-s})")
        e(f"v_mfma_f32_16x16x32_bf16 v[24:27], v[{OF+4*s}:{OF+3+4*s}], v[{68+4*s}:{71+4*s}], v[24:27]")
    e("s_cmp_eq_u32 s98, 0\ns_cbranch_scc1 L_y1")
    for s in range(4):
        e(f"v_mfma_f32_16x16x32_bf16 v[116:119], v[{OF+4*s}:{OF+3+4*s}], v[{84+4*s}:{87+4*s}], v[116:119]")
    e("s_nop 7")
    pick_batch(116, 116)
    e("""v_bfi_b32 v116, s82, v115, v116
buffer_store_dword v116, v114, s[44:47], s87 offen sc1
L_y1:
s_nop 7""")
    pick_batch(24, 24)
    e("""v_bfi_b32 v24, s82, v115, v24
buffer_store_dword v24, v114, s[44:47], s93 offen sc1
L_done:
s_mov_b64 exec, -1""")
    if stamps:
        e("s_waitcnt vmcnt(0)")
        stamp(7)
        e(f"""s_lshl_b32 s78, s2, {2 if bare & 8 else 3}
s_add_u32 s78, s78, s3
s_lshl_b32 s78, s78, 6
s_add_u32 s78, s78, {STAMP}
s_getreg_b32 s79, hwreg(HW_REG_XCC_ID, 0, 4)
v_mov_b32 v1, s78""")
        for k in range(8):
            e(f"v_mov_b32 v{4+k}, s{60+2*k}")
        e("""v_mov_b32 v12, s97
v_mov_b32 v13, s79
global_store_dwordx4 v1, v[4:7], s[26:27]
global_store_dwordx4 v1, v[8:11], s[26:27] offset:16
global_store_dwordx2 v1, v[12:13], s[26:27] offset:32""")
    e(f"""L_end:
s_endpgm
.section .rodata,"a"
.p2align 6
.amdhsa_kernel {KN}
  .amdhsa_next_free_vgpr {NV}
  .amdhsa_next_free_sgpr 100
  .amdhsa_accum_offset {(NV+3)//4*4}
  .amdhsa_group_segment_fixed_size 0
  .amdhsa_kernarg_size 96
  .amdhsa_user_sgpr_count 2
  .amdhsa_user_sgpr_kernarg_segment_ptr 1
  .amdhsa_system_sgpr_workgroup_id_x 1
  .amdhsa_float_denorm_mode_32 3
.end_amdhsa_kernel""")
    out = []
    for ln in e.o:
        if ln.rstrip().endswith(" sc1") and "buffer_store" in ln:
            ln = ln.rstrip()[:-3] + stf
        elif ln.rstrip().endswith(" sc1") and "buffer_load" in ln:
            ln = ln.rstrip()[:-3] + ldf
        out.append(ln)
    e.o = out
    return HEADER + e.text()

if __name__ == "__main__":
    kw = eval("dict(%s)" % (sys.argv[1] if len(sys.argv) > 1 else ""))
    sys.stdout.write(gen(**kw))
```

```python
import sys
KN = "parallel_sum__mha_block_cached__geglu_ffn__decode_kernel"

PO = 0x20000
PM = 0xA0000
YW = 0xB0000
QW = 0x100000
GU = 0x180000
CW = 0x1A8000
SCW = 0x200000
EW = 0x600000
WS_SIZE = 0x600080
STAMP = 0x700000
XN = 0; HL = 5632; OL = 6912; CNT = 7936; QL = 8192
FT = 12288; WOT = 86016; WDT = 102400
SCL = 120832
LDS_SIZE = 129024

LOG2E = 0x3fb8aa3b
SCALE = 0x3db504f3
DP = "row_mask:0xf bank_mask:0xf"
OR_XOR = "bitop3:0xf6"

HEADER = """; Kernarg layout for this problem (96 bytes, ptrs only, base s[0:1]):
"""

class A:
    def __init__(self):
        self.o = []
    def __call__(self, s):
        for ln in s.strip("\n").split("\n"):
            ln = ln.strip()
            if ln:
                self.o.append(ln if ln.endswith(":") or ln.startswith((".", ";")) else "    " + ln)
    def text(self):
        return "\n".join(self.o) + "\n"

def gen(R=4, S=24, v2=26, v4=0, k4=0, wflag="nt", kvflag="nt", stamps=0, spin=1 << 20, svcprio=1, svc0=3,
        bal=1, noq=0, notail=0, pj0=2, swz=1, mlw=3, stf="sc1", ldf="sc1", nopub=0, rot=0, alt=0, lay=1, mix=0, mul=1, pubf="sc1 ", scf="sc1 "):
    hsleep = defer = trig = st2 = bare = 0
    eearly = 1
    e = A()
    PM = 0xA0000 if mlw == 0 else 0x120000
    S1 = S2 = S
    assert S % 2 == 0 and R % 2 == 0 and S > 2 * R + 2
    LIM1 = 128 - 4 * S1
    LIM2 = 128 - 4 * S2
    def stamp(k):
        if stamps and not (bare & 16 and k in (1, 3, 4, 6)):
            e(f"s_memrealtime s[{60+2*k}:{61+2*k}]\ns_waitcnt lgkmcnt(0)")
    KB = 32
    SB = KB + R * 32
    NV = (SB + R + 3) // 4 * 4
    e(f"; @launch grid=(256,1,1) block=({256 if bare & 8 else 512},1,1) lds={LDS_SIZE}")
    e(f""".amdgcn_target "amdgcn-amd-amdhsa--gfx950"
.text
.globl {KN}
.p2align 8
.type {KN},@function
{KN}:
s_cmp_ge_u32 s2, 256
s_cbranch_scc1 L_end
s_load_dwordx16 s[4:19], s[0:1], 0
s_load_dwordx8 s[20:27], s[0:1], 64""")
    if stamps:
        for k in range(8):
            e(f"s_mov_b32 s{60+2*k}, 0")
        e("s_mov_b32 s97, 0")
    stamp(0)
    e("""v_lshrrev_b32 v1, 6, v0
v_and_b32 v0, 63, v0
v_readfirstlane_b32 s3, v1
s_and_b32 s48, s2, 7
s_lshr_b32 s49, s2, 3""")
    if bal == 0:
        e("""s_and_b32 s52, s49, 3
s_lshl_b32 s53, s48, 2
s_add_u32 s52, s52, s53
s_lshr_b32 s53, s2, 5
s_add_u32 s96, s48, s53
s_and_b32 s96, s96, 7
s_cmp_eq_u32 s96, 7
s_cselect_b32 s98, 1, 0""")
    else:
        e("""s_bfe_u32 s52, s49, 0x20001
s_lshl_b32 s53, s48, 2
s_add_u32 s52, s52, s53
s_lshr_b32 s53, s49, 3
s_lshl_b32 s53, s53, 1
s_add_u32 s96, s48, s53
s_and_b32 s96, s96, 7
s_and_b32 s78, s49, 1
s_add_u32 s53, s53, s78
s_lshl_b32 s79, 1, s96
s_and_b32 s79, s79, 0x90
s_cselect_b32 s98, 1, 0
s_andn2_b32 s98, s98, s78""")
    e(f"""v_lshlrev_b32 v1, 4, v0
s_mov_b32 s85, {LOG2E}
v_mov_b32 v8, {CNT}
v_mov_b32 v10, 0
v_mov_b32 v11, 0
v_mov_b32 v12, 0
v_mov_b32 v13, 0
s_cmp_lg_u32 s3, 0
s_cbranch_scc1 L_b0
ds_write_b128 v8, v[10:13]
ds_write_b128 v8, v[10:13] offset:16
L_b0:
s_waitcnt lgkmcnt(0)
s_mov_b32 s94, {EW}
{"" if bare & 2 else "s_load_dword s94, s[26:27], s94"}
s_mov_b32 s44, s26
s_mov_b32 s45, s27
s_mov_b32 s46, {WS_SIZE}
s_mov_b32 s47, 0x20000
s_cmp_ge_u32 s3, 4
s_cbranch_scc1 L_svc""")

    e(f"""s_add_u32 s56, s3, s48
s_and_b32 s56, s56, 3
s_lshl_b32 s58, s56, 5
s_add_u32 s58, s58, s49
s_lshl_b32 s59, s58, 21
s_add_u32 s28, s6, s59
s_addc_u32 s29, s7, 0
s_mov_b32 s30, {2<<20}
s_mov_b32 s31, 0x20000
s_add_u32 s32, s8, s59
s_addc_u32 s33, s9, 0
s_and_b32 s50, s48, 1
{"s_mov_b32 s51, 0" if mix else ("s_and_b32 s51, s48, 6" if alt else "s_lshr_b32 s51, s48, 1")}
s_lshl_b32 s54, s50, 13
s_mul_i32 s82, s58, {rot}
s_and_b32 s82, s82, 127
s_lshl_b32 s82, s82, 14
s_lshl_b32 s34, s58, 14
s_add_u32 s34, s34, {SCW}
s_lshl_b32 s58, s58, 7
s_add_u32 s58, s58, {CW}
s_add_u32 s36, s26, s58
s_addc_u32 s37, s27, 0
s_lshl_b32 s35, s3, 11
s_add_u32 s35, s35, {SCL}
""")
    if lay:
        e(f"""v_bfe_u32 v3, v0, 4, 1
v_lshlrev_b32 v3, {16 if lay == 2 else 15}, v3
v_bfe_u32 v2, v0, 5, 1
v_lshl_or_b32 v3, v2, 8, v3
v_and_b32 v2, 15, v0
v_lshl_or_b32 v2, v2, 4, v3""")
    else:
        e("v_add_u32 v2, 4096, v1")
    e("s_barrier")
    def baddr(src):
        if not lay:
            return f"s_lshl_b32 s76, {src}, 14\ns_add_u32 s76, s76, s54"
        if lay == 2:
            return f"""s_lshr_b32 s76, {src}, 3
s_lshl_b32 s76, s76, 17
s_and_b32 s92, {src}, 1
s_lshl_b32 s92, s92, 12
s_add_u32 s76, s76, s92
s_and_b32 s92, {src}, 6
s_lshl_b32 s92, s92, 13
s_add_u32 s76, s76, s92
s_add_u32 s76, s76, s54"""
        if lay == 3:
            return f"""s_lshr_b32 s76, {src}, 3
s_lshl_b32 s76, s76, 17
s_and_b32 s92, {src}, 1
s_lshl_b32 s92, s92, 14
s_add_u32 s76, s76, s92
s_and_b32 s92, {src}, 2
s_lshl_b32 s92, s92, 15
s_add_u32 s76, s76, s92
s_and_b32 s92, {src}, 4
s_lshl_b32 s92, s92, 10
s_add_u32 s76, s76, s92
s_add_u32 s76, s76, s54"""
        return f"""s_lshr_b32 s76, {src}, 2
s_lshl_b32 s76, s76, 16
s_and_b32 s92, {src}, 1
s_lshl_b32 s92, s92, 12
s_add_u32 s76, s76, s92
s_and_b32 s92, {src}, 2
s_lshl_b32 s92, s92, 13
s_add_u32 s76, s76, s92
s_add_u32 s76, s76, s54"""
    def issue(u):
        if rot:
            e("s_add_u32 s76, s76, s82\ns_and_b32 s76, s76, 0x1fffff")
        for j in range(8):
            r = KB + u * 32 + j * 4
            if lay:
                e(f"buffer_load_dwordx4 v[{r}:{r+3}], v2, s[28:31], s76 offen offset:{j*512} {kvflag}")
            else:
                e(f"buffer_load_dwordx4 v[{r}:{r+3}], v{1 + (j >> 2)}, s[28:31], s76 offen offset:{(j&3)*1024} {kvflag}")
    if mix:
        snext = """s_add_u32 s76, s51, s48
s_and_b32 s76, s76, 7
s_lshl_b32 s92, s51, 3
s_add_u32 s76, s76, s92
s_lshl_b32 s76, s76, 13
s_add_u32 s51, s51, 1"""
    else:
        snext = baddr("s51") + "\n" + ("s_bitcmp1_b32 s51, 0\ns_cselect_b32 s92, 7, 1\ns_add_u32 s51, s51, s92" if alt else "s_add_u32 s51, s51, 4")
    for u in range(R):
        e(snext + f"\ns_add_u32 s{10+u}, s35, {64*u}")
        issue(u)
    stamp(1)
    e(f"""s_lshl_b32 s78, s56, 2
v_mov_b32 v9, s78
v_and_b32 v3, 15, v0
v_lshlrev_b32 v3, 4, v3
s_lshl_b32 s78, s56, 8
v_add_u32 v3, s78, v3
s_mov_b32 s83, {spin}
L_qw:
ds_read_b32 v8, v9 offset:{CNT+16}
ds_read_b128 v[4:7], v3 offset:{QL}
s_sub_u32 s83, s83, 1
s_cbranch_scc1 L_q_ok
s_waitcnt lgkmcnt(0)
v_cmp_eq_u32 vcc, 0, v8
{"" if noq else "s_cbranch_vccnz L_qw"}
L_q_ok:
s_waitcnt lgkmcnt(0)
s_add_u32 s94, s94, 1""")
    stamp(3)
    for r in range(8, 16):
        e(f"v_mov_b32 v{r}, 0")
    e(f"""v_mov_b32 v16, 0xff7fffff
v_mov_b32 v17, 0
s_mov_b32 s84, {SCALE}
s_mov_b32 s86, 0xffff0000
v_and_b32 v28, 0x3c, v0
v_lshlrev_b32 v3, 1, v28
v_lshrrev_b32 v30, 1, v0
v_lshlrev_b32 v30, 2, v30
v_and_b32 v31, 1, v0
v_add_lshl_u32 v30, v30, v31, 2
v_lshlrev_b32 v31, 2, v0
s_mov_b32 s87, {R}
s_mov_b32 s88, {R}
s_mov_b32 s77, 0
s_mov_b32 s55, 0
s_mov_b32 s89, 0
s_mov_b32 s99, 0
s_mov_b32 s80, 0xaaaaaaaa
s_mov_b32 s81, 0xaaaaaaaa
s_mov_b32 s83, {spin}""")
    def boundary_out(ph, u, have, none):
        S = (S1, S2)[ph]; LIM = (LIM1, LIM2)[ph]
        nm = f"{ph}{have}"
        e(f"""L_need{nm}:
s_cmp_ge_u32 s87, {S}
s_cbranch_scc1 L_dyn{nm}
{snext}
s_lshl_b32 s42, s87, 6
s_add_u32 s42, s42, s35
s_add_u32 s87, s87, 1""")
        if ph == 0:
            e(f"""s_cmp_lg_u32 s87, {S}
s_cbranch_scc1 {have}_go
v_mov_b32 v26, {CNT}
v_mov_b32 v27, 1
ds_write_b32 v26, v27 offset:8""")
        else:
            e(f"""s_cmp_lg_u32 s87, {2*R+2}
s_cbranch_scc1 {have}_go
s_mov_b32 s90, 0x10000
s_atomic_add s90, s[36:37], 8""")
        e(f"s_branch {have}_go\nL_dyn{nm}:")
        if LIM == 0:
            e(f"s_branch {none}")
            return
        e(f"""L_early{nm}:
s_sub_u32 s83, s83, 1
s_cbranch_scc1 {none}""")
        if ph == 0:
            e(f"s_cmp_lt_u32 s55, {k4}\ns_cselect_b32 s95, 4, 2")
        else:
            e(f"s_cmp_lt_u32 s55, {v2}\ns_cselect_b32 s95, 2, 1")
            if v4:
                e(f"s_cmp_lt_u32 s55, {v4}\ns_cselect_b32 s95, 4, s95")
        e(f"""s_lshl_b32 s93, s50, 3
s_lshl_b32 s90, s95, s93
s_mov_b32 s91, 0
s_atomic_add_x2 s[90:91], s[36:37], {8*ph} glc
s_waitcnt lgkmcnt(0)
s_cmp_lg_u32 s91, s94
s_cbranch_scc1 L_early{nm}
s_lshr_b32 s55, s90, s93
s_and_b32 s55, s55, 0xff
s_cmp_lt_u32 s55, {LIM}
s_cbranch_scc1 L_got{nm}
s_cmp_eq_u32 s89, 1
s_cbranch_scc1 {none}
s_xor_b32 s93, s93, 8
s_lshr_b32 s55, s90, s93
s_and_b32 s55, s55, 0xff
s_cmp_ge_u32 s55, {LIM}
s_cbranch_scc1 {none}
s_mov_b32 s89, 1
s_xor_b32 s50, s50, 1
s_xor_b32 s54, s54, 0x2000
s_branch L_early{nm}
L_got{nm}:""")
        if ph == 1 and not nopub:
            e(f"""L_vd{nm}:
s_lshr_b32 s92, s90, 16
s_cmp_ge_u32 s92, 8
s_cbranch_scc1 L_vok{nm}
s_sub_u32 s83, s83, 1
s_cbranch_scc1 L_vok{nm}
s_mov_b32 s90, 0
s_atomic_add s90, s[36:37], 8 glc
s_waitcnt lgkmcnt(0)
s_branch L_vd{nm}
L_vok{nm}:""")
        e(f"""s_sub_u32 s77, {LIM}, s55
s_min_u32 s77, s77, s95
s_add_u32 s57, s55, {4*S}
s_add_u32 s55, s55, s95""")
        if stamps:
            e(f"s_lshl_b32 s92, s77, {16*ph}\ns_add_u32 s97, s97, s92")
        e(f"s_branch {have}")
    def boundary_in(ph, have):
        e(f"""s_cmp_eq_u32 s77, 0
s_cbranch_scc1 L_need{ph}{have}
{have}:
s_sub_u32 s77, s77, 1
{baddr("s57")}
s_lshr_b32 s42, s57, 1
s_lshl_b32 s42, s42, 8
s_lshr_b32 s92, s54, 6
s_add_u32 s42, s42, s92
s_and_b32 s92, s57, 1
s_lshl_b32 s92, s92, {2*ph}
s_and_b32 s92, s92, 4
s_add_u32 s42, s42, s92
s_add_u32 s42, s42, s34
s_add_u32 s57, s57, 1
{have}_go:""")
    nf = [0]
    def score_fetch(u):
        n = nf[0]; nf[0] += 1
        r = SB + u
        e(f"""s_cmp_ge_u32 s42, {SCW}
s_cbranch_scc1 L_sf{n}
v_add_u32 v26, s42, v28
ds_read_b32 v{r}, v26
s_branch L_sg{n}
L_sf{n}:
{"" if nopub & 2 else f"buffer_load_dword v{r}, v3, s[44:47], s42 offen {scf};"}
L_sg{n}:""")
    def kstep(u, nextv):
        k = KB + u * 32
        e(f"s_waitcnt vmcnt({8*(R-1)})")
        for j in range(8):
            e(f"v_dot2_f32_bf16 v{18+j}, v{k+4*j}, v4, 0")
        for i in range(1, 4):
            for j in range(8):
                e(f"v_dot2c_f32_bf16 v{18+j}, v{k+4*j+i}, v{4+i}")
        e(f"s_mov_b32 s43, s{10+u}")
        if nextv:
            score_fetch(u)
        else:
            e(f"s_mov_b32 s{10+u}, s42")
        issue(u)
        n = nf[0]; nf[0] += 1
        e(f"""v_add_f32_dpp v26, v18, v18 row_ror:8 row_mask:0xf bank_mask:0x3
v_add_f32_dpp v27, v20, v20 row_ror:8 row_mask:0xf bank_mask:0x3
v_add_f32_dpp v26, v19, v19 row_ror:8 row_mask:0xf bank_mask:0xc
v_add_f32_dpp v27, v21, v21 row_ror:8 row_mask:0xf bank_mask:0xc
v_add_f32_dpp v20, v22, v22 row_ror:8 row_mask:0xf bank_mask:0x3
v_add_f32_dpp v21, v24, v24 row_ror:8 row_mask:0xf bank_mask:0x3
v_add_f32_dpp v20, v23, v23 row_ror:8 row_mask:0xf bank_mask:0xc
v_add_f32_dpp v21, v25, v25 row_ror:8 row_mask:0xf bank_mask:0xc
v_add_f32_dpp v18, v26, v26 row_half_mirror row_mask:0xf bank_mask:0x5
v_add_f32_dpp v18, v27, v27 row_half_mirror row_mask:0xf bank_mask:0xa
v_add_f32_dpp v19, v20, v20 row_half_mirror row_mask:0xf bank_mask:0x5
v_add_f32_dpp v19, v21, v21 row_half_mirror row_mask:0xf bank_mask:0xa
s_nop 0
v_add_f32_dpp v18, v18, v18 quad_perm:[1,0,3,2] {DP}
v_add_f32_dpp v19, v19, v19 quad_perm:[1,0,3,2] {DP}
s_nop 0
v_add_f32_dpp v18, v18, v18 quad_perm:[2,3,0,1] {DP}
v_add_f32_dpp v19, v19, v19 quad_perm:[2,3,0,1] {DP}
v_cvt_pk_bf16_f32 v18, v18, v19
v_lshlrev_b32 v20, 16, v18
v_and_b32 v21, s86, v18
v_mul_f32 v20, s84, v20
v_mul_f32 v21, s84, v21
v_cvt_pk_bf16_f32 v18, v20, v21
s_cmp_ge_u32 s43, {SCW}
s_cbranch_scc1 L_pub{n}
v_add_u32 v26, s43, v28
ds_write_b32 v26, v18
s_branch L_pe{n}
L_pub{n}:""")
        if u % 2 == 0:
            e("v_mov_b32 v29, v18")
        else:
            e(f"""v_cndmask_b32 v18, v29, v18, s[80:81]
ds_bpermute_b32 v19, v30, v18
s_mov_b64 exec, 0xffffffff
s_waitcnt lgkmcnt(0)
{"" if nopub & 1 else f"buffer_store_dword v19, v31, s[44:47], s43 offen {pubf};"}
s_mov_b64 exec, -1""")
        e(f"L_pe{n}:")
    nw = [0]
    def vstep(u, last):
        v = KB + u * 32
        r = SB + u
        n = nw[0]; nw[0] += 1
        if not last:
            e(f"s_waitcnt vmcnt({8*(R-1)}) lgkmcnt(0)")
        else:
            for j in range(R - 1, 0, -1):
                e(f"s_cmp_lg_u32 s88, {j}\ns_cbranch_scc1 L_w{n}_{j}\ns_waitcnt vmcnt({8*j}) lgkmcnt(0)\ns_branch L_w{n}\nL_w{n}_{j}:")
            e(f"s_waitcnt vmcnt(0) lgkmcnt(0)\nL_w{n}:")
        e(f"""v_lshlrev_b32 v20, 16, v{r}
v_and_b32 v21, s86, v{r}
v_max_f32 v22, v20, v21
s_nop 1
v_max_f32_dpp v22, v22, v22 row_ror:8 {DP}
s_nop 1
v_max_f32_dpp v22, v22, v22 row_ror:4 {DP}
v_max_f32 v22, v16, v22
v_sub_f32 v20, v20, v22
v_sub_f32 v21, v21, v22
v_sub_f32 v24, v16, v22
v_mul_f32 v20, s85, v20
v_mul_f32 v21, s85, v21
v_mul_f32 v24, s85, v24
v_exp_f32 v20, v20
v_exp_f32 v21, v21
v_exp_f32 v24, v24
v_mov_b32 v16, v22
v_cvt_pk_bf16_f32 v18, v20, 0
v_cvt_pk_bf16_f32 v22, v21, 0
v_fma_f32 v17, v17, v24, v20
v_lshlrev_b32 v19, 16, v18
v_lshlrev_b32 v23, 16, v22
v_add_f32 v17, v17, v21""")
        for i in range(4):
            e(f"v_pk_mul_f32 v[{8+2*i}:{9+2*i}], v[{8+2*i}:{9+2*i}], v[24:25] op_sel_hi:[1,0]")
        for j in range(8):
            ln = (0, 8, 4, 12)[j & 3]
            p = 18 + 4 * (j >> 2)
            for i in range(4):
                e(f"v_dot2c_f32_bf16_dpp v{8+2*i}, v{p}, v{v+4*j+i} row_newbcast:{ln} {DP}")
                e(f"v_dot2c_f32_bf16_dpp v{9+2*i}, v{p+1}, v{v+4*j+i} row_newbcast:{ln} {DP}")
        if not last:
            score_fetch(u)
            issue(u)
    late = []
    e("L_A0:")
    for u in range(R):
        if u:
            e(f"L_A{u}:")
        boundary_in(0, f"L_ha{u}")
        kstep(u, False)
    e("s_branch L_A0")
    for u in range(R):
        e(f"L_B{u}:")
        boundary_in(1, f"L_hb{u}")
        kstep(u, True)
        e(f"s_sub_u32 s88, s88, 1\ns_cmp_eq_u32 s88, 0\ns_cbranch_scc1 L_C{(u+1)%R}")
    e("s_branch L_B0")
    for u in range(R):
        e(f"L_C{u}:")
        boundary_in(1, f"L_hc{u}")
        vstep(u, False)
    e("s_branch L_C0")
    for u in range(R):
        boundary_out(0, u, f"L_ha{u}", f"L_sw{u}")
        e(f"""L_sw{u}:
s_mov_b32 s28, s32
s_mov_b32 s29, s33
s_and_b32 s50, s48, 1
{"s_mov_b32 s51, 0" if mix else ("s_and_b32 s51, s48, 6" if alt else "s_lshr_b32 s51, s48, 1")}
s_lshl_b32 s54, s50, 13
s_mov_b32 s87, 0
s_mov_b32 s55, 0
s_mov_b32 s89, 0""")
        stamp(6)
        e(f"s_branch L_B{u}")
        boundary_out(1, u, f"L_hb{u}", "L_never")
        boundary_out(1, u, f"L_hc{u}", f"L_dr{u}")
    e("L_never:\ns_branch L_sdone")
    for u in range(R):
        e(f"L_dr{u}:\ns_mov_b32 s88, {R}\nL_D{u}:\ns_sub_u32 s88, s88, 1")
        vstep(u, True)
        e(f"s_cmp_eq_u32 s88, 0\ns_cbranch_scc1 L_sdone\ns_branch L_D{(u+1)%R}")
    for t in late:
        e(t)
    e("L_sdone:")
    stamp(5)
    e(f"""v_mov_b32 v18, v16
v_mov_b32 v19, v16
s_lshl_b32 s78, s2, 11
s_lshl_b32 s79, s56, 9
v_permlane16_swap_b32 v18, v19
s_add_u32 s78, s78, s79
v_max_f32 v18, v18, v19
v_mov_b32 v19, v18
s_add_u32 s78, s78, {PO}
s_lshl_b32 s79, s2, {6 + mlw}
v_permlane32_swap_b32 v18, v19
s_lshl_b32 s80, s56, {4 + mlw}
v_max_f32 v18, v18, v19
v_sub_f32 v20, v16, v18
v_mul_f32 v20, s85, v20
v_exp_f32 v20, v20
s_add_u32 s79, s79, s80
v_mul_f32 v17, v17, v20""")
    for r in range(8, 16):
        e(f"v_mul_f32 v{r}, v20, v{r}")
    e(f"""v_add_f32_dpp v17, v17, v17 row_ror:8 {DP}
s_add_u32 s79, s79, {PM}
v_permlane32_swap_b32 v8, v12
v_permlane32_swap_b32 v9, v13
v_add_f32_dpp v17, v17, v17 row_ror:4 {DP}
v_permlane32_swap_b32 v10, v14
v_permlane32_swap_b32 v11, v15
v_mov_b32 v19, v17
v_add_f32 v8, v8, v12
v_add_f32 v9, v9, v13
v_add_f32 v10, v10, v14
v_add_f32 v11, v11, v15
v_permlane16_swap_b32 v17, v19
v_mov_b32 v20, s94
v_permlane16_swap_b32 v8, v10
v_permlane16_swap_b32 v9, v11
v_add_f32 v17, v17, v19
v_add_f32 v8, v8, v10
v_mov_b32 v19, v17
v_add_f32 v9, v9, v11
s_movk_i32 s80, 0xff
v_permlane32_swap_b32 v17, v19
v_lshlrev_b32 v22, 3, v0
v_bfi_b32 v8, s80, v20, v8
v_bfi_b32 v9, s80, v20, v9
v_add_f32 v19, v17, v19
buffer_store_dwordx2 v[8:9], v22, s[44:47], s78 offen sc1
v_mov_b32 v21, s94
s_mov_b64 exec, {(1 << (1 << mlw)) - 1}
buffer_store_dwordx4 v[18:21], v1, s[44:47], s79 offen sc1
s_mov_b64 exec, -1
s_barrier""")
    e(f"""s_cmp_ge_u32 s3, {0 if notail else 2}
s_cbranch_scc1 L_bar_done
s_cmp_eq_u32 s3, 0
s_cbranch_scc1 L_red
s_cmp_eq_u32 s98, 0
s_cbranch_scc1 L_bar_done
s_mov_b32 s53, 8
L_red:
s_bfe_u32 s78, s52, 0x20001
s_mul_i32 s78, s78, 1152
s_lshr_b32 s79, s52, 3
s_lshl_b32 s79, s79, 5
s_add_u32 s78, s78, s79
s_and_b32 s79, s52, 1
s_lshl_b32 s79, s79, 4
s_add_u32 s78, s78, s79
s_lshl_b32 s79, s53, 7
s_add_u32 s78, s78, s79
v_and_b32 v9, 1, v0
v_lshlrev_b32 v10, 3, v9
s_mov_b32 s28, s4
s_mov_b32 s29, s5
s_mov_b32 s30, 4608
s_mov_b32 s31, 0x20000
buffer_load_dwordx2 v[16:17], v10, s[28:31], s78 offen
s_mov_b32 s40, s22
s_mov_b32 s41, s23
s_mov_b32 s42, 4608
s_mov_b32 s43, 0x20000
v_lshrrev_b32 v8, 1, v0
v_lshlrev_b32 v8, 10, v8
v_lshl_add_u32 v8, v9, 4, v8
s_lshl_b32 s79, s53, 15
s_lshl_b32 s80, s52, 5
s_add_u32 s79, s79, s80
s_add_u32 s79, s79, {YW}
s_mov_b32 s83, {spin}
s_barrier
L_h2:
buffer_load_dwordx4 v[12:15], v8, s[44:47], s79 offen sc1
s_sub_u32 s83, s83, 1
s_cbranch_scc1 L_h2_done
s_waitcnt vmcnt(0)
v_xor_b32 v20, s94, v12
v_bitop3_b32 v20, v20, v13, s94 {OR_XOR}
v_bitop3_b32 v20, v20, v14, s94 {OR_XOR}
v_bitop3_b32 v20, v20, v15, s94 {OR_XOR}
v_and_b32 v20, 0xff, v20
s_nop 1
v_or_b32_dpp v20, v20, v20 quad_perm:[1,0,3,2] {DP}
v_cmp_ne_u32 vcc, 0, v20
s_and_b64 exec, exec, vcc
s_cbranch_execnz L_h2
L_h2_done:
s_mov_b64 exec, -1
s_waitcnt vmcnt(0)""")
    if eearly:
        e(f"""s_add_u32 s79, s2, s3
s_cmp_lg_u32 s79, 0
s_cbranch_scc1 L_noe
v_mov_b32 v24, s94
v_mov_b32 v25, {EW}
s_mov_b64 exec, 1
buffer_store_dword v24, v25, s[44:47], 0 offen
s_mov_b64 exec, -1
L_noe:""")
    for dpp in ("quad_perm:[2,3,0,1]", "row_ror:4", "row_ror:8"):
        for r in range(12, 16):
            e(f"v_add_f32_dpp v{r}, v{r}, v{r} {dpp} {DP}")
    for sw in (16, 32):
        for r in range(4):
            e(f"v_mov_b32 v{20+r}, v{12+r}")
        for r in range(4):
            e(f"v_permlane{sw}_swap_b32 v{12+r}, v{20+r}")
        for r in range(4):
            e(f"v_add_f32 v{12+r}, v{12+r}, v{20+r}")
    e(f"""v_lshlrev_b32 v20, 16, v16
v_and_b32 v21, 0xffff0000, v16
v_lshlrev_b32 v22, 16, v17
v_and_b32 v23, 0xffff0000, v17
v_add_f32 v12, v12, v20
v_add_f32 v13, v13, v21
v_add_f32 v14, v14, v22
v_add_f32 v15, v15, v23
v_cvt_pk_bf16_f32 v12, v12, v13
v_cvt_pk_bf16_f32 v13, v14, v15
s_mov_b64 exec, 3
buffer_store_dwordx2 v[12:13], v10, s[40:43], s78 offen
s_add_u32 s78, s2, s3
s_cmp_lg_u32 s78, 0
{"s_branch L_done" if eearly else "s_cbranch_scc1 L_done"}
v_mov_b32 v12, s94
v_mov_b32 v13, {EW}
s_mov_b64 exec, 1
buffer_store_dword v12, v13, s[44:47], 0 offen sc1
s_branch L_done
L_bar_done:
s_barrier
s_branch L_done""")

    def srd(ptr, nbytes):
        e(f"s_mov_b32 s40, s{ptr}\ns_mov_b32 s41, s{ptr+1}\ns_mov_b32 s42, {nbytes}\ns_mov_b32 s43, 0x20000")
    def dma(n_ins, step, ldsbase, vreg, alt=False):
        for n in range(n_ins):
            e(f"s_add_u32 m0, s79, {ldsbase + 1024*n}")
            e(f"s_add_u32 s78, s78, {step}" if n else "s_nop 0")
            e(f"buffer_load_dwordx4 v{vreg + (n & 1 if alt else 0)}, s[40:43], s78 offen {wflag} lds")
    def proj_tiles(stripe_sreg, wo_base, wd_base, late=False):
        e(f"s_lshl_b32 s81, s{stripe_sreg}, 7")
        if late or defer != 2:
            srd(12, 4096 * 1152)
            e(f"""s_mul_i32 s78, s52, {128*1152}
s_add_u32 s78, s78, s81
s_mul_i32 s79, s56, {32*1152}
s_add_u32 s78, s78, s79
s_lshl_b32 s79, s56, 12""")
            dma(4, 8 * 1152, wo_base, 31)
        if late and defer == 2:
            return
        srd(20, 4608 * 1152)
        e(f"""s_mul_i32 s78, s52, {144*1152}
s_add_u32 s78, s78, s81
s_mul_i32 s79, s57, {8*1152}
s_add_u32 s78, s78, s79
s_lshl_b32 s79, s57, 10""")
        dma(5, 8 * 1152, wd_base, 31)
    npj = [0]
    def all_proj(late=False):
        n = npj[0]; npj[0] += 1
        proj_tiles(53, WOT, WDT, late)
        e(f"s_cmp_eq_u32 s98, 0\ns_cbranch_scc1 L_pj{n}\ns_mov_b32 s80, 8")
        proj_tiles(80, FT, FT + 16384, late)
        e(f"L_pj{n}:")
    def pick_batch(d, a):
        e(f"""v_cndmask_b32 v{a}, v{a}, v{a+1}, s[38:39]
v_cndmask_b32 v{a+2}, v{a+2}, v{a+3}, s[38:39]
v_cndmask_b32 v{d}, v{a}, v{a+2}, s[58:59]""")
    tn = [0]
    def ticket_init():
        n = tn[0]; tn[0] += 1
        e(f"""s_cmp_lg_u32 s56, 3
s_cbranch_scc1 L_ti{n}
s_cmp_ge_u32 s2, 128
s_cbranch_scc1 L_ti{n}
v_mov_b32 v22, 0
v_mov_b32 v23, s94
v_lshlrev_b32 v24, 3, v0
s_mov_b64 exec, 0xffff
s_lshl_b32 s79, s2, 7
s_add_u32 s79, s79, {CW}
buffer_store_dwordx2 v[22:23], v24, s[44:47], s79 offen sc1
s_mov_b64 exec, -1
L_ti{n}:""")
    qn = [0]
    def qfetch():
        ticket_init()
        n = qn[0]; qn[0] += 1
        e(f"""v_lshrrev_b32 v14, 3, v0
v_lshlrev_b32 v14, 8, v14
v_and_b32 v15, 7, v0
v_lshl_add_u32 v14, v15, 3, v14
s_lshl_b32 s88, s56, 6
s_lshl_b32 s89, s49, 11
s_add_u32 s88, s88, s89
s_add_u32 s88, s88, {QW}
s_lshl_b32 s89, s56, 8
v_lshl_add_u32 v3, v0, 2, s89
s_lshl_b32 s89, s56, 2
v_mov_b32 v2, s89
s_mov_b32 s83, {spin}
L_q_again{n}:
buffer_load_dwordx2 v[16:17], v14, s[44:47], s88 offen sc1
s_sub_u32 s83, s83, 1
s_cbranch_scc1 L_q_got{n}
s_waitcnt vmcnt(0)
v_xor_b32 v15, s94, v16
v_bitop3_b32 v15, v15, v17, s94 {OR_XOR}
v_and_b32 v15, 0xffff, v15
v_cmp_ne_u32 vcc, 0, v15
s_cbranch_vccnz L_q_again{n}
L_q_got{n}:
s_mov_b32 s89, 0x07060302
v_perm_b32 v16, v17, v16, s89
v_mov_b32 v15, 1
ds_write_b32 v3, v16 offset:{QL}
ds_write_b32 v2, v15 offset:{CNT+16}
s_setprio {svcprio}""")
        stamp(4)
    if bare & 1:
        e("L_svc:\ns_endpgm\nL_svc_x:")
    e(f"""{"" if bare & 1 else "L_svc:"}
s_setprio {svc0}
s_sub_u32 s56, s3, 4
s_mul_i32 s57, s56, 9
s_lshr_b32 s57, s57, 1
v_lshrrev_b32 v8, 3, v0
v_and_b32 v10, 7, v0
v_lshlrev_b32 v10, 4, v10
v_mul_u32_u24 v31, 1152, v8
v_add_u32 v31, v31, v10
s_mov_b32 s58, 0
s_mov_b32 s59, -1
s_sub_u32 s78, s96, 5
s_cmp_lt_u32 s78, 2
s_cbranch_scc1 L_tq
s_and_b32 s78, s49, 1
s_add_u32 s78, s78, 4
s_cmp_ge_u32 s96, s78
s_cbranch_scc1 L_notask
s_mul_i32 s80, s49, 9
s_lshr_b32 s80, s80, 1
s_add_u32 s80, s80, s96
s_lshl_b32 s51, s80, 10
s_add_u32 s51, s51, {GU}
s_cmp_ge_u32 s80, 72
s_cselect_b32 s40, s18, s16
s_cselect_b32 s41, s19, s17
s_cselect_b32 s78, 72, 0
s_mov_b32 s42, {576*9216}
s_sub_u32 s80, s80, s78
s_movk_i32 s50, 9216
s_branch L_task
L_tq:
s_lshl_b32 s80, s49, 1
s_add_u32 s80, s80, s78
s_lshl_b32 s51, s80, 10
s_add_u32 s51, s51, {QW}
s_mov_b32 s40, s10
s_mov_b32 s41, s11
s_mov_b32 s42, {576*8192}
s_movk_i32 s50, 8192
L_task:
s_mov_b32 s43, 0x20000
s_mul_i32 s36, s56, 1152
s_add_u32 s36, s4, s36
s_addc_u32 s37, s5, 0
s_mov_b32 s38, 1152
s_mov_b32 s39, 0x20000
v_lshlrev_b32 v7, 2, v0""")
    if st2 == 1:
        stamp(2)
    for j in range(5):
        e(f"buffer_load_dword v{2+j}, v7, s[36:39], 0 offen offset:{256*j}")
    if swz:
        e("""v_bfe_u32 v9, v0, 4, 1
v_lshlrev_b32 v9, 5, v9
v_xor_b32 v10, v10, v9""")
    e(f"""v_mul_u32_u24 v8, s50, v8
v_add_u32 v8, v8, v10
v_xor_b32 v9, 64, v8
s_lshl_b32 s78, s80, 7
s_mul_i32 s79, s56, 144
s_mul_i32 s79, s79, s50
s_add_u32 s78, s78, s79
s_lshl_b32 s82, s50, 3
s_lshl_b32 s79, s56, 8
s_add_u32 s51, s51, s79
s_mul_i32 s79, s56, {18*1024}""")
    dma(18, "s82", FT, 8, bool(swz))
    if pj0 == 1:
        proj_tiles(53, WOT, WDT)
    if st2 == 4:
        stamp(2)
    e("s_barrier")
    if pj0 == 2:
        proj_tiles(53, WOT, WDT)
    NPJ = 0 if not pj0 else (5 if defer == 2 else 9)
    NPX = 0 if pj0 == 3 else NPJ
    if st2 == 2:
        stamp(2)
    e(f"s_waitcnt vmcnt({18 + NPX})")
    if st2 == 3:
        stamp(2)
    def wave_sum(r, t):
        for k in (8, 4, 2, 1):
            e(f"s_nop 1\nv_add_f32_dpp v{r}, v{r}, v{r} row_ror:{k} {DP}")
        for sw in (16, 32):
            e(f"v_mov_b32 v{t}, v{r}\ns_nop 1\nv_permlane{sw}_swap_b32 v{r}, v{t}\ns_nop 0\nv_add_f32 v{r}, v{r}, v{t}")
    def rbf(d, s):
        e(f"v_cvt_pk_bf16_f32 v{d}, v{s}, v{s}\nv_and_b32 v{d}, 0xffff0000, v{d}")
    for j in range(5):
        e(f"v_lshlrev_b32 v{10+2*j}, 16, v{2+j}\nv_and_b32 v{11+2*j}, 0xffff0000, v{2+j}")
    e("v_add_f32 v20, v10, v11")
    for j in range(12, 20):
        e(f"v_add_f32 v20, v20, v{j}")
    wave_sum(20, 21)
    e("v_mul_f32 v20, 0x3ae38e39, v20")
    e("v_cmp_gt_u32 vcc, 32, v0")
    for j in range(10):
        e(f"v_sub_f32 v{22+j if j < 8 else 2+j-8}, v{10+j}, v20")
    e("v_cndmask_b32 v2, 0, v2, vcc\nv_cndmask_b32 v3, 0, v3, vcc")
    e("v_mul_f32 v21, v2, v2\nv_fmac_f32 v21, v3, v3")
    for j in range(8):
        e(f"v_fmac_f32 v21, v{22+j}, v{22+j}")
    wave_sum(21, 22)
    e("v_mul_f32 v21, 0x3ae38e39, v21")
    rbf(21, 21)
    e("v_add_f32 v21, 0x3727c5ac, v21")
    rbf(21, 21)
    e("v_sqrt_f32 v21, v21\ns_nop 0")
    rbf(21, 21)
    e("v_rcp_f32 v21, v21")
    rbf(20, 20)
    for j in range(10):
        e(f"v_sub_f32 v{10+j}, v{10+j}, v20")
    for j in range(5):
        e(f"v_cvt_pk_bf16_f32 v{2+j}, v{10+2*j}, v{11+2*j}")
    for j in range(5):
        e(f"v_lshlrev_b32 v{10+2*j}, 16, v{2+j}\nv_and_b32 v{11+2*j}, 0xffff0000, v{2+j}")
    for j in range(10):
        e(f"v_mul_f32 v{10+j}, v{10+j}, v21")
    for j in range(5):
        e(f"v_cvt_pk_bf16_f32 v{2+j}, v{10+2*j}, v{11+2*j}")
    e("s_mul_i32 s78, s56, 1152\nv_add_u32 v7, s78, v7")
    for j in range(4):
        e(f"ds_write_b32 v7, v{2+j} offset:{XN+256*j}")
    e(f"s_mov_b64 exec, 0xffffffff\nds_write_b32 v7, v6 offset:{XN+1024}\ns_mov_b64 exec, -1")
    if pj0 == 3:
        proj_tiles(53, WOT, WDT)
    e(f"""v_lshrrev_b32 v8, 4, v0
v_lshlrev_b32 v9, 4, v8
v_lshlrev_b32 v8, 3, v8
v_bfe_u32 v10, v0, 2, 2
v_add_u32 v8, v8, v10
v_lshlrev_b32 v8, 7, v8
v_and_b32 v10, 3, v0
v_lshl_add_u32 v8, v10, 3, v8
v_mul_u32_u24 v10, 1152, v10
v_add_u32 v9, v9, v10
s_lshl_b32 s78, s56, 5
v_bfe_u32 v14, v0, 3, 2
v_lshlrev_b32 v14, 5, v14
v_and_b32 v14, {0x60 if swz else 0}, v14
v_xor_b32 v14, s78, v14
v_add_u32 v11, {FT}, v8
v_add_u32 v11, v11, v14
v_add_u32 v12, {9*4096}, v11
v_lshlrev_b32 v13, 2, v0""")
    for r in range(16, 20):
        e(f"v_mov_b32 v{r}, 0")
    e(f"""v_mov_b32 v29, {CNT}
v_mov_b32 v30, 1
s_mov_b32 s83, {spin}
s_waitcnt vmcnt({NPJ}) lgkmcnt(0)
s_add_u32 s94, s94, 1
s_mov_b32 s38, 0xffff0000
s_mov_b32 s39, 0xffff0000
s_mov_b64 exec, 1
ds_add_u32 v29, v30
s_mov_b64 exec, -1
L_wxn:
ds_read_b32 v30, v29
s_sub_u32 s83, s83, 1
s_cbranch_scc1 L_wxn_ok
s_waitcnt lgkmcnt(0)
v_cmp_gt_u32 vcc, 4, v30
s_cbranch_vccnz L_wxn
L_wxn_ok:
s_waitcnt lgkmcnt(0)""")
    stamp(1)
    def rd(s):
        base = 32 + (s % 5) * 8
        e(f"ds_read_b128 v[{base}:{base+3}], v9 offset:{XN+64*s}")
        sg, so = divmod(s, 9)
        e(f"ds_read_b64_tr_b16 v[{base+4}:{base+5}], v{11+sg} offset:{4096*so}")
        e(f"ds_read_b64_tr_b16 v[{base+6}:{base+7}], v{11+sg} offset:{4096*so+512}")
    for s in range(4):
        rd(s)
    for s in range(18):
        e(f"s_waitcnt lgkmcnt({min(3, 17-s)*3})")
        base = 32 + (s % 5) * 8
        e(f"v_mfma_f32_16x16x32_bf16 v[16:19], v[{base}:{base+3}], v[{base+4}:{base+7}], v[16:19]")
        if s + 4 < 18:
            rd(s + 4)
    e("v_mov_b32 v21, s94\ns_mov_b32 s78, 0x07060100\ns_nop 5")
    pick_batch(20, 16)
    e("""v_cvt_pk_bf16_f32 v20, v20, v20
v_perm_b32 v20, v20, v21, s78
buffer_store_dword v20, v13, s[44:47], s51 offen sc1""")
    if not st2:
        stamp(2)
    qfetch()
    if not defer and not pj0:
        proj_tiles(53, WOT, WDT)
    e("s_branch L_tick\nL_notask:")
    if defer != 1:
        all_proj()
    e("s_barrier\ns_waitcnt lgkmcnt(0)\ns_add_u32 s94, s94, 1\ns_mov_b32 s38, 0xffff0000\ns_mov_b32 s39, 0xffff0000")
    qfetch()
    e("L_tick:")
    e(f"""L_gu:
v_min_u32 v8, 35, v0
v_lshrrev_b32 v9, 2, v8
v_lshlrev_b32 v9, 8, v9
v_and_b32 v24, 3, v8
v_lshl_add_u32 v24, v24, 4, v9
v_lshlrev_b32 v26, 3, v8
s_mul_i32 s78, s56, 288
v_add_u32 v26, s78, v26
s_mul_i32 s78, s52, 2304
s_lshl_b32 s79, s56, 6
s_add_u32 s78, s78, s79
s_add_u32 s78, s78, {GU}
s_add_u32 s79, s78, 73728
v_mov_b32 v29, {CNT}
s_mov_b32 s83, {spin}
{"" if hsleep else "s_setprio 0"}
L_late:
{f"s_sleep {hsleep}" if hsleep else ""}
ds_read_b32 v30, v29 offset:8
s_sub_u32 s83, s83, 1
s_cbranch_scc1 L_late_ok
s_waitcnt lgkmcnt(0)
v_cmp_eq_u32 vcc, 0, v30
s_cbranch_vccnz L_late
L_late_ok:
s_setprio {svcprio}
s_waitcnt lgkmcnt(0)
s_mov_b32 s83, {spin}
L_ph:
buffer_load_dwordx4 v[32:35], v24, s[44:47], s78 offen sc1
buffer_load_dwordx4 v[36:39], v24, s[44:47], s79 offen sc1
s_sub_u32 s83, s83, 1
s_cbranch_scc1 L_ph_done
s_waitcnt vmcnt(0)
v_xor_b32 v8, s94, v32""")
    for r in range(33, 40):
        e(f"v_bitop3_b32 v8, v8, v{r}, s94 {OR_XOR}")
    e("""v_and_b32 v8, 0xffff, v8
v_cmp_ne_u32 vcc, 0, v8
s_cbranch_vccnz L_ph
L_ph_done:
s_waitcnt vmcnt(0)""")
    for r in range(32, 40):
        e(f"v_and_b32 v{r}, 0xffff0000, v{r}")
    e("s_mov_b32 s78, 0x3d372713\ns_mov_b32 s79, 0xc0135761")
    for r in range(4):
        g = 32 + r; t = 40 + r
        e(f"""v_mul_f32 v{t}, v{g}, v{g}
v_mul_f32 v{t}, v{t}, v{g}
v_fma_f32 v{t}, v{t}, s78, v{g}
v_mul_f32 v{t}, s79, v{t}
v_exp_f32 v{t}, v{t}
s_nop 0
v_add_f32 v{t}, 1.0, v{t}
v_rcp_f32 v{t}, v{t}
s_nop 0
v_mul_f32 v{t}, v{t}, v{g}""")
        rbf(t, t)
        e(f"v_mul_f32 v{t}, v{t}, v{36+r}")
    e(f"""v_cvt_pk_bf16_f32 v16, v40, v41
v_cvt_pk_bf16_f32 v17, v42, v43
ds_write_b64 v26, v[16:17] offset:{HL}""")
    stamp(3)
    e(f"""v_lshrrev_b32 v8, 4, v0
v_bfe_u32 v10, v0, 2, 2
v_lshl_add_u32 v11, v8, 2, v10
v_lshl_add_u32 v10, v8, 3, v10
v_lshlrev_b32 v10, 7, v10
v_lshlrev_b32 v11, 7, v11
v_and_b32 v12, 3, v0
v_lshlrev_b32 v13, 3, v12
s_lshl_b32 s78, s56, 5
v_add3_u32 v10, v10, v13, s78
v_add3_u32 v11, v11, v13, s78
v_add_u32 v4, {WDT}, v10
v_add_u32 v5, {WDT+128*128}, v11
v_add_u32 v6, {WOT}, v10
v_add_u32 v100, {FT+16384}, v10
v_add_u32 v101, {FT+16384+128*128}, v11
v_add_u32 v102, {FT}, v10
v_mul_u32_u24 v13, 288, v12
v_lshl_add_u32 v7, v8, 3, v13
v_lshl_add_u32 v3, v8, 4, v13
v_lshlrev_b32 v12, 8, v12
v_lshl_add_u32 v30, v8, 4, v12
s_lshl_b32 s79, s56, 9
v_lshl_add_u32 v112, v0, 3, s79
v_and_b32 v113, 7, v0
v_lshlrev_b32 v113, {6 + mlw}, v113
s_lshl_b32 s79, s56, {4 + mlw}
v_add_u32 v113, s79, v113
s_lshl_b32 s88, s52, 14
s_add_u32 s88, s88, {PO}
s_add_u32 s89, s88, 4096
s_add_u32 s90, s88, 8192
s_add_u32 s91, s88, 12288
s_lshl_b32 s92, s52, {9 + mlw}
s_add_u32 s92, s92, {PM}
v_and_b32 v29, 15, v0
v_lshlrev_b32 v29, 4, v29
v_lshl_add_u32 v29, v8, 2, v29
s_lshl_b32 s79, s56, 8
v_add_u32 v29, s79, v29
v_lshlrev_b32 v114, 2, v0
s_lshl_b32 s93, s52, 10
s_add_u32 s93, s93, s79
s_add_u32 s93, s93, {YW}
s_add_u32 s87, s93, {8*32768}
s_lshl_b32 s79, s53, 15
s_add_u32 s93, s93, s79
s_movk_i32 s82, 0xff
v_mov_b32 v115, s94""")
    for r in list(range(24, 28)) + list(range(116, 120)):
        e(f"v_mov_b32 v{r}, 0")
    e("s_waitcnt vmcnt(0) lgkmcnt(0)")
    if trig:
        e(f"""v_mov_b32 v8, {CNT}
s_mov_b32 s83, {spin}
L_wtr:
s_sleep 2
ds_read_b32 v9, v8 offset:12
s_sub_u32 s83, s83, 1
s_cbranch_scc1 L_wtr_ok
s_waitcnt lgkmcnt(0)
v_cmp_eq_u32 vcc, 0, v9
s_cbranch_vccnz L_wtr
L_wtr_ok:""")
        all_proj(True)
    e(f"""s_mov_b32 s83, {spin}
s_barrier""")
    stamp(5)
    if notail:
        e("s_barrier\ns_branch L_done")
    P = [10 + 2 * s if s < 7 else 120 for s in range(8)]
    def gather(first):
        e("buffer_load_dwordx4 v[124:127], v113, s[44:47], s92 offen sc1")
        for s in range(8):
            if not first:
                e(f"s_bitcmp1_b32 s86, {s}\ns_cbranch_scc1 L_g{s}")
            e(f"buffer_load_dwordx2 v[{P[s]}:{P[s]+1}], v112, s[44:47], s{88+s//2} offen offset:{2048*(s&1)} sc1")
            if not first:
                e(f"L_g{s}:")
    def hid_frags():
        for s in range(4):
            e(f"ds_read_b128 v[{48+4*s}:{51+4*s}], v3 offset:{HL+64*s}")
        e(f"ds_read_b64 v[66:67], v7 offset:{HL+256}")
    def wd_frags(va, vb):
        for s in range(4):
            e(f"ds_read_b64_tr_b16 v[{32+4*s}:{33+4*s}], v{va} offset:{4096*s}")
            e(f"ds_read_b64_tr_b16 v[{34+4*s}:{35+4*s}], v{va} offset:{4096*s+512}")
        e(f"ds_read_b64_tr_b16 v[64:65], v{vb}")
    def down_mfma(acc):
        for s in range(4):
            e(f"v_mfma_f32_16x16x32_bf16 v[{acc}:{acc+3}], v[{48+4*s}:{51+4*s}], v[{32+4*s}:{35+4*s}], v[{acc}:{acc+3}]")
        e(f"s_nop 5\nv_mfma_f32_16x16x16_bf16 v[{acc}:{acc+3}], v[66:67], v[64:65], v[{acc}:{acc+3}]")
    def wo_frags(vo, wob):
        for s in range(4):
            e(f"ds_read_b64_tr_b16 v[{wob+4*s}:{wob+1+4*s}], v{vo} offset:{4096*s}")
            e(f"ds_read_b64_tr_b16 v[{wob+2+4*s}:{wob+3+4*s}], v{vo} offset:{4096*s+512}")
    def down_all(tag):
        wd_frags(4, 5)
        e("s_waitcnt lgkmcnt(0)")
        down_mfma(24)
        if defer != 2:
            wo_frags(6, 68)
        e(f"s_cmp_eq_u32 s98, 0\ns_cbranch_scc1 L_dn{tag}\ns_waitcnt lgkmcnt(0)")
        wd_frags(100, 101)
        e("s_waitcnt lgkmcnt(0)")
        down_mfma(116)
        if defer != 2:
            wo_frags(102, 84)
        e(f"L_dn{tag}:")
    gather(True)
    if defer and not trig:
        all_proj(True)
    hid_frags()
    if defer != 1:
        down_all(0)
    e("s_branch L_h1\nL_h1_again:\ns_mov_b32 s86, 0")
    for s in range(8):
        e(f"""v_xor_b32 v122, s94, v{P[s]}
v_bitop3_b32 v122, v122, v{P[s]+1}, s94 {OR_XOR}
v_and_b32 v122, 0xff, v122
v_cmp_ne_u32 vcc, 0, v122
s_cmp_eq_u64 vcc, 0
s_cselect_b32 s84, {1 << s}, 0
s_or_b32 s86, s86, s84""")
    gather(False)
    e("""L_h1:
s_sub_u32 s83, s83, 1
s_cbranch_scc1 L_h1_done
s_waitcnt vmcnt(0)
v_xor_b32 v122, s94, v10
v_xor_b32 v123, s94, v11""")
    for r in list(range(12, 24)) + [120, 121]:
        e(f"v_bitop3_b32 v{122+(r&1)}, v{122+(r&1)}, v{r}, s94 {OR_XOR}")
    e(f"""v_or_b32 v122, v122, v123
v_and_b32 v122, 0xff, v122
v_bitop3_b32 v122, v122, v126, s94 {OR_XOR}
v_bitop3_b32 v122, v122, v127, s94 {OR_XOR}
v_mov_b32 v8, v124
v_mov_b32 v9, v125
v_cmp_ne_u32 vcc, 0, v122
s_cbranch_vccnz L_h1_again
L_h1_done:""")
    stamp(6)
    e(f"""v_max_f32_dpp v122, v8, v8 quad_perm:[1,0,3,2] {DP}
s_nop 1
v_max_f32_dpp v122, v122, v122 quad_perm:[2,3,0,1] {DP}
s_nop 1
v_max_f32_dpp v122, v122, v122 row_half_mirror {DP}
v_sub_f32 v8, v8, v122
v_mul_f32 v8, s85, v8
v_exp_f32 v8, v8
s_nop 0
v_mul_f32 v9, v9, v8
s_nop 0
v_mul_f32_dpp v122, v8, v10 row_newbcast:0 {DP}
v_add_f32_dpp v9, v9, v9 quad_perm:[1,0,3,2] {DP}
v_mul_f32_dpp v123, v8, v11 row_newbcast:0 {DP}
v_fmac_f32_dpp v122, v8, v12 row_newbcast:1 {DP}
v_add_f32_dpp v9, v9, v9 quad_perm:[2,3,0,1] {DP}
v_fmac_f32_dpp v123, v8, v13 row_newbcast:1 {DP}
v_fmac_f32_dpp v122, v8, v14 row_newbcast:2 {DP}
v_add_f32_dpp v9, v9, v9 row_half_mirror {DP}
v_fmac_f32_dpp v123, v8, v15 row_newbcast:2 {DP}
v_rcp_f32 v9, v9""")
    for s in range(3, 8):
        e(f"v_fmac_f32_dpp v122, v8, v{P[s]} row_newbcast:{s} {DP}")
        e(f"v_fmac_f32_dpp v123, v8, v{P[s]+1} row_newbcast:{s} {DP}")
    e(f"""v_mul_f32 v122, v122, v9
v_mul_f32 v123, v123, v9
v_cvt_pk_bf16_f32 v122, v122, v123
ds_write_b32 v29, v122 offset:{OL}
s_waitcnt lgkmcnt(0)
s_barrier""")
    OF = 8 if defer else 48
    for s in range(4):
        e(f"ds_read_b128 v[{OF+4*s}:{OF+3+4*s}], v30 offset:{OL+64*s}")
    if defer == 1:
        down_all(1)
        e("s_waitcnt lgkmcnt(0)")
    if defer == 2:
        wo_frags(6, 68)
        e("s_cmp_eq_u32 s98, 0\ns_cbranch_scc1 L_wf\ns_waitcnt lgkmcnt(0)")
        wo_frags(102, 84)
        e("L_wf:\ns_waitcnt lgkmcnt(0)")
    for s in range(4):
        if not defer:
            e(f"s_waitcnt lgkmcnt({3-s})")
        e(f"v_mfma_f32_16x16x32_bf16 v[24:27], v[{OF+4*s}:{OF+3+4*s}], v[{68+4*s}:{71+4*s}], v[24:27]")
    e("s_cmp_eq_u32 s98, 0\ns_cbranch_scc1 L_y1")
    for s in range(4):
        e(f"v_mfma_f32_16x16x32_bf16 v[116:119], v[{OF+4*s}:{OF+3+4*s}], v[{84+4*s}:{87+4*s}], v[116:119]")
    e("s_nop 7")
    pick_batch(116, 116)
    e("""v_bfi_b32 v116, s82, v115, v116
buffer_store_dword v116, v114, s[44:47], s87 offen sc1
L_y1:
s_nop 7""")
    pick_batch(24, 24)
    e("""v_bfi_b32 v24, s82, v115, v24
buffer_store_dword v24, v114, s[44:47], s93 offen sc1
L_done:
s_mov_b64 exec, -1""")
    if stamps:
        e("s_waitcnt vmcnt(0)")
        stamp(7)
        e(f"""s_lshl_b32 s78, s2, {2 if bare & 8 else 3}
s_add_u32 s78, s78, s3
s_lshl_b32 s78, s78, 6
s_add_u32 s78, s78, {STAMP}
s_getreg_b32 s79, hwreg(HW_REG_XCC_ID, 0, 4)
v_mov_b32 v1, s78""")
        for k in range(8):
            e(f"v_mov_b32 v{4+k}, s{60+2*k}")
        e("""v_mov_b32 v12, s97
v_mov_b32 v13, s79
global_store_dwordx4 v1, v[4:7], s[26:27]
global_store_dwordx4 v1, v[8:11], s[26:27] offset:16
global_store_dwordx2 v1, v[12:13], s[26:27] offset:32""")
    e(f"""L_end:
s_endpgm
.section .rodata,"a"
.p2align 6
.amdhsa_kernel {KN}
  .amdhsa_next_free_vgpr {NV}
  .amdhsa_next_free_sgpr 100
  .amdhsa_accum_offset {(NV+3)//4*4}
  .amdhsa_group_segment_fixed_size 0
  .amdhsa_kernarg_size 96
  .amdhsa_user_sgpr_count 2
  .amdhsa_user_sgpr_kernarg_segment_ptr 1
  .amdhsa_system_sgpr_workgroup_id_x 1
  .amdhsa_float_denorm_mode_32 3
.end_amdhsa_kernel""")
    out = []
    for ln in e.o:
        if ln.rstrip().endswith(" sc1") and "buffer_store" in ln:
            ln = ln.rstrip()[:-3] + stf
        elif ln.rstrip().endswith(" sc1") and "buffer_load" in ln:
            ln = ln.rstrip()[:-3] + ldf
        out.append(ln)
    e.o = out
    return HEADER + e.text()

if __name__ == "__main__":
    kw = eval("dict(%s)" % (sys.argv[1] if len(sys.argv) > 1 else ""))
    sys.stdout.write(gen(**kw))
```

```python
import sys
KN = "parallel_sum__mha_block_cached__geglu_ffn__decode_kernel"

PO = 0x20000
PM = 0xA0000
YW = 0xB0000
QW = 0x100000
GU = 0x180000
CW = 0x1A8000
SCW = 0x200000
EW = 0x600000
WS_SIZE = 0x600080
STAMP = 0x700000
XN = 0; HL = 5632; OL = 6912; CNT = 7936; QL = 8192
FT = 12288; WOT = 86016; WDT = 102400
SCL = 120832
LDS_SIZE = 129024

LOG2E = 0x3fb8aa3b
SCALE = 0x3db504f3
DP = "row_mask:0xf bank_mask:0xf"
OR_XOR = "bitop3:0xf6"

HEADER = """; Kernarg layout for this problem (96 bytes, ptrs only, base s[0:1]):
"""

DOC = """;
;
"""

class A:
    def __init__(self):
        self.o = []
    def __call__(self, s):
        for ln in s.strip("\n").split("\n"):
            ln = ln.strip()
            if ln:
                self.o.append(ln if ln.endswith(":") or ln.startswith((".", ";")) else "    " + ln)
    def text(self):
        return "\n".join(self.o) + "\n"

def gen(R=4, S=24, v2=26, v4=0, k4=0, wflag="nt", kvflag="nt", stamps=0, spin=1 << 20, svcprio=1, svc0=3,
        bal=1, noq=0, notail=0, pj0=2, swz=1, mlw=3, stf="sc1", ldf="sc1", nopub=0, hm=0, qa=0, qm=0, qk=0, rot=0, alt=0, lay=1, mix=0, mul=1, pubf="sc1 ", scf="sc1 "):
    hsleep = defer = trig = st2 = bare = 0
    eearly = 1
    e = A()
    PM = 0xA0000 if mlw == 0 else 0x120000
    S1 = S2 = S
    assert S % 2 == 0 and R % 2 == 0 and S > 2 * R + 2
    LIM1 = 128 - 4 * S1
    LIM2 = 128 - 4 * S2
    def stamp(k):
        if stamps and not (bare & 16 and k in (1, 3, 4, 6)):
            e(f"s_memrealtime s[{60+2*k}:{61+2*k}]\ns_waitcnt lgkmcnt(0)")
    KB = 32
    SB = KB + R * 32
    NV = (SB + R + 3) // 4 * 4
    e(f"; @launch grid=(256,1,1) block=({256 if bare & 8 else 512},1,1) lds={LDS_SIZE}")
    e(f""".amdgcn_target "amdgcn-amd-amdhsa--gfx950"
.text
.globl {KN}
.p2align 8
.type {KN},@function
{KN}:
s_cmp_ge_u32 s2, 256
s_cbranch_scc1 L_end
s_load_dwordx16 s[4:19], s[0:1], 0
s_load_dwordx8 s[20:27], s[0:1], 64""")
    if stamps:
        for k in range(8):
            e(f"s_mov_b32 s{60+2*k}, 0")
        e("s_mov_b32 s97, 0")
    stamp(0)
    e("""v_lshrrev_b32 v1, 6, v0
v_and_b32 v0, 63, v0
v_readfirstlane_b32 s3, v1
s_and_b32 s48, s2, 7
s_lshr_b32 s49, s2, 3""")
    if hm:
        e(f"""s_mul_i32 s52, s48, {hm}
s_add_u32 s49, s49, s52
s_and_b32 s49, s49, 31
s_lshl_b32 s2, s49, 3
s_add_u32 s2, s2, s48""")
    if bal == 0:
        e("""s_and_b32 s52, s49, 3
s_lshl_b32 s53, s48, 2
s_add_u32 s52, s52, s53
s_lshr_b32 s53, s2, 5
s_add_u32 s96, s48, s53
s_and_b32 s96, s96, 7
s_cmp_eq_u32 s96, 7
s_cselect_b32 s98, 1, 0""")
    else:
        e("""s_bfe_u32 s52, s49, 0x20001
s_lshl_b32 s53, s48, 2
s_add_u32 s52, s52, s53
s_lshr_b32 s53, s49, 3
s_lshl_b32 s53, s53, 1
s_add_u32 s96, s48, s53
s_and_b32 s96, s96, 7
s_and_b32 s78, s49, 1
s_add_u32 s53, s53, s78
s_lshl_b32 s79, 1, s96
s_and_b32 s79, s79, 0x90
s_cselect_b32 s98, 1, 0
s_andn2_b32 s98, s98, s78""")
    e(f"""v_lshlrev_b32 v1, 4, v0
s_mov_b32 s85, {LOG2E}
v_mov_b32 v8, {CNT}
v_mov_b32 v10, 0
v_mov_b32 v11, 0
v_mov_b32 v12, 0
v_mov_b32 v13, 0
s_cmp_lg_u32 s3, 0
s_cbranch_scc1 L_b0
ds_write_b128 v8, v[10:13]
ds_write_b128 v8, v[10:13] offset:16
L_b0:
s_waitcnt lgkmcnt(0)
s_mov_b32 s94, {EW}
{"" if bare & 2 else "s_load_dword s94, s[26:27], s94"}
s_mov_b32 s44, s26
s_mov_b32 s45, s27
s_mov_b32 s46, {WS_SIZE}
s_mov_b32 s47, 0x20000
s_cmp_ge_u32 s3, 4
s_cbranch_scc1 L_svc""")

    e(f"""s_add_u32 s56, s3, s48
s_and_b32 s56, s56, 3
s_lshl_b32 s58, s56, 5
s_add_u32 s58, s58, s49
s_lshl_b32 s59, s58, 21
s_add_u32 s28, s6, s59
s_addc_u32 s29, s7, 0
s_mov_b32 s30, {2<<20}
s_mov_b32 s31, 0x20000
s_add_u32 s32, s8, s59
s_addc_u32 s33, s9, 0
s_and_b32 s50, s48, 1
{"s_mov_b32 s51, 0" if mix else ("s_and_b32 s51, s48, 6" if alt else "s_lshr_b32 s51, s48, 1")}
s_lshl_b32 s54, s50, 13
s_mul_i32 s82, s58, {rot}
s_and_b32 s82, s82, 127
s_lshl_b32 s82, s82, 14
s_lshl_b32 s34, s58, 14
s_add_u32 s34, s34, {SCW}
s_lshl_b32 s58, s58, 7
s_add_u32 s58, s58, {CW}
s_add_u32 s36, s26, s58
s_addc_u32 s37, s27, 0
s_lshl_b32 s35, s3, 11
s_add_u32 s35, s35, {SCL}
""")
    if lay:
        e(f"""v_bfe_u32 v3, v0, 4, 1
v_lshlrev_b32 v3, {16 if lay == 2 else 15}, v3
v_bfe_u32 v2, v0, 5, 1
v_lshl_or_b32 v3, v2, 8, v3
v_and_b32 v2, 15, v0
v_lshl_or_b32 v2, v2, 4, v3""")
    else:
        e("v_add_u32 v2, 4096, v1")
    e("s_barrier")
    def baddr(src):
        if not lay:
            return f"s_lshl_b32 s76, {src}, 14\ns_add_u32 s76, s76, s54"
        if lay == 2:
            return f"""s_lshr_b32 s76, {src}, 3
s_lshl_b32 s76, s76, 17
s_and_b32 s92, {src}, 1
s_lshl_b32 s92, s92, 12
s_add_u32 s76, s76, s92
s_and_b32 s92, {src}, 6
s_lshl_b32 s92, s92, 13
s_add_u32 s76, s76, s92
s_add_u32 s76, s76, s54"""
        if lay == 3:
            return f"""s_lshr_b32 s76, {src}, 3
s_lshl_b32 s76, s76, 17
s_and_b32 s92, {src}, 1
s_lshl_b32 s92, s92, 14
s_add_u32 s76, s76, s92
s_and_b32 s92, {src}, 2
s_lshl_b32 s92, s92, 15
s_add_u32 s76, s76, s92
s_and_b32 s92, {src}, 4
s_lshl_b32 s92, s92, 10
s_add_u32 s76, s76, s92
s_add_u32 s76, s76, s54"""
        return f"""s_lshr_b32 s76, {src}, 2
s_lshl_b32 s76, s76, 16
s_and_b32 s92, {src}, 1
s_lshl_b32 s92, s92, 12
s_add_u32 s76, s76, s92
s_and_b32 s92, {src}, 2
s_lshl_b32 s92, s92, 13
s_add_u32 s76, s76, s92
s_add_u32 s76, s76, s54"""
    def issue(u):
        if rot:
            e("s_add_u32 s76, s76, s82\ns_and_b32 s76, s76, 0x1fffff")
        for j in range(8):
            r = KB + u * 32 + j * 4
            if lay:
                e(f"buffer_load_dwordx4 v[{r}:{r+3}], v2, s[28:31], s76 offen offset:{j*512} {kvflag}")
            else:
                e(f"buffer_load_dwordx4 v[{r}:{r+3}], v{1 + (j >> 2)}, s[28:31], s76 offen offset:{(j&3)*1024} {kvflag}")
    if mix:
        snext = """s_add_u32 s76, s51, s48
s_and_b32 s76, s76, 7
s_lshl_b32 s92, s51, 3
s_add_u32 s76, s76, s92
s_lshl_b32 s76, s76, 13
s_add_u32 s51, s51, 1"""
    else:
        snext = baddr("s51") + "\n" + ("s_bitcmp1_b32 s51, 0\ns_cselect_b32 s92, 7, 1\ns_add_u32 s51, s51, s92" if alt else "s_add_u32 s51, s51, 4")
    for u in range(R):
        e(snext + f"\ns_add_u32 s{10+u}, s35, {64*u}")
        issue(u)
    stamp(1)
    e(f"""s_lshl_b32 s78, s56, 2
v_mov_b32 v9, s78
v_and_b32 v3, 15, v0
v_lshlrev_b32 v3, 4, v3
s_lshl_b32 s78, s56, 8
v_add_u32 v3, s78, v3
s_mov_b32 s83, {spin}
L_qw:
ds_read_b32 v8, v9 offset:{CNT+16}
ds_read_b128 v[4:7], v3 offset:{QL}
s_sub_u32 s83, s83, 1
s_cbranch_scc1 L_q_ok
s_waitcnt lgkmcnt(0)
v_cmp_eq_u32 vcc, 0, v8
{"" if noq else "s_cbranch_vccnz L_qw"}
L_q_ok:
s_waitcnt lgkmcnt(0)
s_add_u32 s94, s94, 1""")
    stamp(3)
    for r in range(8, 16):
        e(f"v_mov_b32 v{r}, 0")
    e(f"""v_mov_b32 v16, 0xff7fffff
v_mov_b32 v17, 0
s_mov_b32 s84, {SCALE}
s_mov_b32 s86, 0xffff0000
v_and_b32 v28, 0x3c, v0
v_lshlrev_b32 v3, 1, v28
v_lshrrev_b32 v30, 1, v0
v_lshlrev_b32 v30, 2, v30
v_and_b32 v31, 1, v0
v_add_lshl_u32 v30, v30, v31, 2
v_lshlrev_b32 v31, 2, v0
s_mov_b32 s87, {R}
s_mov_b32 s88, {R}
s_mov_b32 s77, 0
s_mov_b32 s55, 0
s_mov_b32 s89, 0
s_mov_b32 s99, -2
s_mov_b32 s80, 0xaaaaaaaa
s_mov_b32 s81, 0xaaaaaaaa
s_mov_b32 s83, {spin}""")
    def boundary_out(ph, u, have, none):
        S = (S1, S2)[ph]; LIM = (LIM1, LIM2)[ph]
        nm = f"{ph}{have}"
        e(f"""L_need{nm}:
s_cmp_ge_u32 s87, {S}
s_cbranch_scc1 L_dyn{nm}
{snext}
s_lshl_b32 s42, s87, 6
s_add_u32 s42, s42, s35
s_add_u32 s87, s87, 1""")
        if ph == 0:
            e(f"""s_cmp_lg_u32 s87, {S}
s_cbranch_scc1 {have}_go
v_mov_b32 v26, {CNT}
v_mov_b32 v27, 1
ds_write_b32 v26, v27 offset:8""")
        else:
            e(f"""s_cmp_lg_u32 s87, {2*R+1}
s_cbranch_scc1 {have}_go
s_mov_b32 s90, 0x10000
s_atomic_add s90, s[36:37], 8""")
        e(f"s_branch {have}_go\nL_dyn{nm}:")
        if LIM == 0:
            e(f"s_branch {none}")
            return
        e(f"""L_early{nm}:
s_sub_u32 s83, s83, 1
s_cbranch_scc1 {none}""")
        if qa and (ph == 1 or qk):
            e(f"s_cmp_ge_u32 s55, s99\ns_cbranch_scc1 {none}")
        if ph == 0:
            e(f"s_cmp_lt_u32 s55, {k4}\ns_cselect_b32 s95, 4, 2")
        else:
            e(f"s_cmp_lt_u32 s55, {v2}\ns_cselect_b32 s95, 2, 1")
            if v4:
                e(f"s_cmp_lt_u32 s55, {v4}\ns_cselect_b32 s95, 4, s95")
        e(f"""s_lshl_b32 s93, s50, 3
s_lshl_b32 s90, s95, s93
s_mov_b32 s91, 0
s_atomic_add_x2 s[90:91], s[36:37], {8*ph} glc
s_waitcnt lgkmcnt(0)
s_cmp_lg_u32 s91, s94
s_cbranch_scc1 L_early{nm}
s_lshr_b32 s55, s90, s93
s_and_b32 s55, s55, 0xff
s_cmp_lt_u32 s55, {LIM}
s_cbranch_scc1 L_got{nm}
s_cmp_eq_u32 s89, 1
s_cbranch_scc1 {none}
s_xor_b32 s93, s93, 8
s_lshr_b32 s55, s90, s93
s_and_b32 s55, s55, 0xff
s_cmp_ge_u32 s55, {LIM}
s_cbranch_scc1 {none}
s_mov_b32 s89, 1
s_xor_b32 s50, s50, 1
s_xor_b32 s54, s54, 0x2000
s_branch L_early{nm}
L_got{nm}:""")
        if qa and (ph == 1 or qk):
            e(f"""s_cmp_ge_u32 s55, {qa}
s_cselect_b32 s92, {LIM - qm}, -1
s_cmp_eq_u32 s99, -2
s_cselect_b32 s99, s92, s99""")
        if ph == 1 and not nopub:
            e(f"""L_vd{nm}:
s_lshr_b32 s92, s90, 16
s_cmp_ge_u32 s92, 8
s_cbranch_scc1 L_vok{nm}
s_sub_u32 s83, s83, 1
s_cbranch_scc1 L_vok{nm}
s_mov_b32 s90, 0
s_atomic_add s90, s[36:37], 8 glc
s_waitcnt lgkmcnt(0)
s_branch L_vd{nm}
L_vok{nm}:""")
        e(f"""s_sub_u32 s77, {LIM}, s55
s_min_u32 s77, s77, s95
s_add_u32 s57, s55, {4*S}
s_add_u32 s55, s55, s95""")
        if stamps:
            e(f"s_lshl_b32 s92, s77, {16*ph}\ns_add_u32 s97, s97, s92")
        e(f"s_branch {have}")
    def boundary_in(ph, have):
        e(f"""s_cmp_eq_u32 s77, 0
s_cbranch_scc1 L_need{ph}{have}
{have}:
s_sub_u32 s77, s77, 1
{baddr("s57")}
s_lshr_b32 s42, s57, 1
s_lshl_b32 s42, s42, 8
s_lshr_b32 s92, s54, 6
s_add_u32 s42, s42, s92
s_and_b32 s92, s57, 1
s_lshl_b32 s92, s92, {2*ph}
s_and_b32 s92, s92, 4
s_add_u32 s42, s42, s92
s_add_u32 s42, s42, s34
s_add_u32 s57, s57, 1
{have}_go:""")
    nf = [0]
    def score_fetch(u):
        n = nf[0]; nf[0] += 1
        r = SB + u
        e(f"""s_cmp_ge_u32 s42, {SCW}
s_cbranch_scc1 L_sf{n}
v_add_u32 v26, s42, v28
ds_read_b32 v{r}, v26
s_branch L_sg{n}
L_sf{n}:
{"" if nopub & 2 else f"buffer_load_dword v{r}, v3, s[44:47], s42 offen {scf};"}
L_sg{n}:""")
    def kstep(u, nextv):
        k = KB + u * 32
        e(f"s_waitcnt vmcnt({8*(R-1)})")
        for j in range(8):
            e(f"v_dot2_f32_bf16 v{18+j}, v{k+4*j}, v4, 0")
        for i in range(1, 4):
            for j in range(8):
                e(f"v_dot2c_f32_bf16 v{18+j}, v{k+4*j+i}, v{4+i}")
        e(f"s_mov_b32 s43, s{10+u}")
        if nextv:
            score_fetch(u)
        else:
            e(f"s_mov_b32 s{10+u}, s42")
        issue(u)
        n = nf[0]; nf[0] += 1
        e(f"""v_add_f32_dpp v26, v18, v18 row_ror:8 row_mask:0xf bank_mask:0x3
v_add_f32_dpp v27, v20, v20 row_ror:8 row_mask:0xf bank_mask:0x3
v_add_f32_dpp v26, v19, v19 row_ror:8 row_mask:0xf bank_mask:0xc
v_add_f32_dpp v27, v21, v21 row_ror:8 row_mask:0xf bank_mask:0xc
v_add_f32_dpp v20, v22, v22 row_ror:8 row_mask:0xf bank_mask:0x3
v_add_f32_dpp v21, v24, v24 row_ror:8 row_mask:0xf bank_mask:0x3
v_add_f32_dpp v20, v23, v23 row_ror:8 row_mask:0xf bank_mask:0xc
v_add_f32_dpp v21, v25, v25 row_ror:8 row_mask:0xf bank_mask:0xc
v_add_f32_dpp v18, v26, v26 row_half_mirror row_mask:0xf bank_mask:0x5
v_add_f32_dpp v18, v27, v27 row_half_mirror row_mask:0xf bank_mask:0xa
v_add_f32_dpp v19, v20, v20 row_half_mirror row_mask:0xf bank_mask:0x5
v_add_f32_dpp v19, v21, v21 row_half_mirror row_mask:0xf bank_mask:0xa
s_nop 0
v_add_f32_dpp v18, v18, v18 quad_perm:[1,0,3,2] {DP}
v_add_f32_dpp v19, v19, v19 quad_perm:[1,0,3,2] {DP}
s_nop 0
v_add_f32_dpp v18, v18, v18 quad_perm:[2,3,0,1] {DP}
v_add_f32_dpp v19, v19, v19 quad_perm:[2,3,0,1] {DP}
v_cvt_pk_bf16_f32 v18, v18, v19
v_lshlrev_b32 v20, 16, v18
v_and_b32 v21, s86, v18
v_mul_f32 v20, s84, v20
v_mul_f32 v21, s84, v21
v_cvt_pk_bf16_f32 v18, v20, v21
s_cmp_ge_u32 s43, {SCW}
s_cbranch_scc1 L_pub{n}
v_add_u32 v26, s43, v28
ds_write_b32 v26, v18
s_branch L_pe{n}
L_pub{n}:""")
        if u % 2 == 0:
            e("v_mov_b32 v29, v18")
        else:
            e(f"""v_cndmask_b32 v18, v29, v18, s[80:81]
ds_bpermute_b32 v19, v30, v18
s_mov_b64 exec, 0xffffffff
s_waitcnt lgkmcnt(0)
{"" if nopub & 1 else f"buffer_store_dword v19, v31, s[44:47], s43 offen {pubf};"}
s_mov_b64 exec, -1""")
        e(f"L_pe{n}:")
    nw = [0]
    def vstep(u, last):
        v = KB + u * 32
        r = SB + u
        n = nw[0]; nw[0] += 1
        if not last:
            e(f"s_waitcnt vmcnt({8*(R-1)}) lgkmcnt(0)")
        else:
            for j in range(R - 1, 0, -1):
                e(f"s_cmp_lg_u32 s88, {j}\ns_cbranch_scc1 L_w{n}_{j}\ns_waitcnt vmcnt({8*j}) lgkmcnt(0)\ns_branch L_w{n}\nL_w{n}_{j}:")
            e(f"s_waitcnt vmcnt(0) lgkmcnt(0)\nL_w{n}:")
        e(f"""v_lshlrev_b32 v20, 16, v{r}
v_and_b32 v21, s86, v{r}
v_max_f32 v22, v20, v21
s_nop 1
v_max_f32_dpp v22, v22, v22 row_ror:8 {DP}
s_nop 1
v_max_f32_dpp v22, v22, v22 row_ror:4 {DP}
v_max_f32 v22, v16, v22
v_sub_f32 v20, v20, v22
v_sub_f32 v21, v21, v22
v_sub_f32 v24, v16, v22
v_mul_f32 v20, s85, v20
v_mul_f32 v21, s85, v21
v_mul_f32 v24, s85, v24
v_exp_f32 v20, v20
v_exp_f32 v21, v21
v_exp_f32 v24, v24
v_mov_b32 v16, v22
v_cvt_pk_bf16_f32 v18, v20, 0
v_cvt_pk_bf16_f32 v22, v21, 0
v_fma_f32 v17, v17, v24, v20
v_lshlrev_b32 v19, 16, v18
v_lshlrev_b32 v23, 16, v22
v_add_f32 v17, v17, v21""")
        for i in range(4):
            e(f"v_pk_mul_f32 v[{8+2*i}:{9+2*i}], v[{8+2*i}:{9+2*i}], v[24:25] op_sel_hi:[1,0]")
        for j in range(8):
            ln = (0, 8, 4, 12)[j & 3]
            p = 18 + 4 * (j >> 2)
            for i in range(4):
                e(f"v_dot2c_f32_bf16_dpp v{8+2*i}, v{p}, v{v+4*j+i} row_newbcast:{ln} {DP}")
                e(f"v_dot2c_f32_bf16_dpp v{9+2*i}, v{p+1}, v{v+4*j+i} row_newbcast:{ln} {DP}")
        if not last:
            score_fetch(u)
            issue(u)
    late = []
    e("L_A0:")
    for u in range(R):
        if u:
            e(f"L_A{u}:")
        boundary_in(0, f"L_ha{u}")
        kstep(u, False)
    e("s_branch L_A0")
    for u in range(R):
        e(f"L_B{u}:")
        boundary_in(1, f"L_hb{u}")
        kstep(u, True)
        e(f"s_sub_u32 s88, s88, 1\ns_cmp_eq_u32 s88, 0\ns_cbranch_scc1 L_C{(u+1)%R}")
    e("s_branch L_B0")
    for u in range(R):
        e(f"L_C{u}:")
        boundary_in(1, f"L_hc{u}")
        vstep(u, False)
    e("s_branch L_C0")
    for u in range(R):
        boundary_out(0, u, f"L_ha{u}", f"L_sw{u}")
        e(f"""L_sw{u}:
s_mov_b32 s28, s32
s_mov_b32 s29, s33
s_and_b32 s50, s48, 1
{"s_mov_b32 s51, 0" if mix else ("s_and_b32 s51, s48, 6" if alt else "s_lshr_b32 s51, s48, 1")}
s_lshl_b32 s54, s50, 13
s_mov_b32 s87, 0
s_mov_b32 s55, 0
s_mov_b32 s99, -2
s_mov_b32 s89, 0""")
        stamp(6)
        e(f"s_branch L_B{u}")
        boundary_out(1, u, f"L_hb{u}", "L_never")
        boundary_out(1, u, f"L_hc{u}", f"L_dr{u}")
    e("L_never:\ns_branch L_sdone")
    for u in range(R):
        e(f"L_dr{u}:\ns_mov_b32 s88, {R}\nL_D{u}:\ns_sub_u32 s88, s88, 1")
        vstep(u, True)
        e(f"s_cmp_eq_u32 s88, 0\ns_cbranch_scc1 L_sdone\ns_branch L_D{(u+1)%R}")
    for t in late:
        e(t)
    e("L_sdone:")
    stamp(5)
    e(f"""v_mov_b32 v18, v16
v_mov_b32 v19, v16
s_lshl_b32 s78, s2, 11
s_lshl_b32 s79, s56, 9
v_permlane16_swap_b32 v18, v19
s_add_u32 s78, s78, s79
v_max_f32 v18, v18, v19
v_mov_b32 v19, v18
s_add_u32 s78, s78, {PO}
s_lshl_b32 s79, s2, {6 + mlw}
v_permlane32_swap_b32 v18, v19
s_lshl_b32 s80, s56, {4 + mlw}
v_max_f32 v18, v18, v19
v_sub_f32 v20, v16, v18
v_mul_f32 v20, s85, v20
v_exp_f32 v20, v20
s_add_u32 s79, s79, s80
v_mul_f32 v17, v17, v20""")
    for r in range(8, 16):
        e(f"v_mul_f32 v{r}, v20, v{r}")
    e(f"""v_add_f32_dpp v17, v17, v17 row_ror:8 {DP}
s_add_u32 s79, s79, {PM}
v_permlane32_swap_b32 v8, v12
v_permlane32_swap_b32 v9, v13
v_add_f32_dpp v17, v17, v17 row_ror:4 {DP}
v_permlane32_swap_b32 v10, v14
v_permlane32_swap_b32 v11, v15
v_mov_b32 v19, v17
v_add_f32 v8, v8, v12
v_add_f32 v9, v9, v13
v_add_f32 v10, v10, v14
v_add_f32 v11, v11, v15
v_permlane16_swap_b32 v17, v19
v_add_u32 v20, s94, v0
v_permlane16_swap_b32 v8, v10
v_permlane16_swap_b32 v9, v11
v_add_f32 v17, v17, v19
v_add_f32 v8, v8, v10
v_mov_b32 v19, v17
v_add_f32 v9, v9, v11
s_movk_i32 s80, 0xff
v_permlane32_swap_b32 v17, v19
v_lshlrev_b32 v22, 3, v0
v_add_u32 v21, 64, v20
v_bfi_b32 v8, s80, v20, v8
v_bfi_b32 v9, s80, v21, v9
v_add_f32 v19, v17, v19
buffer_store_dwordx2 v[8:9], v22, s[44:47], s78 offen sc1
v_mov_b32 v20, s94
v_mov_b32 v21, s94
s_mov_b64 exec, {(1 << (1 << mlw)) - 1}
buffer_store_dwordx4 v[18:21], v1, s[44:47], s79 offen sc1
s_mov_b64 exec, -1
s_barrier""")
    e(f"""s_cmp_ge_u32 s3, {0 if notail else 2}
s_cbranch_scc1 L_bar_done
s_cmp_eq_u32 s3, 0
s_cbranch_scc1 L_red
s_cmp_eq_u32 s98, 0
s_cbranch_scc1 L_bar_done
s_mov_b32 s53, 8
L_red:
s_bfe_u32 s78, s52, 0x20001
s_mul_i32 s78, s78, 1152
s_lshr_b32 s79, s52, 3
s_lshl_b32 s79, s79, 5
s_add_u32 s78, s78, s79
s_and_b32 s79, s52, 1
s_lshl_b32 s79, s79, 4
s_add_u32 s78, s78, s79
s_lshl_b32 s79, s53, 7
s_add_u32 s78, s78, s79
v_and_b32 v9, 1, v0
v_lshlrev_b32 v10, 3, v9
s_mov_b32 s28, s4
s_mov_b32 s29, s5
s_mov_b32 s30, 4608
s_mov_b32 s31, 0x20000
buffer_load_dwordx2 v[16:17], v10, s[28:31], s78 offen
s_mov_b32 s40, s22
s_mov_b32 s41, s23
s_mov_b32 s42, 4608
s_mov_b32 s43, 0x20000
v_lshrrev_b32 v8, 1, v0
v_lshlrev_b32 v8, 10, v8
v_lshl_add_u32 v8, v9, 4, v8
s_lshl_b32 s79, s53, 15
s_lshl_b32 s80, s52, 5
s_add_u32 s79, s79, s80
s_add_u32 s79, s79, {YW}
s_lshl_b32 s80, s52, 3
s_add_u32 s80, s80, s94
v_lshl_add_u32 v24, v9, 2, s80
v_add_u32 v25, 1, v24
v_add_u32 v26, 2, v24
v_add_u32 v27, 3, v24
s_mov_b32 s83, {spin}
s_barrier
L_h2:
buffer_load_dwordx4 v[12:15], v8, s[44:47], s79 offen sc1
s_sub_u32 s83, s83, 1
s_cbranch_scc1 L_h2_done
s_waitcnt vmcnt(0)
v_xor_b32 v20, v24, v12
v_bitop3_b32 v20, v20, v13, v25 {OR_XOR}
v_bitop3_b32 v20, v20, v14, v26 {OR_XOR}
v_bitop3_b32 v20, v20, v15, v27 {OR_XOR}
v_and_b32 v20, 0xff, v20
s_nop 1
v_or_b32_dpp v20, v20, v20 quad_perm:[1,0,3,2] {DP}
v_cmp_ne_u32 vcc, 0, v20
s_and_b64 exec, exec, vcc
s_cbranch_execnz L_h2
L_h2_done:
s_mov_b64 exec, -1
s_waitcnt vmcnt(0)""")
    if eearly:
        e(f"""s_add_u32 s79, s2, s3
s_cmp_lg_u32 s79, 0
s_cbranch_scc1 L_noe
v_mov_b32 v24, s94
v_mov_b32 v25, {EW}
s_mov_b64 exec, 1
buffer_store_dword v24, v25, s[44:47], 0 offen
s_mov_b64 exec, -1
L_noe:""")
    e("s_movk_i32 s84, 0xff00")
    for r in range(12, 16):
        e(f"v_and_b32 v{r}, s84, v{r}")
    for dpp in ("quad_perm:[2,3,0,1]", "row_ror:4", "row_ror:8"):
        for r in range(12, 16):
            e(f"v_add_f32_dpp v{r}, v{r}, v{r} {dpp} {DP}")
    for sw in (16, 32):
        for r in range(4):
            e(f"v_mov_b32 v{20+r}, v{12+r}")
        for r in range(4):
            e(f"v_permlane{sw}_swap_b32 v{12+r}, v{20+r}")
        for r in range(4):
            e(f"v_add_f32 v{12+r}, v{12+r}, v{20+r}")
    e(f"""v_lshlrev_b32 v20, 16, v16
v_and_b32 v21, 0xffff0000, v16
v_lshlrev_b32 v22, 16, v17
v_and_b32 v23, 0xffff0000, v17
v_add_f32 v12, v12, v20
v_add_f32 v13, v13, v21
v_add_f32 v14, v14, v22
v_add_f32 v15, v15, v23
v_cvt_pk_bf16_f32 v12, v12, v13
v_cvt_pk_bf16_f32 v13, v14, v15
s_mov_b64 exec, 3
buffer_store_dwordx2 v[12:13], v10, s[40:43], s78 offen
s_add_u32 s78, s2, s3
s_cmp_lg_u32 s78, 0
{"s_branch L_done" if eearly else "s_cbranch_scc1 L_done"}
v_mov_b32 v12, s94
v_mov_b32 v13, {EW}
s_mov_b64 exec, 1
buffer_store_dword v12, v13, s[44:47], 0 offen sc1
s_branch L_done
L_bar_done:
s_barrier
s_branch L_done""")

    def srd(ptr, nbytes):
        e(f"s_mov_b32 s40, s{ptr}\ns_mov_b32 s41, s{ptr+1}\ns_mov_b32 s42, {nbytes}\ns_mov_b32 s43, 0x20000")
    def dma(n_ins, step, ldsbase, vreg, alt=False):
        for n in range(n_ins):
            e(f"s_add_u32 m0, s79, {ldsbase + 1024*n}")
            e(f"s_add_u32 s78, s78, {step}" if n else "s_nop 0")
            e(f"buffer_load_dwordx4 v{vreg + (n & 1 if alt else 0)}, s[40:43], s78 offen {wflag} lds")
    def proj_tiles(stripe_sreg, wo_base, wd_base, late=False):
        e(f"s_lshl_b32 s81, s{stripe_sreg}, 7")
        if late or defer != 2:
            srd(12, 4096 * 1152)
            e(f"""s_mul_i32 s78, s52, {128*1152}
s_add_u32 s78, s78, s81
s_mul_i32 s79, s56, {32*1152}
s_add_u32 s78, s78, s79
s_lshl_b32 s79, s56, 12""")
            dma(4, 8 * 1152, wo_base, 31)
        if late and defer == 2:
            return
        srd(20, 4608 * 1152)
        e(f"""s_mul_i32 s78, s52, {144*1152}
s_add_u32 s78, s78, s81
s_mul_i32 s79, s57, {8*1152}
s_add_u32 s78, s78, s79
s_lshl_b32 s79, s57, 10""")
        dma(5, 8 * 1152, wd_base, 31)
    npj = [0]
    def all_proj(late=False):
        n = npj[0]; npj[0] += 1
        proj_tiles(53, WOT, WDT, late)
        e(f"s_cmp_eq_u32 s98, 0\ns_cbranch_scc1 L_pj{n}\ns_mov_b32 s80, 8")
        proj_tiles(80, FT, FT + 16384, late)
        e(f"L_pj{n}:")
    def pick_batch(d, a):
        e(f"""v_cndmask_b32 v{a}, v{a}, v{a+1}, s[38:39]
v_cndmask_b32 v{a+2}, v{a+2}, v{a+3}, s[38:39]
v_cndmask_b32 v{d}, v{a}, v{a+2}, s[58:59]""")
    tn = [0]
    def ticket_init():
        n = tn[0]; tn[0] += 1
        e(f"""s_cmp_lg_u32 s56, 3
s_cbranch_scc1 L_ti{n}
s_cmp_ge_u32 s2, 128
s_cbranch_scc1 L_ti{n}
v_mov_b32 v22, 0
v_mov_b32 v23, s94
v_lshlrev_b32 v24, 3, v0
s_mov_b64 exec, 0xffff
s_lshl_b32 s79, s2, 7
s_add_u32 s79, s79, {CW}
buffer_store_dwordx2 v[22:23], v24, s[44:47], s79 offen sc1
s_mov_b64 exec, -1
L_ti{n}:""")
    qn = [0]
    def qfetch():
        ticket_init()
        n = qn[0]; qn[0] += 1
        e(f"""v_lshrrev_b32 v14, 3, v0
v_lshlrev_b32 v14, 8, v14
v_and_b32 v15, 7, v0
v_lshl_add_u32 v14, v15, 3, v14
s_lshl_b32 s88, s56, 6
s_lshl_b32 s89, s49, 11
s_add_u32 s88, s88, s89
s_add_u32 s88, s88, {QW}
s_lshl_b32 s89, s56, 8
v_lshl_add_u32 v3, v0, 2, s89
s_lshl_b32 s89, s56, 2
v_mov_b32 v2, s89
s_lshl_b32 s89, s56, 4
s_add_u32 s89, s89, s94
v_lshl_add_u32 v18, v15, 1, s89
v_add_u32 v19, 1, v18
s_mov_b32 s83, {spin}
L_q_again{n}:
buffer_load_dwordx2 v[16:17], v14, s[44:47], s88 offen sc1
s_sub_u32 s83, s83, 1
s_cbranch_scc1 L_q_got{n}
s_waitcnt vmcnt(0)
v_xor_b32 v15, v18, v16
v_bitop3_b32 v15, v15, v17, v19 {OR_XOR}
v_and_b32 v15, 0xffff, v15
v_cmp_ne_u32 vcc, 0, v15
s_cbranch_vccnz L_q_again{n}
L_q_got{n}:
s_mov_b32 s89, 0x07060302
v_perm_b32 v16, v17, v16, s89
v_mov_b32 v15, 1
ds_write_b32 v3, v16 offset:{QL}
ds_write_b32 v2, v15 offset:{CNT+16}
s_setprio {svcprio}""")
        stamp(4)
    if bare & 1:
        e("L_svc:\ns_endpgm\nL_svc_x:")
    e(f"""{"" if bare & 1 else "L_svc:"}
s_setprio {svc0}
s_sub_u32 s56, s3, 4
s_mul_i32 s57, s56, 9
s_lshr_b32 s57, s57, 1
v_lshrrev_b32 v8, 3, v0
v_and_b32 v10, 7, v0
v_lshlrev_b32 v10, 4, v10
v_mul_u32_u24 v31, 1152, v8
v_add_u32 v31, v31, v10
s_mov_b32 s58, 0
s_mov_b32 s59, -1
s_sub_u32 s78, s96, 5
s_cmp_lt_u32 s78, 2
s_cbranch_scc1 L_tq
s_and_b32 s78, s49, 1
s_add_u32 s78, s78, 4
s_cmp_ge_u32 s96, s78
s_cbranch_scc1 L_notask
s_mul_i32 s80, s49, 9
s_lshr_b32 s80, s80, 1
s_add_u32 s80, s80, s96
s_lshl_b32 s51, s80, 10
s_add_u32 s51, s51, {GU}
s_cmp_ge_u32 s80, 72
s_cselect_b32 s40, s18, s16
s_cselect_b32 s41, s19, s17
s_cselect_b32 s78, 72, 0
s_mov_b32 s42, {576*9216}
s_sub_u32 s80, s80, s78
s_movk_i32 s50, 9216
s_branch L_task
L_tq:
s_lshl_b32 s80, s49, 1
s_add_u32 s80, s80, s78
s_lshl_b32 s51, s80, 10
s_add_u32 s51, s51, {QW}
s_mov_b32 s40, s10
s_mov_b32 s41, s11
s_mov_b32 s42, {576*8192}
s_movk_i32 s50, 8192
L_task:
s_mov_b32 s43, 0x20000
s_mul_i32 s36, s56, 1152
s_add_u32 s36, s4, s36
s_addc_u32 s37, s5, 0
s_mov_b32 s38, 1152
s_mov_b32 s39, 0x20000
v_lshlrev_b32 v7, 2, v0""")
    if st2 == 1:
        stamp(2)
    for j in range(5):
        e(f"buffer_load_dword v{2+j}, v7, s[36:39], 0 offen offset:{256*j}")
    if swz:
        e("""v_bfe_u32 v9, v0, 4, 1
v_lshlrev_b32 v9, 5, v9
v_xor_b32 v10, v10, v9""")
    e(f"""v_mul_u32_u24 v8, s50, v8
v_add_u32 v8, v8, v10
v_xor_b32 v9, 64, v8
s_lshl_b32 s78, s80, 7
s_mul_i32 s79, s56, 144
s_mul_i32 s79, s79, s50
s_add_u32 s78, s78, s79
s_lshl_b32 s82, s50, 3
s_lshl_b32 s79, s56, 8
s_add_u32 s51, s51, s79
s_mul_i32 s79, s56, {18*1024}""")
    dma(18, "s82", FT, 8, bool(swz))
    if pj0 == 1:
        proj_tiles(53, WOT, WDT)
    if st2 == 4:
        stamp(2)
    e("s_barrier")
    if pj0 == 2:
        proj_tiles(53, WOT, WDT)
    NPJ = 0 if not pj0 else (5 if defer == 2 else 9)
    NPX = 0 if pj0 == 3 else NPJ
    if st2 == 2:
        stamp(2)
    e(f"s_waitcnt vmcnt({18 + NPX})")
    if st2 == 3:
        stamp(2)
    def wave_sum(r, t):
        for k in (8, 4, 2, 1):
            e(f"s_nop 1\nv_add_f32_dpp v{r}, v{r}, v{r} row_ror:{k} {DP}")
        for sw in (16, 32):
            e(f"v_mov_b32 v{t}, v{r}\ns_nop 1\nv_permlane{sw}_swap_b32 v{r}, v{t}\ns_nop 0\nv_add_f32 v{r}, v{r}, v{t}")
    def rbf(d, s):
        e(f"v_cvt_pk_bf16_f32 v{d}, v{s}, v{s}\nv_and_b32 v{d}, 0xffff0000, v{d}")
    for j in range(5):
        e(f"v_lshlrev_b32 v{10+2*j}, 16, v{2+j}\nv_and_b32 v{11+2*j}, 0xffff0000, v{2+j}")
    e("v_add_f32 v20, v10, v11")
    for j in range(12, 20):
        e(f"v_add_f32 v20, v20, v{j}")
    wave_sum(20, 21)
    e("v_mul_f32 v20, 0x3ae38e39, v20")
    e("v_cmp_gt_u32 vcc, 32, v0")
    for j in range(10):
        e(f"v_sub_f32 v{22+j if j < 8 else 2+j-8}, v{10+j}, v20")
    e("v_cndmask_b32 v2, 0, v2, vcc\nv_cndmask_b32 v3, 0, v3, vcc")
    e("v_mul_f32 v21, v2, v2\nv_fmac_f32 v21, v3, v3")
    for j in range(8):
        e(f"v_fmac_f32 v21, v{22+j}, v{22+j}")
    wave_sum(21, 22)
    e("v_mul_f32 v21, 0x3ae38e39, v21")
    rbf(21, 21)
    e("v_add_f32 v21, 0x3727c5ac, v21")
    rbf(21, 21)
    e("v_sqrt_f32 v21, v21\ns_nop 0")
    rbf(21, 21)
    e("v_rcp_f32 v21, v21")
    rbf(20, 20)
    for j in range(10):
        e(f"v_sub_f32 v{10+j}, v{10+j}, v20")
    for j in range(5):
        e(f"v_cvt_pk_bf16_f32 v{2+j}, v{10+2*j}, v{11+2*j}")
    for j in range(5):
        e(f"v_lshlrev_b32 v{10+2*j}, 16, v{2+j}\nv_and_b32 v{11+2*j}, 0xffff0000, v{2+j}")
    for j in range(10):
        e(f"v_mul_f32 v{10+j}, v{10+j}, v21")
    for j in range(5):
        e(f"v_cvt_pk_bf16_f32 v{2+j}, v{10+2*j}, v{11+2*j}")
    e("s_mul_i32 s78, s56, 1152\nv_add_u32 v7, s78, v7")
    for j in range(4):
        e(f"ds_write_b32 v7, v{2+j} offset:{XN+256*j}")
    e(f"s_mov_b64 exec, 0xffffffff\nds_write_b32 v7, v6 offset:{XN+1024}\ns_mov_b64 exec, -1")
    if pj0 == 3:
        proj_tiles(53, WOT, WDT)
    e(f"""v_lshrrev_b32 v8, 4, v0
v_lshlrev_b32 v9, 4, v8
v_lshlrev_b32 v8, 3, v8
v_bfe_u32 v10, v0, 2, 2
v_add_u32 v8, v8, v10
v_lshlrev_b32 v8, 7, v8
v_and_b32 v10, 3, v0
v_lshl_add_u32 v8, v10, 3, v8
v_mul_u32_u24 v10, 1152, v10
v_add_u32 v9, v9, v10
s_lshl_b32 s78, s56, 5
v_bfe_u32 v14, v0, 3, 2
v_lshlrev_b32 v14, 5, v14
v_and_b32 v14, {0x60 if swz else 0}, v14
v_xor_b32 v14, s78, v14
v_add_u32 v11, {FT}, v8
v_add_u32 v11, v11, v14
v_add_u32 v12, {9*4096}, v11
v_lshlrev_b32 v13, 2, v0""")
    for r in range(16, 20):
        e(f"v_mov_b32 v{r}, 0")
    e(f"""v_mov_b32 v29, {CNT}
v_mov_b32 v30, 1
s_mov_b32 s83, {spin}
s_waitcnt vmcnt({NPJ}) lgkmcnt(0)
s_add_u32 s94, s94, 1
s_mov_b32 s38, 0xffff0000
s_mov_b32 s39, 0xffff0000
s_mov_b64 exec, 1
ds_add_u32 v29, v30
s_mov_b64 exec, -1
L_wxn:
ds_read_b32 v30, v29
s_sub_u32 s83, s83, 1
s_cbranch_scc1 L_wxn_ok
s_waitcnt lgkmcnt(0)
v_cmp_gt_u32 vcc, 4, v30
s_cbranch_vccnz L_wxn
L_wxn_ok:
s_waitcnt lgkmcnt(0)""")
    stamp(1)
    def rd(s):
        base = 32 + (s % 5) * 8
        e(f"ds_read_b128 v[{base}:{base+3}], v9 offset:{XN+64*s}")
        sg, so = divmod(s, 9)
        e(f"ds_read_b64_tr_b16 v[{base+4}:{base+5}], v{11+sg} offset:{4096*so}")
        e(f"ds_read_b64_tr_b16 v[{base+6}:{base+7}], v{11+sg} offset:{4096*so+512}")
    for s in range(4):
        rd(s)
    for s in range(18):
        e(f"s_waitcnt lgkmcnt({min(3, 17-s)*3})")
        base = 32 + (s % 5) * 8
        e(f"v_mfma_f32_16x16x32_bf16 v[16:19], v[{base}:{base+3}], v[{base+4}:{base+7}], v[16:19]")
        if s + 4 < 18:
            rd(s + 4)
    e("v_add_u32 v21, s94, v0\ns_mov_b32 s78, 0x07060100\ns_nop 5")
    pick_batch(20, 16)
    e("""v_cvt_pk_bf16_f32 v20, v20, v20
v_perm_b32 v20, v20, v21, s78
buffer_store_dword v20, v13, s[44:47], s51 offen sc1""")
    if not st2:
        stamp(2)
    qfetch()
    if not defer and not pj0:
        proj_tiles(53, WOT, WDT)
    e("s_branch L_tick\nL_notask:")
    if defer != 1:
        all_proj()
    e("s_barrier\ns_waitcnt lgkmcnt(0)\ns_add_u32 s94, s94, 1\ns_mov_b32 s38, 0xffff0000\ns_mov_b32 s39, 0xffff0000")
    qfetch()
    e("L_tick:")
    e(f"""L_gu:
v_min_u32 v8, 35, v0
v_lshrrev_b32 v9, 2, v8
v_lshlrev_b32 v9, 8, v9
v_and_b32 v24, 3, v8
s_lshl_b32 s78, s56, 4
s_add_u32 s78, s78, s94
v_lshl_add_u32 v44, v24, 2, s78
v_add_u32 v45, 1, v44
v_add_u32 v46, 2, v44
v_add_u32 v47, 3, v44
v_lshl_add_u32 v24, v24, 4, v9
v_lshlrev_b32 v26, 3, v8
s_mul_i32 s78, s56, 288
v_add_u32 v26, s78, v26
s_mul_i32 s78, s52, 2304
s_lshl_b32 s79, s56, 6
s_add_u32 s78, s78, s79
s_add_u32 s78, s78, {GU}
s_add_u32 s79, s78, 73728
v_mov_b32 v29, {CNT}
s_mov_b32 s83, {spin}
{"" if hsleep else "s_setprio 0"}
L_late:
{f"s_sleep {hsleep}" if hsleep else ""}
ds_read_b32 v30, v29 offset:8
s_sub_u32 s83, s83, 1
s_cbranch_scc1 L_late_ok
s_waitcnt lgkmcnt(0)
v_cmp_eq_u32 vcc, 0, v30
s_cbranch_vccnz L_late
L_late_ok:
s_setprio {svcprio}
s_waitcnt lgkmcnt(0)
s_mov_b32 s83, {spin}
L_ph:
buffer_load_dwordx4 v[32:35], v24, s[44:47], s78 offen sc1
buffer_load_dwordx4 v[36:39], v24, s[44:47], s79 offen sc1
s_sub_u32 s83, s83, 1
s_cbranch_scc1 L_ph_done
s_waitcnt vmcnt(0)
v_xor_b32 v8, v44, v32""")
    for r in range(33, 40):
        e(f"v_bitop3_b32 v8, v8, v{r}, v{44+(r&3)} {OR_XOR}")
    e("""v_and_b32 v8, 0xffff, v8
v_cmp_ne_u32 vcc, 0, v8
s_cbranch_vccnz L_ph
L_ph_done:
s_waitcnt vmcnt(0)""")
    for r in range(32, 40):
        e(f"v_and_b32 v{r}, 0xffff0000, v{r}")
    e("s_mov_b32 s78, 0x3d372713\ns_mov_b32 s79, 0xc0135761")
    for r in range(4):
        g = 32 + r; t = 40 + r
        e(f"""v_mul_f32 v{t}, v{g}, v{g}
v_mul_f32 v{t}, v{t}, v{g}
v_fma_f32 v{t}, v{t}, s78, v{g}
v_mul_f32 v{t}, s79, v{t}
v_exp_f32 v{t}, v{t}
s_nop 0
v_add_f32 v{t}, 1.0, v{t}
v_rcp_f32 v{t}, v{t}
s_nop 0
v_mul_f32 v{t}, v{t}, v{g}""")
        rbf(t, t)
        e(f"v_mul_f32 v{t}, v{t}, v{36+r}")
    e(f"""v_cvt_pk_bf16_f32 v16, v40, v41
v_cvt_pk_bf16_f32 v17, v42, v43
ds_write_b64 v26, v[16:17] offset:{HL}""")
    stamp(3)
    e(f"""v_lshrrev_b32 v8, 4, v0
v_bfe_u32 v10, v0, 2, 2
v_lshl_add_u32 v11, v8, 2, v10
v_lshl_add_u32 v10, v8, 3, v10
v_lshlrev_b32 v10, 7, v10
v_lshlrev_b32 v11, 7, v11
v_and_b32 v12, 3, v0
v_lshlrev_b32 v13, 3, v12
s_lshl_b32 s78, s56, 5
v_add3_u32 v10, v10, v13, s78
v_add3_u32 v11, v11, v13, s78
v_add_u32 v4, {WDT}, v10
v_add_u32 v5, {WDT+128*128}, v11
v_add_u32 v6, {WOT}, v10
v_add_u32 v100, {FT+16384}, v10
v_add_u32 v101, {FT+16384+128*128}, v11
v_add_u32 v102, {FT}, v10
v_mul_u32_u24 v13, 288, v12
v_lshl_add_u32 v7, v8, 3, v13
v_lshl_add_u32 v3, v8, 4, v13
v_lshlrev_b32 v12, 8, v12
v_lshl_add_u32 v30, v8, 4, v12
s_lshl_b32 s79, s56, 9
v_lshl_add_u32 v112, v0, 3, s79
v_and_b32 v113, 7, v0
v_lshlrev_b32 v113, {6 + mlw}, v113
s_lshl_b32 s79, s56, {4 + mlw}
v_add_u32 v113, s79, v113
s_lshl_b32 s88, s52, 14
s_add_u32 s88, s88, {PO}
s_add_u32 s89, s88, 4096
s_add_u32 s90, s88, 8192
s_add_u32 s91, s88, 12288
s_lshl_b32 s92, s52, {9 + mlw}
s_add_u32 s92, s92, {PM}
v_and_b32 v29, 15, v0
v_lshlrev_b32 v29, 4, v29
v_lshl_add_u32 v29, v8, 2, v29
s_lshl_b32 s79, s56, 8
v_add_u32 v29, s79, v29
v_lshlrev_b32 v114, 2, v0
s_lshl_b32 s93, s52, 10
s_add_u32 s93, s93, s79
s_add_u32 s93, s93, {YW}
s_add_u32 s87, s93, {8*32768}
s_lshl_b32 s79, s53, 15
s_add_u32 s93, s93, s79
s_movk_i32 s82, 0xff
v_add_u32 v103, s94, v0
v_add_u32 v104, 64, v103
s_lshl_b32 s79, s56, 6
v_add_u32 v115, s79, v103""")
    for r in list(range(24, 28)) + list(range(116, 120)):
        e(f"v_mov_b32 v{r}, 0")
    e("s_waitcnt vmcnt(0) lgkmcnt(0)")
    if trig:
        e(f"""v_mov_b32 v8, {CNT}
s_mov_b32 s83, {spin}
L_wtr:
s_sleep 2
ds_read_b32 v9, v8 offset:12
s_sub_u32 s83, s83, 1
s_cbranch_scc1 L_wtr_ok
s_waitcnt lgkmcnt(0)
v_cmp_eq_u32 vcc, 0, v9
s_cbranch_vccnz L_wtr
L_wtr_ok:""")
        all_proj(True)
    e(f"""s_mov_b32 s83, {spin}
s_barrier""")
    stamp(5)
    if notail:
        e("s_barrier\ns_branch L_done")
    P = [10 + 2 * s if s < 7 else 120 for s in range(8)]
    def gather(first):
        e("buffer_load_dwordx4 v[124:127], v113, s[44:47], s92 offen sc1")
        for s in range(8):
            if not first:
                e(f"s_bitcmp1_b32 s86, {s}\ns_cbranch_scc1 L_g{s}")
            e(f"buffer_load_dwordx2 v[{P[s]}:{P[s]+1}], v112, s[44:47], s{88+s//2} offen offset:{2048*(s&1)} sc1")
            if not first:
                e(f"L_g{s}:")
    def hid_frags():
        for s in range(4):
            e(f"ds_read_b128 v[{48+4*s}:{51+4*s}], v3 offset:{HL+64*s}")
        e(f"ds_read_b64 v[66:67], v7 offset:{HL+256}")
    def wd_frags(va, vb):
        for s in range(4):
            e(f"ds_read_b64_tr_b16 v[{32+4*s}:{33+4*s}], v{va} offset:{4096*s}")
            e(f"ds_read_b64_tr_b16 v[{34+4*s}:{35+4*s}], v{va} offset:{4096*s+512}")
        e(f"ds_read_b64_tr_b16 v[64:65], v{vb}")
    def down_mfma(acc):
        for s in range(4):
            e(f"v_mfma_f32_16x16x32_bf16 v[{acc}:{acc+3}], v[{48+4*s}:{51+4*s}], v[{32+4*s}:{35+4*s}], v[{acc}:{acc+3}]")
        e(f"s_nop 5\nv_mfma_f32_16x16x16_bf16 v[{acc}:{acc+3}], v[66:67], v[64:65], v[{acc}:{acc+3}]")
    def wo_frags(vo, wob):
        for s in range(4):
            e(f"ds_read_b64_tr_b16 v[{wob+4*s}:{wob+1+4*s}], v{vo} offset:{4096*s}")
            e(f"ds_read_b64_tr_b16 v[{wob+2+4*s}:{wob+3+4*s}], v{vo} offset:{4096*s+512}")
    def down_all(tag):
        wd_frags(4, 5)
        e("s_waitcnt lgkmcnt(0)")
        down_mfma(24)
        if defer != 2:
            wo_frags(6, 68)
        e(f"s_cmp_eq_u32 s98, 0\ns_cbranch_scc1 L_dn{tag}\ns_waitcnt lgkmcnt(0)")
        wd_frags(100, 101)
        e("s_waitcnt lgkmcnt(0)")
        down_mfma(116)
        if defer != 2:
            wo_frags(102, 84)
        e(f"L_dn{tag}:")
    gather(True)
    if defer and not trig:
        all_proj(True)
    hid_frags()
    if defer != 1:
        down_all(0)
    e("s_branch L_h1\nL_h1_again:\ns_mov_b32 s86, 0")
    for s in range(8):
        e(f"""v_xor_b32 v122, v103, v{P[s]}
v_bitop3_b32 v122, v122, v{P[s]+1}, v104 {OR_XOR}
v_and_b32 v122, 0xff, v122
v_cmp_ne_u32 vcc, 0, v122
s_cmp_eq_u64 vcc, 0
s_cselect_b32 s84, {1 << s}, 0
s_or_b32 s86, s86, s84""")
    gather(False)
    e("""L_h1:
s_sub_u32 s83, s83, 1
s_cbranch_scc1 L_h1_done
s_waitcnt vmcnt(0)
v_xor_b32 v122, v103, v10
v_xor_b32 v123, v104, v11""")
    for r in list(range(12, 24)) + [120, 121]:
        e(f"v_bitop3_b32 v{122+(r&1)}, v{122+(r&1)}, v{r}, v{103+(r&1)} {OR_XOR}")
    e(f"""v_or_b32 v122, v122, v123
v_and_b32 v122, 0xff, v122
v_bitop3_b32 v122, v122, v126, s94 {OR_XOR}
v_bitop3_b32 v122, v122, v127, s94 {OR_XOR}
v_mov_b32 v8, v124
v_mov_b32 v9, v125
v_cmp_ne_u32 vcc, 0, v122
s_cbranch_vccnz L_h1_again
L_h1_done:
s_movk_i32 s84, 0xff00""")
    stamp(6)
    W = [f"v_and_b32 v{r}, s84, v{r}" for r in list(range(10, 24)) + [120, 121]]
    nl = "\n"
    e(f"""v_max_f32_dpp v122, v8, v8 quad_perm:[1,0,3,2] {DP}
{nl.join(W[0:3])}
v_max_f32_dpp v122, v122, v122 quad_perm:[2,3,0,1] {DP}
{nl.join(W[3:6])}
v_max_f32_dpp v122, v122, v122 row_half_mirror {DP}
v_sub_f32 v8, v8, v122
v_mul_f32 v8, s85, v8
v_exp_f32 v8, v8
{nl.join(W[6:11])}
v_mul_f32 v9, v9, v8
{nl.join(W[11:16])}
v_mul_f32_dpp v122, v8, v10 row_newbcast:0 {DP}
v_add_f32_dpp v9, v9, v9 quad_perm:[1,0,3,2] {DP}
v_mul_f32_dpp v123, v8, v11 row_newbcast:0 {DP}
v_fmac_f32_dpp v122, v8, v12 row_newbcast:1 {DP}
v_add_f32_dpp v9, v9, v9 quad_perm:[2,3,0,1] {DP}
v_fmac_f32_dpp v123, v8, v13 row_newbcast:1 {DP}
v_fmac_f32_dpp v122, v8, v14 row_newbcast:2 {DP}
v_add_f32_dpp v9, v9, v9 row_half_mirror {DP}
v_fmac_f32_dpp v123, v8, v15 row_newbcast:2 {DP}
v_rcp_f32 v9, v9""")
    for s in range(3, 8):
        e(f"v_fmac_f32_dpp v122, v8, v{P[s]} row_newbcast:{s} {DP}")
        e(f"v_fmac_f32_dpp v123, v8, v{P[s]+1} row_newbcast:{s} {DP}")
    e(f"""v_mul_f32 v122, v122, v9
v_mul_f32 v123, v123, v9
v_cvt_pk_bf16_f32 v122, v122, v123
ds_write_b32 v29, v122 offset:{OL}
s_waitcnt lgkmcnt(0)
s_barrier""")
    OF = 8 if defer else 48
    for s in range(4):
        e(f"ds_read_b128 v[{OF+4*s}:{OF+3+4*s}], v30 offset:{OL+64*s}")
    if defer == 1:
        down_all(1)
        e("s_waitcnt lgkmcnt(0)")
    if defer == 2:
        wo_frags(6, 68)
        e("s_cmp_eq_u32 s98, 0\ns_cbranch_scc1 L_wf\ns_waitcnt lgkmcnt(0)")
        wo_frags(102, 84)
        e("L_wf:\ns_waitcnt lgkmcnt(0)")
    for s in range(4):
        if not defer:
            e(f"s_waitcnt lgkmcnt({3-s})")
        e(f"v_mfma_f32_16x16x32_bf16 v[24:27], v[{OF+4*s}:{OF+3+4*s}], v[{68+4*s}:{71+4*s}], v[24:27]")
    e("s_cmp_eq_u32 s98, 0\ns_cbranch_scc1 L_y1")
    for s in range(4):
        e(f"v_mfma_f32_16x16x32_bf16 v[116:119], v[{OF+4*s}:{OF+3+4*s}], v[{84+4*s}:{87+4*s}], v[116:119]")
    e("s_nop 7")
    pick_batch(116, 116)
    e("""v_bfi_b32 v116, s82, v115, v116
buffer_store_dword v116, v114, s[44:47], s87 offen sc1
L_y1:
s_nop 7""")
    pick_batch(24, 24)
    e("""v_bfi_b32 v24, s82, v115, v24
buffer_store_dword v24, v114, s[44:47], s93 offen sc1
L_done:
s_mov_b64 exec, -1""")
    if stamps:
        e("s_waitcnt vmcnt(0)")
        stamp(7)
        e(f"""s_lshl_b32 s78, s2, {2 if bare & 8 else 3}
s_add_u32 s78, s78, s3
s_lshl_b32 s78, s78, 6
s_add_u32 s78, s78, {STAMP}
s_getreg_b32 s79, hwreg(HW_REG_XCC_ID, 0, 4)
v_mov_b32 v1, s78""")
        for k in range(8):
            e(f"v_mov_b32 v{4+k}, s{60+2*k}")
        e("""v_mov_b32 v12, s97
v_mov_b32 v13, s79
global_store_dwordx4 v1, v[4:7], s[26:27]
global_store_dwordx4 v1, v[8:11], s[26:27] offset:16
global_store_dwordx2 v1, v[12:13], s[26:27] offset:32""")
    e(f"""L_end:
s_endpgm
.section .rodata,"a"
.p2align 6
.amdhsa_kernel {KN}
  .amdhsa_next_free_vgpr {NV}
  .amdhsa_next_free_sgpr 100
  .amdhsa_accum_offset {(NV+3)//4*4}
  .amdhsa_group_segment_fixed_size 0
  .amdhsa_kernarg_size 96
  .amdhsa_user_sgpr_count 2
  .amdhsa_user_sgpr_kernarg_segment_ptr 1
  .amdhsa_system_sgpr_workgroup_id_x 1
  .amdhsa_float_denorm_mode_32 3
.end_amdhsa_kernel""")
    out = []
    for ln in e.o:
        if ln.rstrip().endswith(" sc1") and "buffer_store" in ln:
            ln = ln.rstrip()[:-3] + stf
        elif ln.rstrip().endswith(" sc1") and "buffer_load" in ln:
            ln = ln.rstrip()[:-3] + ldf
        out.append(ln)
    e.o = out
    e.o = [ln.rstrip().rstrip(";").rstrip() if not ln.lstrip().startswith(";") else ln for ln in e.o]
    txt = e.text()
    first, rest = txt.split("\n", 1)
    return HEADER + first + "\n" + DOC + rest

if __name__ == "__main__":
    kw = eval("dict(%s)" % (sys.argv[1] if len(sys.argv) > 1 else ""))
    sys.stdout.write(gen(**kw))
```

```python
import sys
KN = "parallel_sum__mha_block_cached__geglu_ffn__decode_kernel"

PO = 0x20000
PM = 0xA0000
YW = 0xB0000
QW = 0x100000
GU = 0x180000
CW = 0x1A8000
SCW = 0x200000
EW = 0x600000
WS_SIZE = 0x600080
STAMP = 0x700000
XN = 0; HL = 5632; OL = 6912; CNT = 7936; QL = 8192
FT = 12288; WOT = 86016; WDT = 102400
SCL = 120832
LDS_SIZE = 129024

LOG2E = 0x3fb8aa3b
SCALE = 0x3db504f3
DP = "row_mask:0xf bank_mask:0xf"
OR_XOR = "bitop3:0xf6"

HEADER = """; Kernarg layout for this problem (96 bytes, ptrs only, base s[0:1]):
"""

DOC = """;
;
"""

class A:
    def __init__(self):
        self.o = []
    def __call__(self, s):
        for ln in s.strip("\n").split("\n"):
            ln = ln.strip()
            if ln:
                self.o.append(ln if ln.endswith(":") or ln.startswith((".", ";")) else "    " + ln)
    def text(self):
        return "\n".join(self.o) + "\n"

def gen(R=4, S=24, v2=26, v4=0, k4=0, wflag="nt", kvflag="nt", stamps=0, spin=1 << 20, svcprio=1, svc0=3,
        bal=1, noq=0, notail=0, pj0=2, swz=1, mlw=3, stf="sc1", ldf="sc1", nopub=0, SE=28, one=4, c2=1, hs=0, hm=0, qa=0, qm=0, qk=0, rot=0, alt=0, lay=1, mix=0, mul=1, pubf="sc1 ", scf="sc1 "):
    hsleep = defer = trig = st2 = bare = 0
    eearly = 1
    e = A()
    PM = 0xA0000 if mlw == 0 else 0x120000
    S1 = S2 = S
    if SE is None:
        SE = S
    LIMS = (128 - 4 * SE, 128 - 4 * S)
    if c2:
        LIMS = (128 - 2 * SE - 2 * S,) * 2
    if c2:
        CLS = """s_bfe_u32 s50, s48, 0x10001
s_lshr_b32 s51, s48, 2
s_lshl_b32 s51, s51, 1
s_and_b32 s92, s48, 1
s_add_u32 s51, s51, s92"""
    else:
        CLS = "s_and_b32 s50, s48, 1\ns_lshr_b32 s51, s48, 1"
    assert S % 2 == 0 and R % 2 == 0 and S > 2 * R + 2
    LIM1 = 128 - 4 * S1
    LIM2 = 128 - 4 * S2
    def stamp(k):
        if stamps and not (bare & 16 and k in (1, 3, 4, 6)):
            e(f"s_memrealtime s[{60+2*k}:{61+2*k}]\ns_waitcnt lgkmcnt(0)")
    KB = 32
    SB = KB + R * 32
    NV = (SB + R + 3) // 4 * 4
    e(f"; @launch grid=(256,1,1) block=({256 if bare & 8 else 512},1,1) lds={LDS_SIZE}")
    e(f""".amdgcn_target "amdgcn-amd-amdhsa--gfx950"
.text
.globl {KN}
.p2align 8
.type {KN},@function
{KN}:
s_cmp_ge_u32 s2, 256
s_cbranch_scc1 L_end
s_load_dwordx16 s[4:19], s[0:1], 0
s_load_dwordx8 s[20:27], s[0:1], 64""")
    if stamps:
        for k in range(8):
            e(f"s_mov_b32 s{60+2*k}, 0")
        e("s_mov_b32 s97, 0")
    stamp(0)
    e("""v_lshrrev_b32 v1, 6, v0
v_and_b32 v0, 63, v0
v_readfirstlane_b32 s3, v1
s_and_b32 s48, s2, 7
s_lshr_b32 s49, s2, 3""")
    if hm:
        e(f"""s_mul_i32 s52, s48, {hm}
s_add_u32 s49, s49, s52
s_and_b32 s49, s49, 31
s_lshl_b32 s2, s49, 3
s_add_u32 s2, s2, s48""")
    if bal == 0:
        e("""s_and_b32 s52, s49, 3
s_lshl_b32 s53, s48, 2
s_add_u32 s52, s52, s53
s_lshr_b32 s53, s2, 5
s_add_u32 s96, s48, s53
s_and_b32 s96, s96, 7
s_cmp_eq_u32 s96, 7
s_cselect_b32 s98, 1, 0""")
    else:
        e("""s_bfe_u32 s52, s49, 0x20001
s_lshl_b32 s53, s48, 2
s_add_u32 s52, s52, s53
s_lshr_b32 s53, s49, 3
s_lshl_b32 s53, s53, 1
s_add_u32 s96, s48, s53
s_and_b32 s96, s96, 7
s_and_b32 s78, s49, 1
s_add_u32 s53, s53, s78
s_lshl_b32 s79, 1, s96
s_and_b32 s79, s79, 0x90
s_cselect_b32 s98, 1, 0
s_andn2_b32 s98, s98, s78""")
    e(f"""v_lshlrev_b32 v1, 4, v0
s_mov_b32 s85, {LOG2E}
v_mov_b32 v8, {CNT}
v_mov_b32 v10, 0
v_mov_b32 v11, 0
v_mov_b32 v12, 0
v_mov_b32 v13, 0
s_cmp_lg_u32 s3, 0
s_cbranch_scc1 L_b0
ds_write_b128 v8, v[10:13]
ds_write_b128 v8, v[10:13] offset:16
L_b0:
s_waitcnt lgkmcnt(0)
s_mov_b32 s94, {EW}
{"" if bare & 2 else "s_load_dword s94, s[26:27], s94"}
s_mov_b32 s44, s26
s_mov_b32 s45, s27
s_mov_b32 s46, {WS_SIZE}
s_mov_b32 s47, 0x20000
s_cmp_ge_u32 s3, 4
s_cbranch_scc1 L_svc""")

    e(f"""s_mul_i32 s56, s3, {hs}
s_add_u32 s49, s49, s56
s_and_b32 s49, s49, 31
s_lshl_b32 s18, s49, 3
s_add_u32 s18, s18, s48
s_add_u32 s56, s3, s48
s_and_b32 s56, s56, 3
s_lshl_b32 s58, s56, 5
s_add_u32 s58, s58, s49
s_lshl_b32 s59, s58, 21
s_add_u32 s28, s6, s59
s_addc_u32 s29, s7, 0
s_mov_b32 s30, {2<<20}
s_mov_b32 s31, 0x20000
s_add_u32 s32, s8, s59
s_addc_u32 s33, s9, 0
{CLS}
s_lshl_b32 s54, s50, 13
s_mul_i32 s82, s58, {rot}
s_and_b32 s82, s82, 127
s_lshl_b32 s82, s82, 14
s_lshl_b32 s34, s58, 14
s_add_u32 s34, s34, {SCW}
s_lshl_b32 s58, s58, 7
s_add_u32 s58, s58, {CW}
s_add_u32 s36, s26, s58
s_addc_u32 s37, s27, 0
s_lshl_b32 s35, s3, 11
s_add_u32 s35, s35, {SCL}
""")
    if lay:
        e(f"""v_bfe_u32 v3, v0, 4, 1
v_lshlrev_b32 v3, {16 if lay == 2 else 15}, v3
v_bfe_u32 v2, v0, 5, 1
v_lshl_or_b32 v3, v2, 8, v3
v_and_b32 v2, 15, v0
v_lshl_or_b32 v2, v2, 4, v3""")
    else:
        e("v_add_u32 v2, 4096, v1")
    e("s_barrier")
    def baddr(src):
        if not lay:
            return f"s_lshl_b32 s76, {src}, 14\ns_add_u32 s76, s76, s54"
        if lay == 2:
            return f"""s_lshr_b32 s76, {src}, 3
s_lshl_b32 s76, s76, 17
s_and_b32 s92, {src}, 1
s_lshl_b32 s92, s92, 12
s_add_u32 s76, s76, s92
s_and_b32 s92, {src}, 6
s_lshl_b32 s92, s92, 13
s_add_u32 s76, s76, s92
s_add_u32 s76, s76, s54"""
        if lay == 3:
            return f"""s_lshr_b32 s76, {src}, 3
s_lshl_b32 s76, s76, 17
s_and_b32 s92, {src}, 1
s_lshl_b32 s92, s92, 14
s_add_u32 s76, s76, s92
s_and_b32 s92, {src}, 2
s_lshl_b32 s92, s92, 15
s_add_u32 s76, s76, s92
s_and_b32 s92, {src}, 4
s_lshl_b32 s92, s92, 10
s_add_u32 s76, s76, s92
s_add_u32 s76, s76, s54"""
        return f"""s_lshr_b32 s76, {src}, 2
s_lshl_b32 s76, s76, 16
s_and_b32 s92, {src}, 1
s_lshl_b32 s92, s92, 12
s_add_u32 s76, s76, s92
s_and_b32 s92, {src}, 2
s_lshl_b32 s92, s92, 13
s_add_u32 s76, s76, s92
s_add_u32 s76, s76, s54"""
    def issue(u):
        if rot:
            e("s_add_u32 s76, s76, s82\ns_and_b32 s76, s76, 0x1fffff")
        for j in range(8):
            r = KB + u * 32 + j * 4
            if lay:
                e(f"buffer_load_dwordx4 v[{r}:{r+3}], v2, s[28:31], s76 offen offset:{j*512} {kvflag}")
            else:
                e(f"buffer_load_dwordx4 v[{r}:{r+3}], v{1 + (j >> 2)}, s[28:31], s76 offen offset:{(j&3)*1024} {kvflag}")
    if mix:
        snext = """s_add_u32 s76, s51, s48
s_and_b32 s76, s76, 7
s_lshl_b32 s92, s51, 3
s_add_u32 s76, s76, s92
s_lshl_b32 s76, s76, 13
s_add_u32 s51, s51, 1"""
    else:
        snext = baddr("s51") + "\n" + ("s_bitcmp1_b32 s51, 0\ns_cselect_b32 s92, 7, 1\ns_add_u32 s51, s51, s92" if alt else "s_add_u32 s51, s51, 4")
    for u in range(R):
        e(snext + f"\ns_add_u32 s{10+u}, s35, {64*u}")
        issue(u)
    stamp(1)
    e(f"""s_lshl_b32 s78, s56, 2
v_mov_b32 v9, s78
v_and_b32 v3, 15, v0
v_lshlrev_b32 v3, 4, v3
s_lshl_b32 s78, s56, 8
v_add_u32 v3, s78, v3
s_mov_b32 s83, {spin}
L_qw:
ds_read_b32 v8, v9 offset:{CNT+16}
ds_read_b128 v[4:7], v3 offset:{QL}
s_sub_u32 s83, s83, 1
s_cbranch_scc1 L_q_ok
s_waitcnt lgkmcnt(0)
v_cmp_eq_u32 vcc, 0, v8
{"" if noq else "s_cbranch_vccnz L_qw"}
L_q_ok:
s_waitcnt lgkmcnt(0)
s_add_u32 s94, s94, 1""")
    stamp(3)
    for r in range(8, 16):
        e(f"v_mov_b32 v{r}, 0")
    e(f"""v_mov_b32 v16, 0xff7fffff
v_mov_b32 v17, 0
s_mov_b32 s84, {SCALE}
s_mov_b32 s86, 0xffff0000
v_and_b32 v28, 0x3c, v0
v_lshlrev_b32 v3, 1, v28
v_lshrrev_b32 v30, 1, v0
v_lshlrev_b32 v30, 2, v30
v_and_b32 v31, 1, v0
v_add_lshl_u32 v30, v30, v31, 2
v_lshlrev_b32 v31, 2, v0
s_mov_b32 s87, {R}
s_mov_b32 s88, {R}
s_mov_b32 s77, 0
s_mov_b32 s55, 0
s_mov_b32 s89, 0
s_lshr_b32 s17, s48, 2
s_add_u32 s17, s17, {4*S}
s_bitcmp0_b32 s48, 0
s_cselect_b32 s14, {SE}, {S}
s_cmp_eq_u32 s50, 0
s_cselect_b32 s15, {LIMS[0]}, {LIMS[1]}
s_cselect_b32 s16, {LIMS[1]}, {LIMS[0]}
s_mov_b32 s80, 0xaaaaaaaa
s_mov_b32 s81, 0xaaaaaaaa
s_mov_b32 s83, {spin}""")
    def boundary_out(ph, u, have, none):
        S = (S1, S2)[ph]; LIM = (LIM1, LIM2)[ph]
        nm = f"{ph}{have}"
        e(f"""L_need{nm}:
s_cmp_ge_u32 s87, s14
s_cbranch_scc1 L_dyn{nm}
{snext}
s_lshl_b32 s42, s87, 6
s_add_u32 s42, s42, s35
s_add_u32 s87, s87, 1""")
        if c2:
            e(f"""s_cmp_lt_u32 s87, {S}
s_cselect_b32 s92, 0, 2
s_sub_u32 s51, s51, s92
s_cmp_eq_u32 s87, {S}
s_cselect_b32 s51, s17, s51""")
        if ph == 0:
            e(f"""s_cmp_lg_u32 s87, s14
s_cbranch_scc1 {have}_go
v_mov_b32 v26, {CNT}
v_mov_b32 v27, 1
ds_write_b32 v26, v27 offset:8""")
        else:
            e(f"""s_cmp_lg_u32 s87, {2*R+1}
s_cbranch_scc1 {have}_go
s_mov_b32 s90, 0x10000
s_atomic_add s90, s[36:37], 8""")
        e(f"s_branch {have}_go\nL_dyn{nm}:")
        if LIM == 0:
            e(f"s_branch {none}")
            return
        e(f"""L_early{nm}:
s_sub_u32 s83, s83, 1
s_cbranch_scc1 {none}""")
        if qa and (ph == 1 or qk):
            e(f"s_cmp_ge_u32 s55, s99\ns_cbranch_scc1 {none}")
        if ph == 0:
            e(f"s_cmp_lt_u32 s55, {k4}\ns_cselect_b32 s95, 4, 2")
        else:
            e(f"s_add_u32 s92, s55, {one}\ns_cmp_lt_u32 s92, s15\ns_cselect_b32 s95, 2, 1")
            if v4:
                e(f"s_cmp_lt_u32 s55, {v4}\ns_cselect_b32 s95, 4, s95")
        e(f"""s_lshl_b32 s93, s50, 3
s_lshl_b32 s90, s95, s93
s_mov_b32 s91, 0
s_atomic_add_x2 s[90:91], s[36:37], {8*ph} glc
s_waitcnt lgkmcnt(0)
s_cmp_lg_u32 s91, s94
s_cbranch_scc1 L_early{nm}
s_lshr_b32 s55, s90, s93
s_and_b32 s55, s55, 0xff
s_cmp_lt_u32 s55, s15
s_cbranch_scc1 L_got{nm}
s_cmp_eq_u32 s89, 1
s_cbranch_scc1 {none}
s_xor_b32 s93, s93, 8
s_lshr_b32 s55, s90, s93
s_and_b32 s55, s55, 0xff
s_cmp_ge_u32 s55, s16
s_cbranch_scc1 {none}
s_mov_b32 s15, s16
s_mov_b32 s89, 1
s_xor_b32 s50, s50, 1
s_xor_b32 s54, s54, 0x2000
s_branch L_early{nm}
L_got{nm}:""")
        if qa and (ph == 1 or qk):
            e(f"""s_cmp_ge_u32 s55, {qa}
s_cselect_b32 s92, {LIM - qm}, -1
s_cmp_eq_u32 s99, -2
s_cselect_b32 s99, s92, s99""")
        if ph == 1 and not nopub:
            e(f"""L_vd{nm}:
s_lshr_b32 s92, s90, 16
s_cmp_ge_u32 s92, 8
s_cbranch_scc1 L_vok{nm}
s_sub_u32 s83, s83, 1
s_cbranch_scc1 L_vok{nm}
s_mov_b32 s90, 0
s_atomic_add s90, s[36:37], 8 glc
s_waitcnt lgkmcnt(0)
s_branch L_vd{nm}
L_vok{nm}:""")
        e(f"""s_sub_u32 s77, s15, s55
s_sub_u32 s57, 128, s77
s_min_u32 s77, s77, s95
s_add_u32 s55, s55, s95""")
        if stamps:
            e(f"s_lshl_b32 s92, s77, {16*ph}\ns_add_u32 s97, s97, s92")
        e(f"s_branch {have}")
    def boundary_in(ph, have):
        e(f"""s_cmp_eq_u32 s77, 0
s_cbranch_scc1 L_need{ph}{have}
{have}:
s_sub_u32 s77, s77, 1
{baddr("s57")}
s_lshr_b32 s42, s57, 1
s_lshl_b32 s42, s42, 8
s_lshr_b32 s92, s54, 6
s_add_u32 s42, s42, s92
s_and_b32 s92, s57, 1
s_lshl_b32 s92, s92, {2*ph}
s_and_b32 s92, s92, 4
s_add_u32 s42, s42, s92
s_add_u32 s42, s42, s34
s_add_u32 s57, s57, 1
{have}_go:""")
    nf = [0]
    def score_fetch(u):
        n = nf[0]; nf[0] += 1
        r = SB + u
        e(f"""s_cmp_ge_u32 s42, {SCW}
s_cbranch_scc1 L_sf{n}
v_add_u32 v26, s42, v28
ds_read_b32 v{r}, v26
s_branch L_sg{n}
L_sf{n}:
{"" if nopub & 2 else f"buffer_load_dword v{r}, v3, s[44:47], s42 offen {scf};"}
L_sg{n}:""")
    def kstep(u, nextv):
        k = KB + u * 32
        e(f"s_waitcnt vmcnt({8*(R-1)})")
        for j in range(8):
            e(f"v_dot2_f32_bf16 v{18+j}, v{k+4*j}, v4, 0")
        for i in range(1, 4):
            for j in range(8):
                e(f"v_dot2c_f32_bf16 v{18+j}, v{k+4*j+i}, v{4+i}")
        e(f"s_mov_b32 s43, s{10+u}")
        if nextv:
            score_fetch(u)
        else:
            e(f"s_mov_b32 s{10+u}, s42")
        issue(u)
        n = nf[0]; nf[0] += 1
        e(f"""v_add_f32_dpp v26, v18, v18 row_ror:8 row_mask:0xf bank_mask:0x3
v_add_f32_dpp v27, v20, v20 row_ror:8 row_mask:0xf bank_mask:0x3
v_add_f32_dpp v26, v19, v19 row_ror:8 row_mask:0xf bank_mask:0xc
v_add_f32_dpp v27, v21, v21 row_ror:8 row_mask:0xf bank_mask:0xc
v_add_f32_dpp v20, v22, v22 row_ror:8 row_mask:0xf bank_mask:0x3
v_add_f32_dpp v21, v24, v24 row_ror:8 row_mask:0xf bank_mask:0x3
v_add_f32_dpp v20, v23, v23 row_ror:8 row_mask:0xf bank_mask:0xc
v_add_f32_dpp v21, v25, v25 row_ror:8 row_mask:0xf bank_mask:0xc
v_add_f32_dpp v18, v26, v26 row_half_mirror row_mask:0xf bank_mask:0x5
v_add_f32_dpp v18, v27, v27 row_half_mirror row_mask:0xf bank_mask:0xa
v_add_f32_dpp v19, v20, v20 row_half_mirror row_mask:0xf bank_mask:0x5
v_add_f32_dpp v19, v21, v21 row_half_mirror row_mask:0xf bank_mask:0xa
s_nop 0
v_add_f32_dpp v18, v18, v18 quad_perm:[1,0,3,2] {DP}
v_add_f32_dpp v19, v19, v19 quad_perm:[1,0,3,2] {DP}
s_nop 0
v_add_f32_dpp v18, v18, v18 quad_perm:[2,3,0,1] {DP}
v_add_f32_dpp v19, v19, v19 quad_perm:[2,3,0,1] {DP}
v_cvt_pk_bf16_f32 v18, v18, v19
v_lshlrev_b32 v20, 16, v18
v_and_b32 v21, s86, v18
v_mul_f32 v20, s84, v20
v_mul_f32 v21, s84, v21
v_cvt_pk_bf16_f32 v18, v20, v21
s_cmp_ge_u32 s43, {SCW}
s_cbranch_scc1 L_pub{n}
v_add_u32 v26, s43, v28
ds_write_b32 v26, v18
s_branch L_pe{n}
L_pub{n}:""")
        if u % 2 == 0:
            e("v_mov_b32 v29, v18")
        else:
            e(f"""v_cndmask_b32 v18, v29, v18, s[80:81]
ds_bpermute_b32 v19, v30, v18
s_mov_b64 exec, 0xffffffff
s_waitcnt lgkmcnt(0)
{"" if nopub & 1 else f"buffer_store_dword v19, v31, s[44:47], s43 offen {pubf};"}
s_mov_b64 exec, -1""")
        e(f"L_pe{n}:")
    nw = [0]
    def vstep(u, last):
        v = KB + u * 32
        r = SB + u
        n = nw[0]; nw[0] += 1
        if not last:
            e(f"s_waitcnt vmcnt({8*(R-1)}) lgkmcnt(0)")
        else:
            for j in range(R - 1, 0, -1):
                e(f"s_cmp_lg_u32 s88, {j}\ns_cbranch_scc1 L_w{n}_{j}\ns_waitcnt vmcnt({8*j}) lgkmcnt(0)\ns_branch L_w{n}\nL_w{n}_{j}:")
            e(f"s_waitcnt vmcnt(0) lgkmcnt(0)\nL_w{n}:")
        e(f"""v_lshlrev_b32 v20, 16, v{r}
v_and_b32 v21, s86, v{r}
v_max_f32 v22, v20, v21
s_nop 1
v_max_f32_dpp v22, v22, v22 row_ror:8 {DP}
s_nop 1
v_max_f32_dpp v22, v22, v22 row_ror:4 {DP}
v_max_f32 v22, v16, v22
v_sub_f32 v20, v20, v22
v_sub_f32 v21, v21, v22
v_sub_f32 v24, v16, v22
v_mul_f32 v20, s85, v20
v_mul_f32 v21, s85, v21
v_mul_f32 v24, s85, v24
v_exp_f32 v20, v20
v_exp_f32 v21, v21
v_exp_f32 v24, v24
v_mov_b32 v16, v22
v_cvt_pk_bf16_f32 v18, v20, 0
v_cvt_pk_bf16_f32 v22, v21, 0
v_fma_f32 v17, v17, v24, v20
v_lshlrev_b32 v19, 16, v18
v_lshlrev_b32 v23, 16, v22
v_add_f32 v17, v17, v21""")
        for i in range(4):
            e(f"v_pk_mul_f32 v[{8+2*i}:{9+2*i}], v[{8+2*i}:{9+2*i}], v[24:25] op_sel_hi:[1,0]")
        for j in range(8):
            ln = (0, 8, 4, 12)[j & 3]
            p = 18 + 4 * (j >> 2)
            for i in range(4):
                e(f"v_dot2c_f32_bf16_dpp v{8+2*i}, v{p}, v{v+4*j+i} row_newbcast:{ln} {DP}")
                e(f"v_dot2c_f32_bf16_dpp v{9+2*i}, v{p+1}, v{v+4*j+i} row_newbcast:{ln} {DP}")
        if not last:
            score_fetch(u)
            issue(u)
    late = []
    e("L_A0:")
    for u in range(R):
        if u:
            e(f"L_A{u}:")
        boundary_in(0, f"L_ha{u}")
        kstep(u, False)
    e("s_branch L_A0")
    for u in range(R):
        e(f"L_B{u}:")
        boundary_in(1, f"L_hb{u}")
        kstep(u, True)
        e(f"s_sub_u32 s88, s88, 1\ns_cmp_eq_u32 s88, 0\ns_cbranch_scc1 L_C{(u+1)%R}")
    e("s_branch L_B0")
    for u in range(R):
        e(f"L_C{u}:")
        boundary_in(1, f"L_hc{u}")
        vstep(u, False)
    e("s_branch L_C0")
    for u in range(R):
        boundary_out(0, u, f"L_ha{u}", f"L_sw{u}")
        e(f"""L_sw{u}:
s_mov_b32 s28, s32
s_mov_b32 s29, s33
{CLS}
s_lshl_b32 s54, s50, 13
s_mov_b32 s87, 0
s_mov_b32 s55, 0
s_cmp_eq_u32 s50, 0
s_cselect_b32 s15, {LIMS[0]}, {LIMS[1]}
s_mov_b32 s89, 0""")
        stamp(6)
        e(f"s_branch L_B{u}")
        boundary_out(1, u, f"L_hb{u}", "L_never")
        boundary_out(1, u, f"L_hc{u}", f"L_dr{u}")
    e("L_never:\ns_branch L_sdone")
    for u in range(R):
        e(f"L_dr{u}:\ns_mov_b32 s88, {R}\nL_D{u}:\ns_sub_u32 s88, s88, 1")
        vstep(u, True)
        e(f"s_cmp_eq_u32 s88, 0\ns_cbranch_scc1 L_sdone\ns_branch L_D{(u+1)%R}")
    for t in late:
        e(t)
    e("L_sdone:")
    stamp(5)
    e(f"""v_mov_b32 v18, v16
v_mov_b32 v19, v16
s_lshl_b32 s78, s18, 11
s_lshl_b32 s79, s56, 9
v_permlane16_swap_b32 v18, v19
s_add_u32 s78, s78, s79
v_max_f32 v18, v18, v19
v_mov_b32 v19, v18
s_add_u32 s78, s78, {PO}
s_lshl_b32 s79, s18, {6 + mlw}
v_permlane32_swap_b32 v18, v19
s_lshl_b32 s80, s56, {4 + mlw}
v_max_f32 v18, v18, v19
v_sub_f32 v20, v16, v18
v_mul_f32 v20, s85, v20
v_exp_f32 v20, v20
s_add_u32 s79, s79, s80
v_mul_f32 v17, v17, v20""")
    for r in range(8, 16):
        e(f"v_mul_f32 v{r}, v20, v{r}")
    e(f"""v_add_f32_dpp v17, v17, v17 row_ror:8 {DP}
s_add_u32 s79, s79, {PM}
v_permlane32_swap_b32 v8, v12
v_permlane32_swap_b32 v9, v13
v_add_f32_dpp v17, v17, v17 row_ror:4 {DP}
v_permlane32_swap_b32 v10, v14
v_permlane32_swap_b32 v11, v15
v_mov_b32 v19, v17
v_add_f32 v8, v8, v12
v_add_f32 v9, v9, v13
v_add_f32 v10, v10, v14
v_add_f32 v11, v11, v15
v_permlane16_swap_b32 v17, v19
v_add_u32 v20, s94, v0
v_permlane16_swap_b32 v8, v10
v_permlane16_swap_b32 v9, v11
v_add_f32 v17, v17, v19
v_add_f32 v8, v8, v10
v_mov_b32 v19, v17
v_add_f32 v9, v9, v11
s_movk_i32 s80, 0xff
v_permlane32_swap_b32 v17, v19
v_lshlrev_b32 v22, 3, v0
v_add_u32 v21, 64, v20
v_bfi_b32 v8, s80, v20, v8
v_bfi_b32 v9, s80, v21, v9
v_add_f32 v19, v17, v19
buffer_store_dwordx2 v[8:9], v22, s[44:47], s78 offen sc1
v_mov_b32 v20, s94
v_mov_b32 v21, s94
s_mov_b64 exec, {(1 << (1 << mlw)) - 1}
buffer_store_dwordx4 v[18:21], v1, s[44:47], s79 offen sc1
s_mov_b64 exec, -1
s_barrier""")
    e(f"""s_cmp_ge_u32 s3, {0 if notail else 2}
s_cbranch_scc1 L_bar_done
s_cmp_eq_u32 s3, 0
s_cbranch_scc1 L_red
s_cmp_eq_u32 s98, 0
s_cbranch_scc1 L_bar_done
s_mov_b32 s53, 8
L_red:
s_bfe_u32 s78, s52, 0x20001
s_mul_i32 s78, s78, 1152
s_lshr_b32 s79, s52, 3
s_lshl_b32 s79, s79, 5
s_add_u32 s78, s78, s79
s_and_b32 s79, s52, 1
s_lshl_b32 s79, s79, 4
s_add_u32 s78, s78, s79
s_lshl_b32 s79, s53, 7
s_add_u32 s78, s78, s79
v_and_b32 v9, 1, v0
v_lshlrev_b32 v10, 3, v9
s_mov_b32 s28, s4
s_mov_b32 s29, s5
s_mov_b32 s30, 4608
s_mov_b32 s31, 0x20000
buffer_load_dwordx2 v[16:17], v10, s[28:31], s78 offen
s_mov_b32 s40, s22
s_mov_b32 s41, s23
s_mov_b32 s42, 4608
s_mov_b32 s43, 0x20000
v_lshrrev_b32 v8, 1, v0
v_lshlrev_b32 v8, 10, v8
v_lshl_add_u32 v8, v9, 4, v8
s_lshl_b32 s79, s53, 15
s_lshl_b32 s80, s52, 5
s_add_u32 s79, s79, s80
s_add_u32 s79, s79, {YW}
s_lshl_b32 s80, s52, 3
s_add_u32 s80, s80, s94
v_lshl_add_u32 v24, v9, 2, s80
v_add_u32 v25, 1, v24
v_add_u32 v26, 2, v24
v_add_u32 v27, 3, v24
s_mov_b32 s83, {spin}
s_barrier
L_h2:
buffer_load_dwordx4 v[12:15], v8, s[44:47], s79 offen sc1
s_sub_u32 s83, s83, 1
s_cbranch_scc1 L_h2_done
s_waitcnt vmcnt(0)
v_xor_b32 v20, v24, v12
v_bitop3_b32 v20, v20, v13, v25 {OR_XOR}
v_bitop3_b32 v20, v20, v14, v26 {OR_XOR}
v_bitop3_b32 v20, v20, v15, v27 {OR_XOR}
v_and_b32 v20, 0xff, v20
s_nop 1
v_or_b32_dpp v20, v20, v20 quad_perm:[1,0,3,2] {DP}
v_cmp_ne_u32 vcc, 0, v20
s_and_b64 exec, exec, vcc
s_cbranch_execnz L_h2
L_h2_done:
s_mov_b64 exec, -1
s_waitcnt vmcnt(0)""")
    if eearly:
        e(f"""s_add_u32 s79, s2, s3
s_cmp_lg_u32 s79, 0
s_cbranch_scc1 L_noe
v_mov_b32 v24, s94
v_mov_b32 v25, {EW}
s_mov_b64 exec, 1
buffer_store_dword v24, v25, s[44:47], 0 offen
s_mov_b64 exec, -1
L_noe:""")
    e("s_movk_i32 s84, 0xff00")
    for r in range(12, 16):
        e(f"v_and_b32 v{r}, s84, v{r}")
    for dpp in ("quad_perm:[2,3,0,1]", "row_ror:4", "row_ror:8"):
        for r in range(12, 16):
            e(f"v_add_f32_dpp v{r}, v{r}, v{r} {dpp} {DP}")
    for sw in (16, 32):
        for r in range(4):
            e(f"v_mov_b32 v{20+r}, v{12+r}")
        for r in range(4):
            e(f"v_permlane{sw}_swap_b32 v{12+r}, v{20+r}")
        for r in range(4):
            e(f"v_add_f32 v{12+r}, v{12+r}, v{20+r}")
    e(f"""v_lshlrev_b32 v20, 16, v16
v_and_b32 v21, 0xffff0000, v16
v_lshlrev_b32 v22, 16, v17
v_and_b32 v23, 0xffff0000, v17
v_add_f32 v12, v12, v20
v_add_f32 v13, v13, v21
v_add_f32 v14, v14, v22
v_add_f32 v15, v15, v23
v_cvt_pk_bf16_f32 v12, v12, v13
v_cvt_pk_bf16_f32 v13, v14, v15
s_mov_b64 exec, 3
buffer_store_dwordx2 v[12:13], v10, s[40:43], s78 offen
s_add_u32 s78, s2, s3
s_cmp_lg_u32 s78, 0
{"s_branch L_done" if eearly else "s_cbranch_scc1 L_done"}
v_mov_b32 v12, s94
v_mov_b32 v13, {EW}
s_mov_b64 exec, 1
buffer_store_dword v12, v13, s[44:47], 0 offen sc1
s_branch L_done
L_bar_done:
s_barrier
s_branch L_done""")

    def srd(ptr, nbytes):
        e(f"s_mov_b32 s40, s{ptr}\ns_mov_b32 s41, s{ptr+1}\ns_mov_b32 s42, {nbytes}\ns_mov_b32 s43, 0x20000")
    def dma(n_ins, step, ldsbase, vreg, alt=False):
        for n in range(n_ins):
            e(f"s_add_u32 m0, s79, {ldsbase + 1024*n}")
            e(f"s_add_u32 s78, s78, {step}" if n else "s_nop 0")
            e(f"buffer_load_dwordx4 v{vreg + (n & 1 if alt else 0)}, s[40:43], s78 offen {wflag} lds")
    def proj_tiles(stripe_sreg, wo_base, wd_base, late=False):
        e(f"s_lshl_b32 s81, s{stripe_sreg}, 7")
        if late or defer != 2:
            srd(12, 4096 * 1152)
            e(f"""s_mul_i32 s78, s52, {128*1152}
s_add_u32 s78, s78, s81
s_mul_i32 s79, s56, {32*1152}
s_add_u32 s78, s78, s79
s_lshl_b32 s79, s56, 12""")
            dma(4, 8 * 1152, wo_base, 31)
        if late and defer == 2:
            return
        srd(20, 4608 * 1152)
        e(f"""s_mul_i32 s78, s52, {144*1152}
s_add_u32 s78, s78, s81
s_mul_i32 s79, s57, {8*1152}
s_add_u32 s78, s78, s79
s_lshl_b32 s79, s57, 10""")
        dma(5, 8 * 1152, wd_base, 31)
    npj = [0]
    def all_proj(late=False):
        n = npj[0]; npj[0] += 1
        proj_tiles(53, WOT, WDT, late)
        e(f"s_cmp_eq_u32 s98, 0\ns_cbranch_scc1 L_pj{n}\ns_mov_b32 s80, 8")
        proj_tiles(80, FT, FT + 16384, late)
        e(f"L_pj{n}:")
    def pick_batch(d, a):
        e(f"""v_cndmask_b32 v{a}, v{a}, v{a+1}, s[38:39]
v_cndmask_b32 v{a+2}, v{a+2}, v{a+3}, s[38:39]
v_cndmask_b32 v{d}, v{a}, v{a+2}, s[58:59]""")
    tn = [0]
    def ticket_init():
        n = tn[0]; tn[0] += 1
        e(f"""s_cmp_lg_u32 s56, 3
s_cbranch_scc1 L_ti{n}
s_cmp_ge_u32 s2, 128
s_cbranch_scc1 L_ti{n}
v_mov_b32 v22, 0
v_mov_b32 v23, s94
v_lshlrev_b32 v24, 3, v0
s_mov_b64 exec, 0xffff
s_lshl_b32 s79, s2, 7
s_add_u32 s79, s79, {CW}
buffer_store_dwordx2 v[22:23], v24, s[44:47], s79 offen sc1
s_mov_b64 exec, -1
L_ti{n}:""")
    qn = [0]
    def qfetch():
        ticket_init()
        n = qn[0]; qn[0] += 1
        e(f"""v_lshrrev_b32 v14, 3, v0
v_lshlrev_b32 v14, 8, v14
v_and_b32 v15, 7, v0
v_lshl_add_u32 v14, v15, 3, v14
s_sub_u32 s89, s56, s48
s_and_b32 s89, s89, 3
s_mul_i32 s89, s89, {hs}
s_add_u32 s89, s89, s49
s_and_b32 s89, s89, 31
s_lshl_b32 s88, s56, 6
s_lshl_b32 s89, s89, 11
s_add_u32 s88, s88, s89
s_add_u32 s88, s88, {QW}
s_lshl_b32 s89, s56, 8
v_lshl_add_u32 v3, v0, 2, s89
s_lshl_b32 s89, s56, 2
v_mov_b32 v2, s89
s_lshl_b32 s89, s56, 4
s_add_u32 s89, s89, s94
v_lshl_add_u32 v18, v15, 1, s89
v_add_u32 v19, 1, v18
s_mov_b32 s83, {spin}
L_q_again{n}:
buffer_load_dwordx2 v[16:17], v14, s[44:47], s88 offen sc1
s_sub_u32 s83, s83, 1
s_cbranch_scc1 L_q_got{n}
s_waitcnt vmcnt(0)
v_xor_b32 v15, v18, v16
v_bitop3_b32 v15, v15, v17, v19 {OR_XOR}
v_and_b32 v15, 0xffff, v15
v_cmp_ne_u32 vcc, 0, v15
s_cbranch_vccnz L_q_again{n}
L_q_got{n}:
s_mov_b32 s89, 0x07060302
v_perm_b32 v16, v17, v16, s89
v_mov_b32 v15, 1
ds_write_b32 v3, v16 offset:{QL}
ds_write_b32 v2, v15 offset:{CNT+16}
s_setprio {svcprio}""")
        stamp(4)
    if bare & 1:
        e("L_svc:\ns_endpgm\nL_svc_x:")
    e(f"""{"" if bare & 1 else "L_svc:"}
s_setprio {svc0}
s_sub_u32 s56, s3, 4
s_mul_i32 s57, s56, 9
s_lshr_b32 s57, s57, 1
v_lshrrev_b32 v8, 3, v0
v_and_b32 v10, 7, v0
v_lshlrev_b32 v10, 4, v10
v_mul_u32_u24 v31, 1152, v8
v_add_u32 v31, v31, v10
s_mov_b32 s58, 0
s_mov_b32 s59, -1
s_sub_u32 s78, s96, 5
s_cmp_lt_u32 s78, 2
s_cbranch_scc1 L_tq
s_and_b32 s78, s49, 1
s_add_u32 s78, s78, 4
s_cmp_ge_u32 s96, s78
s_cbranch_scc1 L_notask
s_mul_i32 s80, s49, 9
s_lshr_b32 s80, s80, 1
s_add_u32 s80, s80, s96
s_lshl_b32 s51, s80, 10
s_add_u32 s51, s51, {GU}
s_cmp_ge_u32 s80, 72
s_cselect_b32 s40, s18, s16
s_cselect_b32 s41, s19, s17
s_cselect_b32 s78, 72, 0
s_mov_b32 s42, {576*9216}
s_sub_u32 s80, s80, s78
s_movk_i32 s50, 9216
s_branch L_task
L_tq:
s_lshl_b32 s80, s49, 1
s_add_u32 s80, s80, s78
s_lshl_b32 s51, s80, 10
s_add_u32 s51, s51, {QW}
s_mov_b32 s40, s10
s_mov_b32 s41, s11
s_mov_b32 s42, {576*8192}
s_movk_i32 s50, 8192
L_task:
s_mov_b32 s43, 0x20000
s_mul_i32 s36, s56, 1152
s_add_u32 s36, s4, s36
s_addc_u32 s37, s5, 0
s_mov_b32 s38, 1152
s_mov_b32 s39, 0x20000
v_lshlrev_b32 v7, 2, v0""")
    if st2 == 1:
        stamp(2)
    for j in range(5):
        e(f"buffer_load_dword v{2+j}, v7, s[36:39], 0 offen offset:{256*j}")
    if swz:
        e("""v_bfe_u32 v9, v0, 4, 1
v_lshlrev_b32 v9, 5, v9
v_xor_b32 v10, v10, v9""")
    e(f"""v_mul_u32_u24 v8, s50, v8
v_add_u32 v8, v8, v10
v_xor_b32 v9, 64, v8
s_lshl_b32 s78, s80, 7
s_mul_i32 s79, s56, 144
s_mul_i32 s79, s79, s50
s_add_u32 s78, s78, s79
s_lshl_b32 s82, s50, 3
s_lshl_b32 s79, s56, 8
s_add_u32 s51, s51, s79
s_mul_i32 s79, s56, {18*1024}""")
    dma(18, "s82", FT, 8, bool(swz))
    if pj0 == 1:
        proj_tiles(53, WOT, WDT)
    if st2 == 4:
        stamp(2)
    e("s_barrier")
    if pj0 == 2:
        proj_tiles(53, WOT, WDT)
    NPJ = 0 if not pj0 else (5 if defer == 2 else 9)
    NPX = 0 if pj0 == 3 else NPJ
    if st2 == 2:
        stamp(2)
    e(f"s_waitcnt vmcnt({18 + NPX})")
    if st2 == 3:
        stamp(2)
    def wave_sum(r, t):
        for k in (8, 4, 2, 1):
            e(f"s_nop 1\nv_add_f32_dpp v{r}, v{r}, v{r} row_ror:{k} {DP}")
        for sw in (16, 32):
            e(f"v_mov_b32 v{t}, v{r}\ns_nop 1\nv_permlane{sw}_swap_b32 v{r}, v{t}\ns_nop 0\nv_add_f32 v{r}, v{r}, v{t}")
    def rbf(d, s):
        e(f"v_cvt_pk_bf16_f32 v{d}, v{s}, v{s}\nv_and_b32 v{d}, 0xffff0000, v{d}")
    for j in range(5):
        e(f"v_lshlrev_b32 v{10+2*j}, 16, v{2+j}\nv_and_b32 v{11+2*j}, 0xffff0000, v{2+j}")
    e("v_add_f32 v20, v10, v11")
    for j in range(12, 20):
        e(f"v_add_f32 v20, v20, v{j}")
    wave_sum(20, 21)
    e("v_mul_f32 v20, 0x3ae38e39, v20")
    e("v_cmp_gt_u32 vcc, 32, v0")
    for j in range(10):
        e(f"v_sub_f32 v{22+j if j < 8 else 2+j-8}, v{10+j}, v20")
    e("v_cndmask_b32 v2, 0, v2, vcc\nv_cndmask_b32 v3, 0, v3, vcc")
    e("v_mul_f32 v21, v2, v2\nv_fmac_f32 v21, v3, v3")
    for j in range(8):
        e(f"v_fmac_f32 v21, v{22+j}, v{22+j}")
    wave_sum(21, 22)
    e("v_mul_f32 v21, 0x3ae38e39, v21")
    rbf(21, 21)
    e("v_add_f32 v21, 0x3727c5ac, v21")
    rbf(21, 21)
    e("v_sqrt_f32 v21, v21\ns_nop 0")
    rbf(21, 21)
    e("v_rcp_f32 v21, v21")
    rbf(20, 20)
    for j in range(10):
        e(f"v_sub_f32 v{10+j}, v{10+j}, v20")
    for j in range(5):
        e(f"v_cvt_pk_bf16_f32 v{2+j}, v{10+2*j}, v{11+2*j}")
    for j in range(5):
        e(f"v_lshlrev_b32 v{10+2*j}, 16, v{2+j}\nv_and_b32 v{11+2*j}, 0xffff0000, v{2+j}")
    for j in range(10):
        e(f"v_mul_f32 v{10+j}, v{10+j}, v21")
    for j in range(5):
        e(f"v_cvt_pk_bf16_f32 v{2+j}, v{10+2*j}, v{11+2*j}")
    e("s_mul_i32 s78, s56, 1152\nv_add_u32 v7, s78, v7")
    for j in range(4):
        e(f"ds_write_b32 v7, v{2+j} offset:{XN+256*j}")
    e(f"s_mov_b64 exec, 0xffffffff\nds_write_b32 v7, v6 offset:{XN+1024}\ns_mov_b64 exec, -1")
    if pj0 == 3:
        proj_tiles(53, WOT, WDT)
    e(f"""v_lshrrev_b32 v8, 4, v0
v_lshlrev_b32 v9, 4, v8
v_lshlrev_b32 v8, 3, v8
v_bfe_u32 v10, v0, 2, 2
v_add_u32 v8, v8, v10
v_lshlrev_b32 v8, 7, v8
v_and_b32 v10, 3, v0
v_lshl_add_u32 v8, v10, 3, v8
v_mul_u32_u24 v10, 1152, v10
v_add_u32 v9, v9, v10
s_lshl_b32 s78, s56, 5
v_bfe_u32 v14, v0, 3, 2
v_lshlrev_b32 v14, 5, v14
v_and_b32 v14, {0x60 if swz else 0}, v14
v_xor_b32 v14, s78, v14
v_add_u32 v11, {FT}, v8
v_add_u32 v11, v11, v14
v_add_u32 v12, {9*4096}, v11
v_lshlrev_b32 v13, 2, v0""")
    for r in range(16, 20):
        e(f"v_mov_b32 v{r}, 0")
    e(f"""v_mov_b32 v29, {CNT}
v_mov_b32 v30, 1
s_mov_b32 s83, {spin}
s_waitcnt vmcnt({NPJ}) lgkmcnt(0)
s_add_u32 s94, s94, 1
s_mov_b32 s38, 0xffff0000
s_mov_b32 s39, 0xffff0000
s_mov_b64 exec, 1
ds_add_u32 v29, v30
s_mov_b64 exec, -1
L_wxn:
ds_read_b32 v30, v29
s_sub_u32 s83, s83, 1
s_cbranch_scc1 L_wxn_ok
s_waitcnt lgkmcnt(0)
v_cmp_gt_u32 vcc, 4, v30
s_cbranch_vccnz L_wxn
L_wxn_ok:
s_waitcnt lgkmcnt(0)""")
    stamp(1)
    def rd(s):
        base = 32 + (s % 5) * 8
        e(f"ds_read_b128 v[{base}:{base+3}], v9 offset:{XN+64*s}")
        sg, so = divmod(s, 9)
        e(f"ds_read_b64_tr_b16 v[{base+4}:{base+5}], v{11+sg} offset:{4096*so}")
        e(f"ds_read_b64_tr_b16 v[{base+6}:{base+7}], v{11+sg} offset:{4096*so+512}")
    for s in range(4):
        rd(s)
    for s in range(18):
        e(f"s_waitcnt lgkmcnt({min(3, 17-s)*3})")
        base = 32 + (s % 5) * 8
        e(f"v_mfma_f32_16x16x32_bf16 v[16:19], v[{base}:{base+3}], v[{base+4}:{base+7}], v[16:19]")
        if s + 4 < 18:
            rd(s + 4)
    e("v_add_u32 v21, s94, v0\ns_mov_b32 s78, 0x07060100\ns_nop 5")
    pick_batch(20, 16)
    e("""v_cvt_pk_bf16_f32 v20, v20, v20
v_perm_b32 v20, v20, v21, s78
buffer_store_dword v20, v13, s[44:47], s51 offen sc1""")
    if not st2:
        stamp(2)
    qfetch()
    if not defer and not pj0:
        proj_tiles(53, WOT, WDT)
    e("s_branch L_tick\nL_notask:")
    if defer != 1:
        all_proj()
    e("s_barrier\ns_waitcnt lgkmcnt(0)\ns_add_u32 s94, s94, 1\ns_mov_b32 s38, 0xffff0000\ns_mov_b32 s39, 0xffff0000")
    qfetch()
    e("L_tick:")
    e(f"""L_gu:
v_min_u32 v8, 35, v0
v_lshrrev_b32 v9, 2, v8
v_lshlrev_b32 v9, 8, v9
v_and_b32 v24, 3, v8
s_lshl_b32 s78, s56, 4
s_add_u32 s78, s78, s94
v_lshl_add_u32 v44, v24, 2, s78
v_add_u32 v45, 1, v44
v_add_u32 v46, 2, v44
v_add_u32 v47, 3, v44
v_lshl_add_u32 v24, v24, 4, v9
v_lshlrev_b32 v26, 3, v8
s_mul_i32 s78, s56, 288
v_add_u32 v26, s78, v26
s_mul_i32 s78, s52, 2304
s_lshl_b32 s79, s56, 6
s_add_u32 s78, s78, s79
s_add_u32 s78, s78, {GU}
s_add_u32 s79, s78, 73728
v_mov_b32 v29, {CNT}
s_mov_b32 s83, {spin}
{"" if hsleep else "s_setprio 0"}
L_late:
{f"s_sleep {hsleep}" if hsleep else ""}
ds_read_b32 v30, v29 offset:8
s_sub_u32 s83, s83, 1
s_cbranch_scc1 L_late_ok
s_waitcnt lgkmcnt(0)
v_cmp_eq_u32 vcc, 0, v30
s_cbranch_vccnz L_late
L_late_ok:
s_setprio {svcprio}
s_waitcnt lgkmcnt(0)
s_mov_b32 s83, {spin}
L_ph:
buffer_load_dwordx4 v[32:35], v24, s[44:47], s78 offen sc1
buffer_load_dwordx4 v[36:39], v24, s[44:47], s79 offen sc1
s_sub_u32 s83, s83, 1
s_cbranch_scc1 L_ph_done
s_waitcnt vmcnt(0)
v_xor_b32 v8, v44, v32""")
    for r in range(33, 40):
        e(f"v_bitop3_b32 v8, v8, v{r}, v{44+(r&3)} {OR_XOR}")
    e("""v_and_b32 v8, 0xffff, v8
v_cmp_ne_u32 vcc, 0, v8
s_cbranch_vccnz L_ph
L_ph_done:
s_waitcnt vmcnt(0)""")
    for r in range(32, 40):
        e(f"v_and_b32 v{r}, 0xffff0000, v{r}")
    e("s_mov_b32 s78, 0x3d372713\ns_mov_b32 s79, 0xc0135761")
    for r in range(4):
        g = 32 + r; t = 40 + r
        e(f"""v_mul_f32 v{t}, v{g}, v{g}
v_mul_f32 v{t}, v{t}, v{g}
v_fma_f32 v{t}, v{t}, s78, v{g}
v_mul_f32 v{t}, s79, v{t}
v_exp_f32 v{t}, v{t}
s_nop 0
v_add_f32 v{t}, 1.0, v{t}
v_rcp_f32 v{t}, v{t}
s_nop 0
v_mul_f32 v{t}, v{t}, v{g}""")
        rbf(t, t)
        e(f"v_mul_f32 v{t}, v{t}, v{36+r}")
    e(f"""v_cvt_pk_bf16_f32 v16, v40, v41
v_cvt_pk_bf16_f32 v17, v42, v43
ds_write_b64 v26, v[16:17] offset:{HL}""")
    stamp(3)
    e(f"""v_lshrrev_b32 v8, 4, v0
v_bfe_u32 v10, v0, 2, 2
v_lshl_add_u32 v11, v8, 2, v10
v_lshl_add_u32 v10, v8, 3, v10
v_lshlrev_b32 v10, 7, v10
v_lshlrev_b32 v11, 7, v11
v_and_b32 v12, 3, v0
v_lshlrev_b32 v13, 3, v12
s_lshl_b32 s78, s56, 5
v_add3_u32 v10, v10, v13, s78
v_add3_u32 v11, v11, v13, s78
v_add_u32 v4, {WDT}, v10
v_add_u32 v5, {WDT+128*128}, v11
v_add_u32 v6, {WOT}, v10
v_add_u32 v100, {FT+16384}, v10
v_add_u32 v101, {FT+16384+128*128}, v11
v_add_u32 v102, {FT}, v10
v_mul_u32_u24 v13, 288, v12
v_lshl_add_u32 v7, v8, 3, v13
v_lshl_add_u32 v3, v8, 4, v13
v_lshlrev_b32 v12, 8, v12
v_lshl_add_u32 v30, v8, 4, v12
s_lshl_b32 s79, s56, 9
v_lshl_add_u32 v112, v0, 3, s79
v_and_b32 v113, 7, v0
v_lshlrev_b32 v113, {6 + mlw}, v113
s_lshl_b32 s79, s56, {4 + mlw}
v_add_u32 v113, s79, v113
s_lshl_b32 s88, s52, 14
s_add_u32 s88, s88, {PO}
s_add_u32 s89, s88, 4096
s_add_u32 s90, s88, 8192
s_add_u32 s91, s88, 12288
s_lshl_b32 s92, s52, {9 + mlw}
s_add_u32 s92, s92, {PM}
v_and_b32 v29, 15, v0
v_lshlrev_b32 v29, 4, v29
v_lshl_add_u32 v29, v8, 2, v29
s_lshl_b32 s79, s56, 8
v_add_u32 v29, s79, v29
v_lshlrev_b32 v114, 2, v0
s_lshl_b32 s93, s52, 10
s_add_u32 s93, s93, s79
s_add_u32 s93, s93, {YW}
s_add_u32 s87, s93, {8*32768}
s_lshl_b32 s79, s53, 15
s_add_u32 s93, s93, s79
s_movk_i32 s82, 0xff
v_add_u32 v103, s94, v0
v_add_u32 v104, 64, v103
s_lshl_b32 s79, s56, 6
v_add_u32 v115, s79, v103""")
    for r in list(range(24, 28)) + list(range(116, 120)):
        e(f"v_mov_b32 v{r}, 0")
    e("s_waitcnt vmcnt(0) lgkmcnt(0)")
    if trig:
        e(f"""v_mov_b32 v8, {CNT}
s_mov_b32 s83, {spin}
L_wtr:
s_sleep 2
ds_read_b32 v9, v8 offset:12
s_sub_u32 s83, s83, 1
s_cbranch_scc1 L_wtr_ok
s_waitcnt lgkmcnt(0)
v_cmp_eq_u32 vcc, 0, v9
s_cbranch_vccnz L_wtr
L_wtr_ok:""")
        all_proj(True)
    e(f"""s_mov_b32 s83, {spin}
s_barrier""")
    stamp(5)
    if notail:
        e("s_barrier\ns_branch L_done")
    P = [10 + 2 * s if s < 7 else 120 for s in range(8)]
    def gather(first):
        e("buffer_load_dwordx4 v[124:127], v113, s[44:47], s92 offen sc1")
        for s in range(8):
            if not first:
                e(f"s_bitcmp1_b32 s86, {s}\ns_cbranch_scc1 L_g{s}")
            e(f"buffer_load_dwordx2 v[{P[s]}:{P[s]+1}], v112, s[44:47], s{88+s//2} offen offset:{2048*(s&1)} sc1")
            if not first:
                e(f"L_g{s}:")
    def hid_frags():
        for s in range(4):
            e(f"ds_read_b128 v[{48+4*s}:{51+4*s}], v3 offset:{HL+64*s}")
        e(f"ds_read_b64 v[66:67], v7 offset:{HL+256}")
    def wd_frags(va, vb):
        for s in range(4):
            e(f"ds_read_b64_tr_b16 v[{32+4*s}:{33+4*s}], v{va} offset:{4096*s}")
            e(f"ds_read_b64_tr_b16 v[{34+4*s}:{35+4*s}], v{va} offset:{4096*s+512}")
        e(f"ds_read_b64_tr_b16 v[64:65], v{vb}")
    def down_mfma(acc):
        for s in range(4):
            e(f"v_mfma_f32_16x16x32_bf16 v[{acc}:{acc+3}], v[{48+4*s}:{51+4*s}], v[{32+4*s}:{35+4*s}], v[{acc}:{acc+3}]")
        e(f"s_nop 5\nv_mfma_f32_16x16x16_bf16 v[{acc}:{acc+3}], v[66:67], v[64:65], v[{acc}:{acc+3}]")
    def wo_frags(vo, wob):
        for s in range(4):
            e(f"ds_read_b64_tr_b16 v[{wob+4*s}:{wob+1+4*s}], v{vo} offset:{4096*s}")
            e(f"ds_read_b64_tr_b16 v[{wob+2+4*s}:{wob+3+4*s}], v{vo} offset:{4096*s+512}")
    def down_all(tag):
        wd_frags(4, 5)
        e("s_waitcnt lgkmcnt(0)")
        down_mfma(24)
        if defer != 2:
            wo_frags(6, 68)
        e(f"s_cmp_eq_u32 s98, 0\ns_cbranch_scc1 L_dn{tag}\ns_waitcnt lgkmcnt(0)")
        wd_frags(100, 101)
        e("s_waitcnt lgkmcnt(0)")
        down_mfma(116)
        if defer != 2:
            wo_frags(102, 84)
        e(f"L_dn{tag}:")
    gather(True)
    if defer and not trig:
        all_proj(True)
    hid_frags()
    if defer != 1:
        down_all(0)
    e("s_branch L_h1\nL_h1_again:\ns_mov_b32 s86, 0")
    for s in range(8):
        e(f"""v_xor_b32 v122, v103, v{P[s]}
v_bitop3_b32 v122, v122, v{P[s]+1}, v104 {OR_XOR}
v_and_b32 v122, 0xff, v122
v_cmp_ne_u32 vcc, 0, v122
s_cmp_eq_u64 vcc, 0
s_cselect_b32 s84, {1 << s}, 0
s_or_b32 s86, s86, s84""")
    gather(False)
    e("""L_h1:
s_sub_u32 s83, s83, 1
s_cbranch_scc1 L_h1_done
s_waitcnt vmcnt(0)
v_xor_b32 v122, v103, v10
v_xor_b32 v123, v104, v11""")
    for r in list(range(12, 24)) + [120, 121]:
        e(f"v_bitop3_b32 v{122+(r&1)}, v{122+(r&1)}, v{r}, v{103+(r&1)} {OR_XOR}")
    e(f"""v_or_b32 v122, v122, v123
v_and_b32 v122, 0xff, v122
v_bitop3_b32 v122, v122, v126, s94 {OR_XOR}
v_bitop3_b32 v122, v122, v127, s94 {OR_XOR}
v_mov_b32 v8, v124
v_mov_b32 v9, v125
v_cmp_ne_u32 vcc, 0, v122
s_cbranch_vccnz L_h1_again
L_h1_done:
s_movk_i32 s84, 0xff00""")
    stamp(6)
    W = [f"v_and_b32 v{r}, s84, v{r}" for r in list(range(10, 24)) + [120, 121]]
    nl = "\n"
    e(f"""v_max_f32_dpp v122, v8, v8 quad_perm:[1,0,3,2] {DP}
{nl.join(W[0:3])}
v_max_f32_dpp v122, v122, v122 quad_perm:[2,3,0,1] {DP}
{nl.join(W[3:6])}
v_max_f32_dpp v122, v122, v122 row_half_mirror {DP}
v_sub_f32 v8, v8, v122
v_mul_f32 v8, s85, v8
v_exp_f32 v8, v8
{nl.join(W[6:11])}
v_mul_f32 v9, v9, v8
{nl.join(W[11:16])}
v_mul_f32_dpp v122, v8, v10 row_newbcast:0 {DP}
v_add_f32_dpp v9, v9, v9 quad_perm:[1,0,3,2] {DP}
v_mul_f32_dpp v123, v8, v11 row_newbcast:0 {DP}
v_fmac_f32_dpp v122, v8, v12 row_newbcast:1 {DP}
v_add_f32_dpp v9, v9, v9 quad_perm:[2,3,0,1] {DP}
v_fmac_f32_dpp v123, v8, v13 row_newbcast:1 {DP}
v_fmac_f32_dpp v122, v8, v14 row_newbcast:2 {DP}
v_add_f32_dpp v9, v9, v9 row_half_mirror {DP}
v_fmac_f32_dpp v123, v8, v15 row_newbcast:2 {DP}
v_rcp_f32 v9, v9""")
    for s in range(3, 8):
        e(f"v_fmac_f32_dpp v122, v8, v{P[s]} row_newbcast:{s} {DP}")
        e(f"v_fmac_f32_dpp v123, v8, v{P[s]+1} row_newbcast:{s} {DP}")
    e(f"""v_mul_f32 v122, v122, v9
v_mul_f32 v123, v123, v9
v_cvt_pk_bf16_f32 v122, v122, v123
ds_write_b32 v29, v122 offset:{OL}
s_waitcnt lgkmcnt(0)
s_barrier""")
    OF = 8 if defer else 48
    for s in range(4):
        e(f"ds_read_b128 v[{OF+4*s}:{OF+3+4*s}], v30 offset:{OL+64*s}")
    if defer == 1:
        down_all(1)
        e("s_waitcnt lgkmcnt(0)")
    if defer == 2:
        wo_frags(6, 68)
        e("s_cmp_eq_u32 s98, 0\ns_cbranch_scc1 L_wf\ns_waitcnt lgkmcnt(0)")
        wo_frags(102, 84)
        e("L_wf:\ns_waitcnt lgkmcnt(0)")
    for s in range(4):
        if not defer:
            e(f"s_waitcnt lgkmcnt({3-s})")
        e(f"v_mfma_f32_16x16x32_bf16 v[24:27], v[{OF+4*s}:{OF+3+4*s}], v[{68+4*s}:{71+4*s}], v[24:27]")
    e("s_cmp_eq_u32 s98, 0\ns_cbranch_scc1 L_y1")
    for s in range(4):
        e(f"v_mfma_f32_16x16x32_bf16 v[116:119], v[{OF+4*s}:{OF+3+4*s}], v[{84+4*s}:{87+4*s}], v[116:119]")
    e("s_nop 7")
    pick_batch(116, 116)
    e("""v_bfi_b32 v116, s82, v115, v116
buffer_store_dword v116, v114, s[44:47], s87 offen sc1
L_y1:
s_nop 7""")
    pick_batch(24, 24)
    e("""v_bfi_b32 v24, s82, v115, v24
buffer_store_dword v24, v114, s[44:47], s93 offen sc1
L_done:
s_mov_b64 exec, -1""")
    if stamps:
        e("s_waitcnt vmcnt(0)")
        stamp(7)
        e(f"""s_lshl_b32 s78, s2, {2 if bare & 8 else 3}
s_add_u32 s78, s78, s3
s_lshl_b32 s78, s78, 6
s_add_u32 s78, s78, {STAMP}
s_getreg_b32 s79, hwreg(HW_REG_XCC_ID, 0, 4)
v_mov_b32 v1, s78""")
        for k in range(8):
            e(f"v_mov_b32 v{4+k}, s{60+2*k}")
        e("""v_mov_b32 v12, s97
v_mov_b32 v13, s79
global_store_dwordx4 v1, v[4:7], s[26:27]
global_store_dwordx4 v1, v[8:11], s[26:27] offset:16
global_store_dwordx2 v1, v[12:13], s[26:27] offset:32""")
    e(f"""L_end:
s_endpgm
.section .rodata,"a"
.p2align 6
.amdhsa_kernel {KN}
  .amdhsa_next_free_vgpr {NV}
  .amdhsa_next_free_sgpr 100
  .amdhsa_accum_offset {(NV+3)//4*4}
  .amdhsa_group_segment_fixed_size 0
  .amdhsa_kernarg_size 96
  .amdhsa_user_sgpr_count 2
  .amdhsa_user_sgpr_kernarg_segment_ptr 1
  .amdhsa_system_sgpr_workgroup_id_x 1
  .amdhsa_float_denorm_mode_32 3
.end_amdhsa_kernel""")
    out = []
    for ln in e.o:
        if ln.rstrip().endswith(" sc1") and "buffer_store" in ln:
            ln = ln.rstrip()[:-3] + stf
        elif ln.rstrip().endswith(" sc1") and "buffer_load" in ln:
            ln = ln.rstrip()[:-3] + ldf
        out.append(ln)
    e.o = out
    e.o = [ln.rstrip().rstrip(";").rstrip() if not ln.lstrip().startswith(";") else ln for ln in e.o]
    txt = e.text()
    first, rest = txt.split("\n", 1)
    return HEADER + first + "\n" + DOC + rest

if __name__ == "__main__":
    kw = eval("dict(%s)" % (sys.argv[1] if len(sys.argv) > 1 else ""))
    sys.stdout.write(gen(**kw))
```

```python
import sys
KN = "parallel_sum__mha_block_cached__geglu_ffn__decode_kernel"

PO = 0x20000
PM = 0xA0000
YW = 0xB0000
QW = 0x100000
GU = 0x180000
CW = 0x1A8000
SCW = 0x200000
EW = 0x600000
WS_SIZE = 0x600080
STAMP = 0x700000
XN = 0; HL = 5632; OL = 6912; CNT = 7936; QL = 8192
FT = 12288; WOT = 86016; WDT = 102400
SCL = 120832
LDS_SIZE = 129024

LOG2E = 0x3fb8aa3b
SCALE = 0x3db504f3
DP = "row_mask:0xf bank_mask:0xf"
OR_XOR = "bitop3:0xf6"

HEADER = """; Kernarg layout for this problem (96 bytes, ptrs only, base s[0:1]):
"""

DOC = """;
;
"""

class A:
    def __init__(self):
        self.o = []
    def __call__(self, s):
        for ln in s.strip("\n").split("\n"):
            ln = ln.strip()
            if ln:
                self.o.append(ln if ln.endswith(":") or ln.startswith((".", ";")) else "    " + ln)
    def text(self):
        return "\n".join(self.o) + "\n"

def gen(R=4, S=24, v2=26, v4=0, k4=0, wflag="nt", kvflag="nt", stamps=0, spin=1 << 20, svcprio=1, svc0=3,
        bal=1, noq=0, notail=0, pj0=2, swz=1, mlw=3, stf="sc1", ldf="sc1", nopub=0, SE=28, one=4, c2=1, hs=0, orc=None, sp=0, now=0, order=1, pf=0, st2=0, lc=0, vw=24, kw=24, hm=0, qa=0, qm=0, qk=0, rot=0, alt=0, lay=1, mix=0, mul=1, pubf="sc1 ", scf="sc1 "):
    hsleep = defer = trig = bare = 0
    eearly = 1
    e = A()
    PM = 0xA0000 if mlw == 0 else 0x120000
    S1 = S2 = S
    if SE is None:
        SE = S
    LIMS = (128 - 4 * SE, 128 - 4 * S)
    if c2:
        LIMS = (128 - 2 * SE - 2 * S,) * 2
    if c2:
        CLS = """s_bfe_u32 s50, s48, 0x10001
s_lshr_b32 s51, s48, 2
s_lshl_b32 s51, s51, 1
s_and_b32 s92, s48, 1
s_add_u32 s51, s51, s92"""
    else:
        CLS = "s_and_b32 s50, s48, 1\ns_lshr_b32 s51, s48, 1"
    if orc is not None:
        CLS = f"""s_lshr_b32 s50, s48, 2
s_xor_b32 s50, s50, s49
s_xor_b32 s50, s50, {orc}
s_and_b32 s50, s50, 1
s_and_b32 s51, s48, 3"""
    assert S % 2 == 0 and R % 2 == 0 and S > 2 * R + 2
    LIM1 = 128 - 4 * S1
    LIM2 = 128 - 4 * S2
    def stamp(k):
        if stamps and not (bare & 16 and k in (1, 3, 4, 6)):
            e(f"s_memrealtime s[{60+2*k}:{61+2*k}]\ns_waitcnt lgkmcnt(0)")
    KB = 32
    SB = KB + R * 32
    NV = (SB + R + 3) // 4 * 4
    e(f"; @launch grid=(256,1,1) block=({256 if bare & 8 else 512},1,1) lds={LDS_SIZE}")
    e(f""".amdgcn_target "amdgcn-amd-amdhsa--gfx950"
.text
.globl {KN}
.p2align 8
.type {KN},@function
{KN}:
s_cmp_ge_u32 s2, 256
s_cbranch_scc1 L_end
s_load_dwordx16 s[4:19], s[0:1], 0
s_load_dwordx8 s[20:27], s[0:1], 64""")
    if pf:
        e(f"""; ---- wave 0 reads 1 KB of this kernel's own code (part id>>3), so that later instruction fetches find it in L2
s_getpc_b64 s[40:41]
L_pc:
s_sub_u32 s40, s40, L_pc-{KN}
s_subb_u32 s41, s41, 0
s_lshr_b32 s42, s2, 3
s_lshl_b32 s42, s42, 10
s_min_u32 s42, s42, L_code_end-{KN}-1024
v_lshl_add_u32 v2, v0, 4, s42
v_mov_b32 v3, s41
v_add_co_u32 v2, vcc, s40, v2
v_cmp_gt_u32 s[42:43], 64, v0
s_nop 0
v_addc_co_u32 v3, vcc, 0, v3, vcc
s_and_saveexec_b64 s[44:45], s[42:43]
s_cbranch_execz L_nopf
global_load_dwordx4 v[{SB}:{SB+3}], v[2:3], off
L_nopf:
s_mov_b64 exec, -1""")
    if stamps:
        for k in range(8):
            e(f"s_mov_b32 s{60+2*k}, 0")
        e("s_mov_b32 s97, 0")
    stamp(0)
    e("""v_lshrrev_b32 v1, 6, v0
v_and_b32 v0, 63, v0
v_readfirstlane_b32 s3, v1
s_and_b32 s48, s2, 7
s_lshr_b32 s49, s2, 3""")
    if hm:
        e(f"""s_mul_i32 s52, s48, {hm}
s_add_u32 s49, s49, s52
s_and_b32 s49, s49, 31
s_lshl_b32 s2, s49, 3
s_add_u32 s2, s2, s48""")
    if bal == 0:
        e("""s_and_b32 s52, s49, 3
s_lshl_b32 s53, s48, 2
s_add_u32 s52, s52, s53
s_lshr_b32 s53, s2, 5
s_add_u32 s96, s48, s53
s_and_b32 s96, s96, 7
s_cmp_eq_u32 s96, 7
s_cselect_b32 s98, 1, 0""")
    else:
        e("""s_bfe_u32 s52, s49, 0x20001
s_lshl_b32 s53, s48, 2
s_add_u32 s52, s52, s53
s_lshr_b32 s53, s49, 3
s_lshl_b32 s53, s53, 1
s_add_u32 s96, s48, s53
s_and_b32 s96, s96, 7
s_and_b32 s78, s49, 1
s_add_u32 s53, s53, s78
s_lshl_b32 s79, 1, s96
s_and_b32 s79, s79, 0x90
s_cselect_b32 s98, 1, 0
s_andn2_b32 s98, s98, s78""")
    e(f"""v_lshlrev_b32 v1, 4, v0
s_mov_b32 s85, {LOG2E}
v_mov_b32 v8, {CNT}
v_mov_b32 v10, 0
v_mov_b32 v11, 0
v_mov_b32 v12, 0
v_mov_b32 v13, 0
s_cmp_lg_u32 s3, 0
s_cbranch_scc1 L_b0
ds_write_b128 v8, v[10:13]
ds_write_b128 v8, v[10:13] offset:16
L_b0:
s_waitcnt lgkmcnt(0)
s_mov_b32 s94, {EW}
{"" if bare & 2 else "s_load_dword s94, s[26:27], s94"}
s_mov_b32 s44, s26
s_mov_b32 s45, s27
s_mov_b32 s46, {WS_SIZE}
s_mov_b32 s47, 0x20000
s_cmp_ge_u32 s3, 4
s_cbranch_scc1 L_svc""")

    e(f"""s_mul_i32 s56, s3, {hs}
s_add_u32 s49, s49, s56
s_and_b32 s49, s49, 31
s_lshl_b32 s18, s49, 3
s_add_u32 s18, s18, s48
s_add_u32 s56, s3, s48
s_and_b32 s56, s56, 3
s_lshl_b32 s58, s56, 5
s_add_u32 s58, s58, s49
s_lshl_b32 s59, s58, 21
s_add_u32 s28, s6, s59
s_addc_u32 s29, s7, 0
s_mov_b32 s30, {2<<20}
s_mov_b32 s31, 0x20000
s_add_u32 s32, s8, s59
s_addc_u32 s33, s9, 0
{CLS}
s_lshl_b32 s54, s50, 13
s_mul_i32 s82, s58, {rot}
s_and_b32 s82, s82, 127
s_lshl_b32 s82, s82, 14
s_lshl_b32 s34, s58, 14
s_add_u32 s34, s34, {SCW}
s_lshl_b32 s58, s58, 7
s_add_u32 s58, s58, {CW}
s_add_u32 s36, s26, s58
s_addc_u32 s37, s27, 0
s_lshl_b32 s35, s3, 11
s_add_u32 s35, s35, {SCL}
""")
    if lay:
        e(f"""v_bfe_u32 v3, v0, 4, 1
v_lshlrev_b32 v3, {16 if lay == 2 else 15}, v3
v_bfe_u32 v2, v0, 5, 1
v_lshl_or_b32 v3, v2, 8, v3
v_and_b32 v2, 15, v0
v_lshl_or_b32 v2, v2, 4, v3""")
    else:
        e("v_add_u32 v2, 4096, v1")
    e("s_barrier")
    def baddr(src):
        if not lay:
            return f"s_lshl_b32 s76, {src}, 14\ns_add_u32 s76, s76, s54"
        if lay == 2:
            return f"""s_lshr_b32 s76, {src}, 3
s_lshl_b32 s76, s76, 17
s_and_b32 s92, {src}, 1
s_lshl_b32 s92, s92, 12
s_add_u32 s76, s76, s92
s_and_b32 s92, {src}, 6
s_lshl_b32 s92, s92, 13
s_add_u32 s76, s76, s92
s_add_u32 s76, s76, s54"""
        if lay == 3:
            return f"""s_lshr_b32 s76, {src}, 3
s_lshl_b32 s76, s76, 17
s_and_b32 s92, {src}, 1
s_lshl_b32 s92, s92, 14
s_add_u32 s76, s76, s92
s_and_b32 s92, {src}, 2
s_lshl_b32 s92, s92, 15
s_add_u32 s76, s76, s92
s_and_b32 s92, {src}, 4
s_lshl_b32 s92, s92, 10
s_add_u32 s76, s76, s92
s_add_u32 s76, s76, s54"""
        return f"""s_lshr_b32 s76, {src}, 2
s_lshl_b32 s76, s76, 16
s_and_b32 s92, {src}, 1
s_lshl_b32 s92, s92, 12
s_add_u32 s76, s76, s92
s_and_b32 s92, {src}, 2
s_lshl_b32 s92, s92, 13
s_add_u32 s76, s76, s92
s_add_u32 s76, s76, s54"""
    def issue(u):
        if rot:
            e("s_add_u32 s76, s76, s82\ns_and_b32 s76, s76, 0x1fffff")
        for j in range(8):
            r = KB + u * 32 + j * 4
            if lay:
                e(f"buffer_load_dwordx4 v[{r}:{r+3}], v2, s[28:31], s76 offen offset:{j*512} {kvflag}")
            else:
                e(f"buffer_load_dwordx4 v[{r}:{r+3}], v{1 + (j >> 2)}, s[28:31], s76 offen offset:{(j&3)*1024} {kvflag}")
    if mix:
        snext = """s_add_u32 s76, s51, s48
s_and_b32 s76, s76, 7
s_lshl_b32 s92, s51, 3
s_add_u32 s76, s76, s92
s_lshl_b32 s76, s76, 13
s_add_u32 s51, s51, 1"""
    else:
        snext = baddr("s51") + "\n" + ("s_bitcmp1_b32 s51, 0\ns_cselect_b32 s92, 7, 1\ns_add_u32 s51, s51, s92" if alt else "s_add_u32 s51, s51, 4")
    for u in range(R):
        e(snext + f"\ns_add_u32 s{10+u}, s35, {64*u}")
        issue(u)
    stamp(1)
    e(f"""s_lshl_b32 s78, s56, 2
v_mov_b32 v9, s78
v_and_b32 v3, 15, v0
v_lshlrev_b32 v3, 4, v3
s_lshl_b32 s78, s56, 8
v_add_u32 v3, s78, v3
s_mov_b32 s83, {spin}
L_qw:
ds_read_b32 v8, v9 offset:{CNT+16}
ds_read_b128 v[4:7], v3 offset:{QL}
s_sub_u32 s83, s83, 1
s_cbranch_scc1 L_q_ok
s_waitcnt lgkmcnt(0)
v_cmp_eq_u32 vcc, 0, v8
{"" if noq else "s_cbranch_vccnz L_qw"}
L_q_ok:
s_waitcnt lgkmcnt(0)
s_add_u32 s94, s94, 1""")
    stamp(3)
    for r in range(8, 16):
        e(f"v_mov_b32 v{r}, 0")
    e(f"""v_mov_b32 v16, 0xff7fffff
v_mov_b32 v17, 0
s_mov_b32 s84, {SCALE}
s_mov_b32 s86, 0xffff0000
v_and_b32 v28, 0x3c, v0
v_lshlrev_b32 v3, 1, v28
v_lshrrev_b32 v30, 1, v0
v_lshlrev_b32 v30, 2, v30
v_and_b32 v31, 1, v0
v_add_lshl_u32 v30, v30, v31, 2
v_lshlrev_b32 v31, 2, v0
s_mov_b32 s87, {R}
s_mov_b32 s88, {R}
s_mov_b32 s77, 0
s_mov_b32 s55, 0
s_mov_b32 s89, 0
{"s_lshr_b32 s17, s48, 2" if orc is None else "s_bfe_u32 s17, s48, 0x10001"}
s_add_u32 s17, s17, {4*S}
s_bitcmp0_b32 s48, 0
s_cselect_b32 s14, {SE}, {S}
s_cmp_eq_u32 s50, 0
s_cselect_b32 s15, {LIMS[0]}, {LIMS[1]}
s_cselect_b32 s16, {LIMS[1]}, {LIMS[0]}
s_mov_b32 s80, 0xaaaaaaaa
s_mov_b32 s81, 0xaaaaaaaa
s_mov_b32 s83, {spin}""")
    def boundary_out(ph, u, have, none):
        S = (S1, S2)[ph]; LIM = (LIM1, LIM2)[ph]
        nm = f"{ph}{have}"
        e(f"""L_need{nm}:
s_cmp_ge_u32 s87, s14
s_cbranch_scc1 L_dyn{nm}
{snext}
s_lshl_b32 s42, s87, 6
s_add_u32 s42, s42, s35
s_add_u32 s87, s87, 1""")
        if c2:
            e(f"""s_cmp_lt_u32 s87, {S}
s_cselect_b32 s92, 0, 2
s_sub_u32 s51, s51, s92
s_cmp_eq_u32 s87, {S}
s_cselect_b32 s51, s17, s51""")
        if ph == 0:
            e(f"""s_cmp_lg_u32 s87, s14
s_cbranch_scc1 {have}_go
v_mov_b32 v26, {CNT}
v_mov_b32 v27, 1
ds_write_b32 v26, v27 offset:8""")
        else:
            e(f"""s_cmp_lg_u32 s87, {2*R+1}
s_cbranch_scc1 {have}_go
s_mov_b32 s90, 0x10000
s_atomic_add s90, s[36:37], 8""")
        e(f"s_branch {have}_go\nL_dyn{nm}:")
        if LIM == 0:
            e(f"s_branch {none}")
            return
        e(f"""L_early{nm}:
s_sub_u32 s83, s83, 1
s_cbranch_scc1 {none}""")
        if qa and (ph == 1 or qk):
            e(f"s_cmp_ge_u32 s55, s99\ns_cbranch_scc1 {none}")
        if ph == 0:
            e(f"s_cmp_lt_u32 s55, {k4}\ns_cselect_b32 s95, 4, 2")
        else:
            e(f"s_add_u32 s92, s55, {one}\ns_cmp_lt_u32 s92, s15\ns_cselect_b32 s95, 2, 1")
            if v4:
                e(f"s_cmp_lt_u32 s55, {v4}\ns_cselect_b32 s95, 4, s95")
        e(f"""s_lshl_b32 s93, s50, 3
s_lshl_b32 s90, s95, s93
s_mov_b32 s91, 0
s_atomic_add_x2 s[90:91], s[36:37], {8*ph} glc
s_waitcnt lgkmcnt(0)
s_cmp_lg_u32 s91, s94
s_cbranch_scc1 L_early{nm}
s_lshr_b32 s55, s90, s93
s_and_b32 s55, s55, 0xff
s_cmp_lt_u32 s55, s15
s_cbranch_scc1 L_got{nm}
s_cmp_eq_u32 s89, 1
s_cbranch_scc1 {none}
s_xor_b32 s93, s93, 8
s_lshr_b32 s55, s90, s93
s_and_b32 s55, s55, 0xff
s_cmp_ge_u32 s55, s16
s_cbranch_scc1 {none}
s_mov_b32 s15, s16
s_mov_b32 s89, 1
s_xor_b32 s50, s50, 1
s_xor_b32 s54, s54, 0x2000
s_branch L_early{nm}
L_got{nm}:""")
        if qa and (ph == 1 or qk):
            e(f"""s_cmp_ge_u32 s55, {qa}
s_cselect_b32 s92, {LIM - qm}, -1
s_cmp_eq_u32 s99, -2
s_cselect_b32 s99, s92, s99""")
        if ph == 1 and not nopub:
            e(f"""L_vd{nm}:
s_lshr_b32 s92, s90, 16
s_cmp_ge_u32 s92, 8
s_cbranch_scc1 L_vok{nm}
s_sub_u32 s83, s83, 1
s_cbranch_scc1 L_vok{nm}
s_mov_b32 s90, 0
s_atomic_add s90, s[36:37], 8 glc
s_waitcnt lgkmcnt(0)
s_branch L_vd{nm}
L_vok{nm}:""")
        e(f"""s_sub_u32 s77, s15, s55
s_sub_u32 s57, 128, s77
s_min_u32 s77, s77, s95
s_add_u32 s55, s55, s95""")
        if stamps:
            e(f"s_lshl_b32 s92, s77, {16*ph}\ns_add_u32 s97, s97, s92")
        e(f"s_branch {have}")
    def boundary_in(ph, have):
        e(f"""s_cmp_eq_u32 s77, 0
s_cbranch_scc1 L_need{ph}{have}
{have}:
s_sub_u32 s77, s77, 1
{baddr("s57")}
s_lshr_b32 s42, s57, 1
s_lshl_b32 s42, s42, 8
s_lshr_b32 s92, s54, 6
s_add_u32 s42, s42, s92
s_and_b32 s92, s57, 1
s_lshl_b32 s92, s92, {2*ph}
s_and_b32 s92, s92, 4
s_add_u32 s42, s42, s92
s_add_u32 s42, s42, s34
s_add_u32 s57, s57, 1
{have}_go:""")
    nf = [0]
    def score_fetch(u):
        n = nf[0]; nf[0] += 1
        r = SB + u
        e(f"""s_cmp_ge_u32 s42, {SCW}
s_cbranch_scc1 L_sf{n}
v_add_u32 v26, s42, v28
ds_read_b32 v{r}, v26
s_branch L_sg{n}
L_sf{n}:
{"" if nopub & 2 else f"buffer_load_dword v{r}, v3, s[44:47], s42 offen {scf};"}
L_sg{n}:""")
    def kstep(u, nextv):
        k = KB + u * 32
        e(f"s_waitcnt vmcnt({kw})")
        for j in range(8):
            e(f"v_dot2_f32_bf16 v{18+j}, v{k+4*j}, v4, 0")
        for i in range(1, 4):
            for j in range(8):
                e(f"v_dot2c_f32_bf16 v{18+j}, v{k+4*j+i}, v{4+i}")
        e(f"s_mov_b32 s43, s{10+u}")
        if nextv:
            score_fetch(u)
        else:
            e(f"s_mov_b32 s{10+u}, s42")
        issue(u)
        n = nf[0]; nf[0] += 1
        e(f"""v_add_f32_dpp v26, v18, v18 row_ror:8 row_mask:0xf bank_mask:0x3
v_add_f32_dpp v27, v20, v20 row_ror:8 row_mask:0xf bank_mask:0x3
v_add_f32_dpp v26, v19, v19 row_ror:8 row_mask:0xf bank_mask:0xc
v_add_f32_dpp v27, v21, v21 row_ror:8 row_mask:0xf bank_mask:0xc
v_add_f32_dpp v20, v22, v22 row_ror:8 row_mask:0xf bank_mask:0x3
v_add_f32_dpp v21, v24, v24 row_ror:8 row_mask:0xf bank_mask:0x3
v_add_f32_dpp v20, v23, v23 row_ror:8 row_mask:0xf bank_mask:0xc
v_add_f32_dpp v21, v25, v25 row_ror:8 row_mask:0xf bank_mask:0xc
v_add_f32_dpp v18, v26, v26 row_half_mirror row_mask:0xf bank_mask:0x5
v_add_f32_dpp v18, v27, v27 row_half_mirror row_mask:0xf bank_mask:0xa
v_add_f32_dpp v19, v20, v20 row_half_mirror row_mask:0xf bank_mask:0x5
v_add_f32_dpp v19, v21, v21 row_half_mirror row_mask:0xf bank_mask:0xa
s_nop 0
v_add_f32_dpp v18, v18, v18 quad_perm:[1,0,3,2] {DP}
v_add_f32_dpp v19, v19, v19 quad_perm:[1,0,3,2] {DP}
s_nop 0
v_add_f32_dpp v18, v18, v18 quad_perm:[2,3,0,1] {DP}
v_add_f32_dpp v19, v19, v19 quad_perm:[2,3,0,1] {DP}
v_cvt_pk_bf16_f32 v18, v18, v19
v_lshlrev_b32 v20, 16, v18
v_and_b32 v21, s86, v18
v_mul_f32 v20, s84, v20
v_mul_f32 v21, s84, v21
v_cvt_pk_bf16_f32 v18, v20, v21
s_cmp_ge_u32 s43, {SCW}
s_cbranch_scc1 L_pub{n}
v_add_u32 v26, s43, v28
ds_write_b32 v26, v18
s_branch L_pe{n}
L_pub{n}:""")
        if u % 2 == 0:
            e("v_mov_b32 v29, v18")
        else:
            e(f"""v_cndmask_b32 v18, v29, v18, s[80:81]
ds_bpermute_b32 v19, v30, v18
s_mov_b64 exec, 0xffffffff
s_waitcnt lgkmcnt(0)
{"" if nopub & 1 else f"buffer_store_dword v19, v31, s[44:47], s43 offen {pubf};"}
s_mov_b64 exec, -1""")
        e(f"L_pe{n}:")
    nw = [0]
    def vstep(u, last):
        v = KB + u * 32
        r = SB + u
        n = nw[0]; nw[0] += 1
        def wait(extra, tag, lg=""):
            if not last:
                e(f"s_waitcnt vmcnt({8*(R-1)+extra}){lg}")
                return
            for j in range(R - 1, 0, -1):
                e(f"s_cmp_lg_u32 s88, {j}\ns_cbranch_scc1 L_w{n}{tag}_{j}\ns_waitcnt vmcnt({8*j+extra}){lg}\ns_branch L_w{n}{tag}\nL_w{n}{tag}_{j}:")
            e(f"s_waitcnt vmcnt({extra}){lg}\nL_w{n}{tag}:")
        spl = sp == 1 or (sp == 2 and last)
        if not last and not spl:
            e(f"s_waitcnt vmcnt({vw}) lgkmcnt(0)")
        else:
            wait(8 if spl else 0, "a", " lgkmcnt(0)")
        e(f"""v_lshlrev_b32 v20, 16, v{r}
v_and_b32 v21, s86, v{r}
v_max_f32 v22, v20, v21
s_nop 1
v_max_f32_dpp v22, v22, v22 row_ror:8 {DP}
s_nop 1
v_max_f32_dpp v22, v22, v22 row_ror:4 {DP}
v_max_f32 v22, v16, v22
v_sub_f32 v20, v20, v22
v_sub_f32 v21, v21, v22
v_sub_f32 v24, v16, v22
v_mul_f32 v20, s85, v20
v_mul_f32 v21, s85, v21
v_mul_f32 v24, s85, v24
v_exp_f32 v20, v20
v_exp_f32 v21, v21
v_exp_f32 v24, v24
v_mov_b32 v16, v22
v_cvt_pk_bf16_f32 v18, v20, 0
v_cvt_pk_bf16_f32 v22, v21, 0
v_fma_f32 v17, v17, v24, v20
v_lshlrev_b32 v19, 16, v18
v_lshlrev_b32 v23, 16, v22
v_add_f32 v17, v17, v21""")
        for i in range(4):
            e(f"v_pk_mul_f32 v[{8+2*i}:{9+2*i}], v[{8+2*i}:{9+2*i}], v[24:25] op_sel_hi:[1,0]")
        for j in range(8):
            if spl and j in (0, 4):
                wait(4 - j, "bc"[j >> 2])
            ln = (0, 8, 4, 12)[j & 3]
            p = 18 + 4 * (j >> 2)
            for i in range(4):
                e(f"v_dot2c_f32_bf16_dpp v{8+2*i}, v{p}, v{v+4*j+i} row_newbcast:{ln} {DP}")
                e(f"v_dot2c_f32_bf16_dpp v{9+2*i}, v{p+1}, v{v+4*j+i} row_newbcast:{ln} {DP}")
        if not last:
            if lc:
                boundary_in(1, f"L_hc{u}")
            score_fetch(u)
            issue(u)
    late = []
    e("L_A0:")
    for u in range(R):
        if u:
            e(f"L_A{u}:")
        boundary_in(0, f"L_ha{u}")
        kstep(u, False)
    e("s_branch L_A0")
    for u in range(R):
        e(f"L_B{u}:")
        boundary_in(1, f"L_hb{u}")
        kstep(u, True)
        e(f"s_sub_u32 s88, s88, 1\ns_cmp_eq_u32 s88, 0\ns_cbranch_scc1 L_C{(u+1)%R}")
    e("s_branch L_B0")
    for u in range(R):
        e(f"L_C{u}:")
        if not lc:
            boundary_in(1, f"L_hc{u}")
        vstep(u, False)
    e("s_branch L_C0")
    for u in range(R):
        boundary_out(0, u, f"L_ha{u}", f"L_sw{u}")
        e(f"""L_sw{u}:
s_mov_b32 s28, s32
s_mov_b32 s29, s33
{CLS}
s_lshl_b32 s54, s50, 13
s_mov_b32 s87, 0
s_mov_b32 s55, 0
s_cmp_eq_u32 s50, 0
s_cselect_b32 s15, {LIMS[0]}, {LIMS[1]}
s_mov_b32 s89, 0""")
        stamp(6)
        e(f"s_branch L_B{u}")
        boundary_out(1, u, f"L_hb{u}", "L_never")
        boundary_out(1, u, f"L_hc{u}", f"L_dr{u}")
    e("L_never:\ns_branch L_sdone")
    for u in range(R):
        if lc:
            late.append(f"L_dr{u}:\ns_mov_b32 s88, {R-1}\ns_branch L_D{(u+1)%R}")
            e(f"L_D{u}:\ns_sub_u32 s88, s88, 1")
        else:
            e(f"L_dr{u}:\ns_mov_b32 s88, {R}\nL_D{u}:\ns_sub_u32 s88, s88, 1")
        vstep(u, True)
        e(f"s_cmp_eq_u32 s88, 0\ns_cbranch_scc1 L_sdone\ns_branch L_D{(u+1)%R}")
    for t in late:
        e(t)
    e("L_sdone:")
    stamp(5)
    e(f"""v_mov_b32 v18, v16
v_mov_b32 v19, v16
s_lshl_b32 s78, s18, 11
s_lshl_b32 s79, s56, 9
v_permlane16_swap_b32 v18, v19
s_add_u32 s78, s78, s79
v_max_f32 v18, v18, v19
v_mov_b32 v19, v18
s_add_u32 s78, s78, {PO}
s_lshl_b32 s79, s18, {6 + mlw}
v_permlane32_swap_b32 v18, v19
s_lshl_b32 s80, s56, {4 + mlw}
v_max_f32 v18, v18, v19
v_sub_f32 v20, v16, v18
v_mul_f32 v20, s85, v20
v_exp_f32 v20, v20
s_add_u32 s79, s79, s80
v_mul_f32 v17, v17, v20""")
    for r in range(8, 16):
        e(f"v_mul_f32 v{r}, v20, v{r}")
    e(f"""v_add_f32_dpp v17, v17, v17 row_ror:8 {DP}
s_add_u32 s79, s79, {PM}
v_permlane32_swap_b32 v8, v12
v_permlane32_swap_b32 v9, v13
v_add_f32_dpp v17, v17, v17 row_ror:4 {DP}
v_permlane32_swap_b32 v10, v14
v_permlane32_swap_b32 v11, v15
v_mov_b32 v19, v17
v_add_f32 v8, v8, v12
v_add_f32 v9, v9, v13
v_add_f32 v10, v10, v14
v_add_f32 v11, v11, v15
v_permlane16_swap_b32 v17, v19
v_add_u32 v20, s94, v0
v_permlane16_swap_b32 v8, v10
v_permlane16_swap_b32 v9, v11
v_add_f32 v17, v17, v19
v_add_f32 v8, v8, v10
v_mov_b32 v19, v17
v_add_f32 v9, v9, v11
s_movk_i32 s80, 0xff
v_permlane32_swap_b32 v17, v19
v_lshlrev_b32 v22, 3, v0
v_add_u32 v21, 64, v20
v_bfi_b32 v8, s80, v20, v8
v_bfi_b32 v9, s80, v21, v9
v_add_f32 v19, v17, v19
buffer_store_dwordx2 v[8:9], v22, s[44:47], s78 offen sc1
v_mov_b32 v20, s94
v_mov_b32 v21, s94
s_mov_b64 exec, {(1 << (1 << mlw)) - 1}
buffer_store_dwordx4 v[18:21], v1, s[44:47], s79 offen sc1
s_mov_b64 exec, -1
s_barrier""")
    e(f"""s_cmp_ge_u32 s3, {0 if notail else 2}
s_cbranch_scc1 L_bar_done
s_cmp_eq_u32 s3, 0
s_cbranch_scc1 L_red
s_cmp_eq_u32 s98, 0
s_cbranch_scc1 L_bar_done
s_mov_b32 s53, 8
L_red:
s_bfe_u32 s78, s52, 0x20001
s_mul_i32 s78, s78, 1152
s_lshr_b32 s79, s52, 3
s_lshl_b32 s79, s79, 5
s_add_u32 s78, s78, s79
s_and_b32 s79, s52, 1
s_lshl_b32 s79, s79, 4
s_add_u32 s78, s78, s79
s_lshl_b32 s79, s53, 7
s_add_u32 s78, s78, s79
v_and_b32 v9, 1, v0
v_lshlrev_b32 v10, 3, v9
s_mov_b32 s28, s4
s_mov_b32 s29, s5
s_mov_b32 s30, 4608
s_mov_b32 s31, 0x20000
buffer_load_dwordx2 v[16:17], v10, s[28:31], s78 offen
s_mov_b32 s40, s22
s_mov_b32 s41, s23
s_mov_b32 s42, 4608
s_mov_b32 s43, 0x20000
v_lshrrev_b32 v8, 1, v0
v_lshlrev_b32 v8, 10, v8
v_lshl_add_u32 v8, v9, 4, v8
s_lshl_b32 s79, s53, 15
s_lshl_b32 s80, s52, 5
s_add_u32 s79, s79, s80
s_add_u32 s79, s79, {YW}
s_lshl_b32 s80, s52, 3
s_add_u32 s80, s80, s94
v_lshl_add_u32 v24, v9, 2, s80
v_add_u32 v25, 1, v24
v_add_u32 v26, 2, v24
v_add_u32 v27, 3, v24
s_mov_b32 s83, {spin}
s_barrier
L_h2:
buffer_load_dwordx4 v[12:15], v8, s[44:47], s79 offen sc1
s_sub_u32 s83, s83, 1
s_cbranch_scc1 L_h2_done
s_waitcnt vmcnt(0)
v_xor_b32 v20, v24, v12
v_bitop3_b32 v20, v20, v13, v25 {OR_XOR}
v_bitop3_b32 v20, v20, v14, v26 {OR_XOR}
v_bitop3_b32 v20, v20, v15, v27 {OR_XOR}
v_and_b32 v20, 0xff, v20
s_nop 1
v_or_b32_dpp v20, v20, v20 quad_perm:[1,0,3,2] {DP}
v_cmp_ne_u32 vcc, 0, v20
s_and_b64 exec, exec, vcc
s_cbranch_execnz L_h2
L_h2_done:
s_mov_b64 exec, -1
s_waitcnt vmcnt(0)""")
    if eearly:
        e(f"""s_add_u32 s79, s2, s3
s_cmp_lg_u32 s79, 0
s_cbranch_scc1 L_noe
v_mov_b32 v24, s94
v_mov_b32 v25, {EW}
s_mov_b64 exec, 1
buffer_store_dword v24, v25, s[44:47], 0 offen
s_mov_b64 exec, -1
L_noe:""")
    e("s_movk_i32 s84, 0xff00")
    for r in range(12, 16):
        e(f"v_and_b32 v{r}, s84, v{r}")
    for dpp in ("quad_perm:[2,3,0,1]", "row_ror:4", "row_ror:8"):
        for r in range(12, 16):
            e(f"v_add_f32_dpp v{r}, v{r}, v{r} {dpp} {DP}")
    for sw in (16, 32):
        for r in range(4):
            e(f"v_mov_b32 v{20+r}, v{12+r}")
        for r in range(4):
            e(f"v_permlane{sw}_swap_b32 v{12+r}, v{20+r}")
        for r in range(4):
            e(f"v_add_f32 v{12+r}, v{12+r}, v{20+r}")
    e(f"""v_lshlrev_b32 v20, 16, v16
v_and_b32 v21, 0xffff0000, v16
v_lshlrev_b32 v22, 16, v17
v_and_b32 v23, 0xffff0000, v17
v_add_f32 v12, v12, v20
v_add_f32 v13, v13, v21
v_add_f32 v14, v14, v22
v_add_f32 v15, v15, v23
v_cvt_pk_bf16_f32 v12, v12, v13
v_cvt_pk_bf16_f32 v13, v14, v15
s_mov_b64 exec, 3
buffer_store_dwordx2 v[12:13], v10, s[40:43], s78 offen
s_add_u32 s78, s2, s3
s_cmp_lg_u32 s78, 0
{"s_branch L_done" if eearly else "s_cbranch_scc1 L_done"}
v_mov_b32 v12, s94
v_mov_b32 v13, {EW}
s_mov_b64 exec, 1
buffer_store_dword v12, v13, s[44:47], 0 offen sc1
s_branch L_done
L_bar_done:
s_barrier
s_branch L_done""")

    def srd(ptr, nbytes):
        e(f"s_mov_b32 s40, s{ptr}\ns_mov_b32 s41, s{ptr+1}\ns_mov_b32 s42, {0 if now & 2 else nbytes}\ns_mov_b32 s43, 0x20000")
    def dma(n_ins, step, ldsbase, vreg, alt=False):
        for n in range(n_ins):
            e(f"s_add_u32 m0, s79, {ldsbase + 1024*n}")
            e(f"s_add_u32 s78, s78, {step}" if n else "s_nop 0")
            e(f"buffer_load_dwordx4 v{vreg + (n & 1 if alt else 0)}, s[40:43], s78 offen {wflag} lds")
    def proj_tiles(stripe_sreg, wo_base, wd_base, late=False):
        e(f"s_lshl_b32 s81, s{stripe_sreg}, 7")
        if late or defer != 2:
            srd(12, 4096 * 1152)
            e(f"""s_mul_i32 s78, s52, {128*1152}
s_add_u32 s78, s78, s81
s_mul_i32 s79, s56, {32*1152}
s_add_u32 s78, s78, s79
s_lshl_b32 s79, s56, 12""")
            dma(4, 8 * 1152, wo_base, 31)
        if late and defer == 2:
            return
        srd(20, 4608 * 1152)
        e(f"""s_mul_i32 s78, s52, {144*1152}
s_add_u32 s78, s78, s81
s_mul_i32 s79, s57, {8*1152}
s_add_u32 s78, s78, s79
s_lshl_b32 s79, s57, 10""")
        dma(5, 8 * 1152, wd_base, 31)
    npj = [0]
    def all_proj(late=False):
        n = npj[0]; npj[0] += 1
        proj_tiles(53, WOT, WDT, late)
        e(f"s_cmp_eq_u32 s98, 0\ns_cbranch_scc1 L_pj{n}\ns_mov_b32 s80, 8")
        proj_tiles(80, FT, FT + 16384, late)
        e(f"L_pj{n}:")
    def pick_batch(d, a):
        e(f"""v_cndmask_b32 v{a}, v{a}, v{a+1}, s[38:39]
v_cndmask_b32 v{a+2}, v{a+2}, v{a+3}, s[38:39]
v_cndmask_b32 v{d}, v{a}, v{a+2}, s[58:59]""")
    tn = [0]
    def ticket_init():
        n = tn[0]; tn[0] += 1
        e(f"""s_cmp_lg_u32 s56, 3
s_cbranch_scc1 L_ti{n}
s_cmp_ge_u32 s2, 128
s_cbranch_scc1 L_ti{n}
v_mov_b32 v22, 0
v_mov_b32 v23, s94
v_lshlrev_b32 v24, 3, v0
s_mov_b64 exec, 0xffff
s_lshl_b32 s79, s2, 7
s_add_u32 s79, s79, {CW}
buffer_store_dwordx2 v[22:23], v24, s[44:47], s79 offen sc1
s_mov_b64 exec, -1
L_ti{n}:""")
    qn = [0]
    def qfetch():
        ticket_init()
        n = qn[0]; qn[0] += 1
        e(f"""v_lshrrev_b32 v14, 3, v0
v_lshlrev_b32 v14, 8, v14
v_and_b32 v15, 7, v0
v_lshl_add_u32 v14, v15, 3, v14
s_sub_u32 s89, s56, s48
s_and_b32 s89, s89, 3
s_mul_i32 s89, s89, {hs}
s_add_u32 s89, s89, s49
s_and_b32 s89, s89, 31
s_lshl_b32 s88, s56, 6
s_lshl_b32 s89, s89, 11
s_add_u32 s88, s88, s89
s_add_u32 s88, s88, {QW}
s_lshl_b32 s89, s56, 8
v_lshl_add_u32 v3, v0, 2, s89
s_lshl_b32 s89, s56, 2
v_mov_b32 v2, s89
s_lshl_b32 s89, s56, 4
s_add_u32 s89, s89, s94
v_lshl_add_u32 v18, v15, 1, s89
v_add_u32 v19, 1, v18
s_mov_b32 s83, {spin}
L_q_again{n}:
buffer_load_dwordx2 v[16:17], v14, s[44:47], s88 offen sc1
s_sub_u32 s83, s83, 1
s_cbranch_scc1 L_q_got{n}
s_waitcnt vmcnt(0)
v_xor_b32 v15, v18, v16
v_bitop3_b32 v15, v15, v17, v19 {OR_XOR}
v_and_b32 v15, 0xffff, v15
v_cmp_ne_u32 vcc, 0, v15
s_cbranch_vccnz L_q_again{n}
L_q_got{n}:
s_mov_b32 s89, 0x07060302
v_perm_b32 v16, v17, v16, s89
v_mov_b32 v15, 1
ds_write_b32 v3, v16 offset:{QL}
ds_write_b32 v2, v15 offset:{CNT+16}
s_setprio {svcprio}""")
        stamp(4)
    if bare & 1:
        e("L_svc:\ns_endpgm\nL_svc_x:")
    e(f"""{"" if bare & 1 else "L_svc:"}
s_setprio {svc0}
s_sub_u32 s56, s3, 4
s_mul_i32 s57, s56, 9
s_lshr_b32 s57, s57, 1
v_lshrrev_b32 v8, 3, v0
v_and_b32 v10, 7, v0
v_lshlrev_b32 v10, 4, v10
v_mul_u32_u24 v31, 1152, v8
v_add_u32 v31, v31, v10
s_mov_b32 s58, 0
s_mov_b32 s59, -1
s_sub_u32 s78, s96, 5
s_cmp_lt_u32 s78, 2
s_cbranch_scc1 L_tq
s_and_b32 s78, s49, 1
s_add_u32 s78, s78, 4
s_cmp_ge_u32 s96, s78
s_cbranch_scc1 L_notask
s_mul_i32 s80, s49, 9
s_lshr_b32 s80, s80, 1
s_add_u32 s80, s80, s96
s_lshl_b32 s51, s80, 10
s_add_u32 s51, s51, {GU}
s_cmp_ge_u32 s80, 72
s_cselect_b32 s40, s18, s16
s_cselect_b32 s41, s19, s17
s_cselect_b32 s78, 72, 0
s_mov_b32 s42, {0 if now & 1 else 576*9216}
s_sub_u32 s80, s80, s78
s_movk_i32 s50, 9216
s_branch L_task
L_tq:
s_lshl_b32 s80, s49, 1
s_add_u32 s80, s80, s78
s_lshl_b32 s51, s80, 10
s_add_u32 s51, s51, {QW}
s_mov_b32 s40, s10
s_mov_b32 s41, s11
s_mov_b32 s42, {576*8192}
s_movk_i32 s50, 8192
L_task:
s_mov_b32 s43, 0x20000
s_mul_i32 s36, s56, 1152
s_add_u32 s36, s4, s36
s_addc_u32 s37, s5, 0
s_mov_b32 s38, 1152
s_mov_b32 s39, 0x20000
v_lshlrev_b32 v7, 2, v0""")
    if st2 == 1:
        stamp(2)
    for j in range(5):
        e(f"buffer_load_dword v{2+j}, v7, s[36:39], 0 offen offset:{256*j}")
    if swz:
        e("""v_bfe_u32 v9, v0, 4, 1
v_lshlrev_b32 v9, 5, v9
v_xor_b32 v10, v10, v9""")
    e(f"""v_mul_u32_u24 v8, s50, v8
v_add_u32 v8, v8, v10
v_xor_b32 v9, 64, v8
s_lshl_b32 s78, s80, 7
s_mul_i32 s79, s56, 144
s_mul_i32 s79, s79, s50
s_add_u32 s78, s78, s79
s_lshl_b32 s82, s50, 3
s_lshl_b32 s79, s56, 8
s_add_u32 s51, s51, s79
s_mul_i32 s79, s56, {18*1024}""")
    dma(18, "s82", FT, 8, bool(swz))
    if pj0 == 1:
        proj_tiles(53, WOT, WDT)
    if st2 == 4:
        stamp(2)
    e("s_barrier")
    if pj0 == 2:
        proj_tiles(53, WOT, WDT)
    NPJ = 0 if not pj0 else (5 if defer == 2 else 9)
    NPX = 0 if pj0 == 3 else NPJ
    if st2 == 2:
        stamp(2)
    e(f"s_waitcnt vmcnt({18 + NPX})")
    if st2 == 3:
        stamp(2)
    def wave_sum(r, t):
        for k in (8, 4, 2, 1):
            e(f"s_nop 1\nv_add_f32_dpp v{r}, v{r}, v{r} row_ror:{k} {DP}")
        for sw in (16, 32):
            e(f"v_mov_b32 v{t}, v{r}\ns_nop 1\nv_permlane{sw}_swap_b32 v{r}, v{t}\ns_nop 0\nv_add_f32 v{r}, v{r}, v{t}")
    def rbf(d, s):
        e(f"v_cvt_pk_bf16_f32 v{d}, v{s}, v{s}\nv_and_b32 v{d}, 0xffff0000, v{d}")
    for j in range(5):
        e(f"v_lshlrev_b32 v{10+2*j}, 16, v{2+j}\nv_and_b32 v{11+2*j}, 0xffff0000, v{2+j}")
    e("v_add_f32 v20, v10, v11")
    for j in range(12, 20):
        e(f"v_add_f32 v20, v20, v{j}")
    wave_sum(20, 21)
    e("v_mul_f32 v20, 0x3ae38e39, v20")
    e("v_cmp_gt_u32 vcc, 32, v0")
    for j in range(10):
        e(f"v_sub_f32 v{22+j if j < 8 else 2+j-8}, v{10+j}, v20")
    e("v_cndmask_b32 v2, 0, v2, vcc\nv_cndmask_b32 v3, 0, v3, vcc")
    e("v_mul_f32 v21, v2, v2\nv_fmac_f32 v21, v3, v3")
    for j in range(8):
        e(f"v_fmac_f32 v21, v{22+j}, v{22+j}")
    wave_sum(21, 22)
    e("v_mul_f32 v21, 0x3ae38e39, v21")
    rbf(21, 21)
    e("v_add_f32 v21, 0x3727c5ac, v21")
    rbf(21, 21)
    e("v_sqrt_f32 v21, v21\ns_nop 0")
    rbf(21, 21)
    e("v_rcp_f32 v21, v21")
    rbf(20, 20)
    for j in range(10):
        e(f"v_sub_f32 v{10+j}, v{10+j}, v20")
    for j in range(5):
        e(f"v_cvt_pk_bf16_f32 v{2+j}, v{10+2*j}, v{11+2*j}")
    for j in range(5):
        e(f"v_lshlrev_b32 v{10+2*j}, 16, v{2+j}\nv_and_b32 v{11+2*j}, 0xffff0000, v{2+j}")
    for j in range(10):
        e(f"v_mul_f32 v{10+j}, v{10+j}, v21")
    for j in range(5):
        e(f"v_cvt_pk_bf16_f32 v{2+j}, v{10+2*j}, v{11+2*j}")
    e("s_mul_i32 s78, s56, 1152\nv_add_u32 v7, s78, v7")
    for j in range(4):
        e(f"ds_write_b32 v7, v{2+j} offset:{XN+256*j}")
    e(f"s_mov_b64 exec, 0xffffffff\nds_write_b32 v7, v6 offset:{XN+1024}\ns_mov_b64 exec, -1")
    if pj0 == 3:
        proj_tiles(53, WOT, WDT)
    e(f"""v_lshrrev_b32 v8, 4, v0
v_lshlrev_b32 v9, 4, v8
v_lshlrev_b32 v8, 3, v8
v_bfe_u32 v10, v0, 2, 2
v_add_u32 v8, v8, v10
v_lshlrev_b32 v8, 7, v8
v_and_b32 v10, 3, v0
v_lshl_add_u32 v8, v10, 3, v8
v_mul_u32_u24 v10, 1152, v10
v_add_u32 v9, v9, v10
s_lshl_b32 s78, s56, 5
v_bfe_u32 v14, v0, 3, 2
v_lshlrev_b32 v14, 5, v14
v_and_b32 v14, {0x60 if swz else 0}, v14
v_xor_b32 v14, s78, v14
v_add_u32 v11, {FT}, v8
v_add_u32 v11, v11, v14
v_add_u32 v12, {9*4096}, v11
v_lshlrev_b32 v13, 2, v0""")
    for r in range(16, 20):
        e(f"v_mov_b32 v{r}, 0")
    e(f"""v_mov_b32 v29, {CNT}
v_mov_b32 v30, 1
s_mov_b32 s83, {spin}
s_waitcnt vmcnt({NPJ}) lgkmcnt(0)
s_add_u32 s94, s94, 1
s_mov_b32 s38, 0xffff0000
s_mov_b32 s39, 0xffff0000
s_mov_b64 exec, 1
ds_add_u32 v29, v30
s_mov_b64 exec, -1
L_wxn:
ds_read_b32 v30, v29
s_sub_u32 s83, s83, 1
s_cbranch_scc1 L_wxn_ok
s_waitcnt lgkmcnt(0)
v_cmp_gt_u32 vcc, 4, v30
s_cbranch_vccnz L_wxn
L_wxn_ok:
s_waitcnt lgkmcnt(0)""")
    stamp(1)
    def rd(s):
        base = 32 + (s % 5) * 8
        e(f"ds_read_b128 v[{base}:{base+3}], v9 offset:{XN+64*s}")
        sg, so = divmod(s, 9)
        e(f"ds_read_b64_tr_b16 v[{base+4}:{base+5}], v{11+sg} offset:{4096*so}")
        e(f"ds_read_b64_tr_b16 v[{base+6}:{base+7}], v{11+sg} offset:{4096*so+512}")
    for s in range(4):
        rd(s)
    for s in range(18):
        e(f"s_waitcnt lgkmcnt({min(3, 17-s)*3})")
        base = 32 + (s % 5) * 8
        e(f"v_mfma_f32_16x16x32_bf16 v[16:19], v[{base}:{base+3}], v[{base+4}:{base+7}], v[16:19]")
        if s + 4 < 18:
            rd(s + 4)
    e("v_add_u32 v21, s94, v0\ns_mov_b32 s78, 0x07060100\ns_nop 5")
    pick_batch(20, 16)
    e("""v_cvt_pk_bf16_f32 v20, v20, v20
v_perm_b32 v20, v20, v21, s78
buffer_store_dword v20, v13, s[44:47], s51 offen sc1""")
    if not st2:
        stamp(2)
    qfetch()
    if not defer and not pj0:
        proj_tiles(53, WOT, WDT)
    e("s_branch L_tick\nL_notask:")
    if defer != 1:
        all_proj()
    e("s_barrier\ns_waitcnt lgkmcnt(0)\ns_add_u32 s94, s94, 1\ns_mov_b32 s38, 0xffff0000\ns_mov_b32 s39, 0xffff0000")
    qfetch()
    e("L_tick:")
    e(f"""L_gu:
v_min_u32 v8, 35, v0
v_lshrrev_b32 v9, 2, v8
v_lshlrev_b32 v9, 8, v9
v_and_b32 v24, 3, v8
s_lshl_b32 s78, s56, 4
s_add_u32 s78, s78, s94
v_lshl_add_u32 v44, v24, 2, s78
v_add_u32 v45, 1, v44
v_add_u32 v46, 2, v44
v_add_u32 v47, 3, v44
v_lshl_add_u32 v24, v24, 4, v9
v_lshlrev_b32 v26, 3, v8
s_mul_i32 s78, s56, 288
v_add_u32 v26, s78, v26
s_mul_i32 s78, s52, 2304
s_lshl_b32 s79, s56, 6
s_add_u32 s78, s78, s79
s_add_u32 s78, s78, {GU}
s_add_u32 s79, s78, 73728
v_mov_b32 v29, {CNT}
s_mov_b32 s83, {spin}
{"" if hsleep else "s_setprio 0"}
L_late:
{f"s_sleep {hsleep}" if hsleep else ""}
ds_read_b32 v30, v29 offset:8
s_sub_u32 s83, s83, 1
s_cbranch_scc1 L_late_ok
s_waitcnt lgkmcnt(0)
v_cmp_eq_u32 vcc, 0, v30
s_cbranch_vccnz L_late
L_late_ok:
s_setprio {svcprio}
s_waitcnt lgkmcnt(0)
s_mov_b32 s83, {spin}
L_ph:
buffer_load_dwordx4 v[32:35], v24, s[44:47], s78 offen sc1
buffer_load_dwordx4 v[36:39], v24, s[44:47], s79 offen sc1
s_sub_u32 s83, s83, 1
s_cbranch_scc1 L_ph_done
s_waitcnt vmcnt(0)
v_xor_b32 v8, v44, v32""")
    for r in range(33, 40):
        e(f"v_bitop3_b32 v8, v8, v{r}, v{44+(r&3)} {OR_XOR}")
    e("""v_and_b32 v8, 0xffff, v8
v_cmp_ne_u32 vcc, 0, v8
s_cbranch_vccnz L_ph
L_ph_done:
s_waitcnt vmcnt(0)""")
    for r in range(32, 40):
        e(f"v_and_b32 v{r}, 0xffff0000, v{r}")
    e("s_mov_b32 s78, 0x3d372713\ns_mov_b32 s79, 0xc0135761")
    for r in range(4):
        g = 32 + r; t = 40 + r
        e(f"""v_mul_f32 v{t}, v{g}, v{g}
v_mul_f32 v{t}, v{t}, v{g}
v_fma_f32 v{t}, v{t}, s78, v{g}
v_mul_f32 v{t}, s79, v{t}
v_exp_f32 v{t}, v{t}
s_nop 0
v_add_f32 v{t}, 1.0, v{t}
v_rcp_f32 v{t}, v{t}
s_nop 0
v_mul_f32 v{t}, v{t}, v{g}""")
        rbf(t, t)
        e(f"v_mul_f32 v{t}, v{t}, v{36+r}")
    e(f"""v_cvt_pk_bf16_f32 v16, v40, v41
v_cvt_pk_bf16_f32 v17, v42, v43
ds_write_b64 v26, v[16:17] offset:{HL}""")
    stamp(3)
    e(f"""v_lshrrev_b32 v8, 4, v0
v_bfe_u32 v10, v0, 2, 2
v_lshl_add_u32 v11, v8, 2, v10
v_lshl_add_u32 v10, v8, 3, v10
v_lshlrev_b32 v10, 7, v10
v_lshlrev_b32 v11, 7, v11
v_and_b32 v12, 3, v0
v_lshlrev_b32 v13, 3, v12
s_lshl_b32 s78, s56, 5
v_add3_u32 v10, v10, v13, s78
v_add3_u32 v11, v11, v13, s78
v_add_u32 v4, {WDT}, v10
v_add_u32 v5, {WDT+128*128}, v11
v_add_u32 v6, {WOT}, v10
v_add_u32 v100, {FT+16384}, v10
v_add_u32 v101, {FT+16384+128*128}, v11
v_add_u32 v102, {FT}, v10
v_mul_u32_u24 v13, 288, v12
v_lshl_add_u32 v7, v8, 3, v13
v_lshl_add_u32 v3, v8, 4, v13
v_lshlrev_b32 v12, 8, v12
v_lshl_add_u32 v30, v8, 4, v12
s_lshl_b32 s79, s56, 9
v_lshl_add_u32 v112, v0, 3, s79
v_and_b32 v113, 7, v0
v_lshlrev_b32 v113, {6 + mlw}, v113
s_lshl_b32 s79, s56, {4 + mlw}
v_add_u32 v113, s79, v113
s_lshl_b32 s88, s52, 14
s_add_u32 s88, s88, {PO}
s_add_u32 s89, s88, 4096
s_add_u32 s90, s88, 8192
s_add_u32 s91, s88, 12288
s_lshl_b32 s92, s52, {9 + mlw}
s_add_u32 s92, s92, {PM}
v_and_b32 v29, 15, v0
v_lshlrev_b32 v29, 4, v29
v_lshl_add_u32 v29, v8, 2, v29
s_lshl_b32 s79, s56, 8
v_add_u32 v29, s79, v29
v_lshlrev_b32 v114, 2, v0
s_lshl_b32 s93, s52, 10
s_add_u32 s93, s93, s79
s_add_u32 s93, s93, {YW}
s_add_u32 s87, s93, {8*32768}
s_lshl_b32 s79, s53, 15
s_add_u32 s93, s93, s79
s_movk_i32 s82, 0xff
v_add_u32 v103, s94, v0
v_add_u32 v104, 64, v103
s_lshl_b32 s79, s56, 6
v_add_u32 v115, s79, v103""")
    for r in list(range(24, 28)) + list(range(116, 120)):
        e(f"v_mov_b32 v{r}, 0")
    e("s_waitcnt vmcnt(0) lgkmcnt(0)")
    if trig:
        e(f"""v_mov_b32 v8, {CNT}
s_mov_b32 s83, {spin}
L_wtr:
s_sleep 2
ds_read_b32 v9, v8 offset:12
s_sub_u32 s83, s83, 1
s_cbranch_scc1 L_wtr_ok
s_waitcnt lgkmcnt(0)
v_cmp_eq_u32 vcc, 0, v9
s_cbranch_vccnz L_wtr
L_wtr_ok:""")
        all_proj(True)
    e(f"""s_mov_b32 s83, {spin}
s_barrier""")
    stamp(5)
    if notail:
        e("s_barrier\ns_branch L_done")
    P = [10 + 2 * s if s < 7 else 120 for s in range(8)]
    def gather(first):
        e("buffer_load_dwordx4 v[124:127], v113, s[44:47], s92 offen sc1")
        for s in range(8):
            if not first:
                e(f"s_bitcmp1_b32 s86, {s}\ns_cbranch_scc1 L_g{s}")
            e(f"buffer_load_dwordx2 v[{P[s]}:{P[s]+1}], v112, s[44:47], s{88+s//2} offen offset:{2048*(s&1)} sc1")
            if not first:
                e(f"L_g{s}:")
    def hid_frags():
        for s in range(4):
            e(f"ds_read_b128 v[{48+4*s}:{51+4*s}], v3 offset:{HL+64*s}")
        e(f"ds_read_b64 v[66:67], v7 offset:{HL+256}")
    def wd_frags(va, vb):
        for s in range(4):
            e(f"ds_read_b64_tr_b16 v[{32+4*s}:{33+4*s}], v{va} offset:{4096*s}")
            e(f"ds_read_b64_tr_b16 v[{34+4*s}:{35+4*s}], v{va} offset:{4096*s+512}")
        e(f"ds_read_b64_tr_b16 v[64:65], v{vb}")
    def down_mfma(acc):
        for s in range(4):
            e(f"v_mfma_f32_16x16x32_bf16 v[{acc}:{acc+3}], v[{48+4*s}:{51+4*s}], v[{32+4*s}:{35+4*s}], v[{acc}:{acc+3}]")
        e(f"s_nop 5\nv_mfma_f32_16x16x16_bf16 v[{acc}:{acc+3}], v[66:67], v[64:65], v[{acc}:{acc+3}]")
    def wo_frags(vo, wob):
        for s in range(4):
            e(f"ds_read_b64_tr_b16 v[{wob+4*s}:{wob+1+4*s}], v{vo} offset:{4096*s}")
            e(f"ds_read_b64_tr_b16 v[{wob+2+4*s}:{wob+3+4*s}], v{vo} offset:{4096*s+512}")
    def down_all(tag):
        wd_frags(4, 5)
        e("s_waitcnt lgkmcnt(0)")
        down_mfma(24)
        if defer != 2:
            wo_frags(6, 68)
        e(f"s_cmp_eq_u32 s98, 0\ns_cbranch_scc1 L_dn{tag}\ns_waitcnt lgkmcnt(0)")
        wd_frags(100, 101)
        e("s_waitcnt lgkmcnt(0)")
        down_mfma(116)
        if defer != 2:
            wo_frags(102, 84)
        e(f"L_dn{tag}:")
    gather(True)
    if defer and not trig:
        all_proj(True)
    hid_frags()
    if defer != 1:
        down_all(0)
    e("s_branch L_h1\nL_h1_again:\ns_mov_b32 s86, 0")
    for s in range(8):
        e(f"""v_xor_b32 v122, v103, v{P[s]}
v_bitop3_b32 v122, v122, v{P[s]+1}, v104 {OR_XOR}
v_and_b32 v122, 0xff, v122
v_cmp_ne_u32 vcc, 0, v122
s_cmp_eq_u64 vcc, 0
s_cselect_b32 s84, {1 << s}, 0
s_or_b32 s86, s86, s84""")
    gather(False)
    e("""L_h1:
s_sub_u32 s83, s83, 1
s_cbranch_scc1 L_h1_done
s_waitcnt vmcnt(0)
v_xor_b32 v122, v103, v10
v_xor_b32 v123, v104, v11""")
    for r in list(range(12, 24)) + [120, 121]:
        e(f"v_bitop3_b32 v{122+(r&1)}, v{122+(r&1)}, v{r}, v{103+(r&1)} {OR_XOR}")
    e(f"""v_or_b32 v122, v122, v123
v_and_b32 v122, 0xff, v122
v_bitop3_b32 v122, v122, v126, s94 {OR_XOR}
v_bitop3_b32 v122, v122, v127, s94 {OR_XOR}
v_mov_b32 v8, v124
v_mov_b32 v9, v125
v_cmp_ne_u32 vcc, 0, v122
s_cbranch_vccnz L_h1_again
L_h1_done:
s_movk_i32 s84, 0xff00""")
    stamp(6)
    W = [f"v_and_b32 v{r}, s84, v{r}" for r in list(range(10, 24)) + [120, 121]]
    nl = "\n"
    e(f"""v_max_f32_dpp v122, v8, v8 quad_perm:[1,0,3,2] {DP}
{nl.join(W[0:3])}
v_max_f32_dpp v122, v122, v122 quad_perm:[2,3,0,1] {DP}
{nl.join(W[3:6])}
v_max_f32_dpp v122, v122, v122 row_half_mirror {DP}
v_sub_f32 v8, v8, v122
v_mul_f32 v8, s85, v8
v_exp_f32 v8, v8
{nl.join(W[6:11])}
v_mul_f32 v9, v9, v8
{nl.join(W[11:16])}
v_mul_f32_dpp v122, v8, v10 row_newbcast:0 {DP}
v_add_f32_dpp v9, v9, v9 quad_perm:[1,0,3,2] {DP}
v_mul_f32_dpp v123, v8, v11 row_newbcast:0 {DP}
v_fmac_f32_dpp v122, v8, v12 row_newbcast:1 {DP}
v_add_f32_dpp v9, v9, v9 quad_perm:[2,3,0,1] {DP}
v_fmac_f32_dpp v123, v8, v13 row_newbcast:1 {DP}
v_fmac_f32_dpp v122, v8, v14 row_newbcast:2 {DP}
v_add_f32_dpp v9, v9, v9 row_half_mirror {DP}
v_fmac_f32_dpp v123, v8, v15 row_newbcast:2 {DP}
v_rcp_f32 v9, v9""")
    for s in range(3, 8):
        e(f"v_fmac_f32_dpp v122, v8, v{P[s]} row_newbcast:{s} {DP}")
        e(f"v_fmac_f32_dpp v123, v8, v{P[s]+1} row_newbcast:{s} {DP}")
    e(f"""v_mul_f32 v122, v122, v9
v_mul_f32 v123, v123, v9
v_cvt_pk_bf16_f32 v122, v122, v123
ds_write_b32 v29, v122 offset:{OL}
s_waitcnt lgkmcnt(0)
s_barrier""")
    OF = 8 if defer else 48
    for s in range(4):
        e(f"ds_read_b128 v[{OF+4*s}:{OF+3+4*s}], v30 offset:{OL+64*s}")
    if defer == 1:
        down_all(1)
        e("s_waitcnt lgkmcnt(0)")
    if defer == 2:
        wo_frags(6, 68)
        e("s_cmp_eq_u32 s98, 0\ns_cbranch_scc1 L_wf\ns_waitcnt lgkmcnt(0)")
        wo_frags(102, 84)
        e("L_wf:\ns_waitcnt lgkmcnt(0)")
    for s in range(4):
        if not defer:
            e(f"s_waitcnt lgkmcnt({3-s})")
        e(f"v_mfma_f32_16x16x32_bf16 v[24:27], v[{OF+4*s}:{OF+3+4*s}], v[{68+4*s}:{71+4*s}], v[24:27]")
    e("s_cmp_eq_u32 s98, 0\ns_cbranch_scc1 L_y1")
    for s in range(4):
        e(f"v_mfma_f32_16x16x32_bf16 v[116:119], v[{OF+4*s}:{OF+3+4*s}], v[{84+4*s}:{87+4*s}], v[116:119]")
    e("s_nop 7")
    pick_batch(116, 116)
    e("""v_bfi_b32 v116, s82, v115, v116
buffer_store_dword v116, v114, s[44:47], s87 offen sc1
L_y1:
s_nop 7""")
    pick_batch(24, 24)
    e("""v_bfi_b32 v24, s82, v115, v24
buffer_store_dword v24, v114, s[44:47], s93 offen sc1
L_done:
s_mov_b64 exec, -1""")
    if stamps:
        e("s_waitcnt vmcnt(0)")
        stamp(7)
        e(f"""s_lshl_b32 s78, s2, {2 if bare & 8 else 3}
s_add_u32 s78, s78, s3
s_lshl_b32 s78, s78, 6
s_add_u32 s78, s78, {STAMP}
s_getreg_b32 s79, hwreg(HW_REG_XCC_ID, 0, 4)
v_mov_b32 v1, s78""")
        for k in range(8):
            e(f"v_mov_b32 v{4+k}, s{60+2*k}")
        e("""v_mov_b32 v12, s97
v_mov_b32 v13, s79
global_store_dwordx4 v1, v[4:7], s[26:27]
global_store_dwordx4 v1, v[8:11], s[26:27] offset:16
global_store_dwordx2 v1, v[12:13], s[26:27] offset:32""")
    e(f"""L_end:
s_endpgm
.section .rodata,"a"
.p2align 6
.amdhsa_kernel {KN}
  .amdhsa_next_free_vgpr {NV}
  .amdhsa_next_free_sgpr 100
  .amdhsa_accum_offset {(NV+3)//4*4}
  .amdhsa_group_segment_fixed_size 0
  .amdhsa_kernarg_size 96
  .amdhsa_user_sgpr_count 2
  .amdhsa_user_sgpr_kernarg_segment_ptr 1
  .amdhsa_system_sgpr_workgroup_id_x 1
  .amdhsa_float_denorm_mode_32 3
.end_amdhsa_kernel""")
    if order:
        o = e.o
        ib = o.index("    s_cbranch_scc1 L_svc")
        isv = o.index("L_svc:") - 1
        iend = o.index("L_end:")
        assert o[iend + 1].strip() == "s_endpgm" and o[isv].startswith(";")
        e.o = o[:ib] + ["    s_cbranch_scc0 L_stream"] + o[isv:iend + 2] + ["L_stream:"] + o[ib + 1:isv] + o[iend + 2:]
    k = e.o.index('.section .rodata,"a"')
    e.o.insert(k, "L_code_end:")
    out = []
    for ln in e.o:
        if ln.rstrip().endswith(" sc1") and "buffer_store" in ln:
            ln = ln.rstrip()[:-3] + stf
        elif ln.rstrip().endswith(" sc1") and "buffer_load" in ln:
            ln = ln.rstrip()[:-3] + ldf
        out.append(ln)
    e.o = out
    e.o = [ln.rstrip().rstrip(";").rstrip() if not ln.lstrip().startswith(";") else ln for ln in e.o]
    txt = e.text()
    first, rest = txt.split("\n", 1)
    return HEADER + first + "\n" + DOC + rest

if __name__ == "__main__":
    kw = eval("dict(%s)" % (sys.argv[1] if len(sys.argv) > 1 else ""))
    sys.stdout.write(gen(**kw))
```

```python
import sys
KN = "parallel_sum__mha_block_cached__geglu_ffn__decode_kernel"

PO = 0x20000
PM = 0xA0000
YW = 0xB0000
QW = 0x100000
GU = 0x180000
CW = 0x1A8000
SCW = 0x200000
EW = 0x600000
WS_SIZE = 0x600080
STAMP = 0x700000
XN = 0; HL = 5632; OL = 6912; CNT = 7936; QL = 8192
FT = 12288; WOT = 86016; WDT = 102400
SCL = 120832
LDS_SIZE = 129024

LOG2E = 0x3fb8aa3b
SCALE = 0x3db504f3
DP = "row_mask:0xf bank_mask:0xf"
OR_XOR = "bitop3:0xf6"

HEADER = """; Kernarg layout for this problem (96 bytes, ptrs only, base s[0:1]):
"""

DOC = """;
;
"""

class A:
    def __init__(self):
        self.o = []
    def __call__(self, s):
        for ln in s.strip("\n").split("\n"):
            ln = ln.strip()
            if ln:
                self.o.append(ln if ln.endswith(":") or ln.startswith((".", ";")) else "    " + ln)
    def text(self):
        return "\n".join(self.o) + "\n"

def gen(R=4, S=24, v2=26, v4=0, k4=0, wflag="nt", kvflag="nt", stamps=0, spin=1 << 20, svcprio=1, svc0=3,
        bal=1, noq=0, notail=0, pj0=4, swz=1, mlw=3, stf="sc1", ldf="sc1", nopub=0, SE=28, one=4, c2=1, hs=0, orc=None, sp=0, now=0, order=1, pf=0, st2=0, lc=0, vw=24, kw=24, hm=0, qa=0, qm=0, qk=0, rot=0, alt=0, lay=1, mix=0, mul=1, pubf="sc1 ", scf="sc1 "):
    hsleep = defer = trig = bare = 0
    eearly = 1
    e = A()
    PM = 0xA0000 if mlw == 0 else 0x120000
    S1 = S2 = S
    if SE is None:
        SE = S
    LIMS = (128 - 4 * SE, 128 - 4 * S)
    if c2:
        LIMS = (128 - 2 * SE - 2 * S,) * 2
    if c2:
        CLS = """s_bfe_u32 s50, s48, 0x10001
s_lshr_b32 s51, s48, 2
s_lshl_b32 s51, s51, 1
s_and_b32 s92, s48, 1
s_add_u32 s51, s51, s92"""
    else:
        CLS = "s_and_b32 s50, s48, 1\ns_lshr_b32 s51, s48, 1"
    if orc is not None:
        CLS = f"""s_lshr_b32 s50, s48, 2
s_xor_b32 s50, s50, s49
s_xor_b32 s50, s50, {orc}
s_and_b32 s50, s50, 1
s_and_b32 s51, s48, 3"""
    assert S % 2 == 0 and R % 2 == 0 and S > 2 * R + 2
    LIM1 = 128 - 4 * S1
    LIM2 = 128 - 4 * S2
    def stamp(k):
        if stamps and not (bare & 16 and k in (1, 3, 4, 6)):
            e(f"s_memrealtime s[{60+2*k}:{61+2*k}]\ns_waitcnt lgkmcnt(0)")
    KB = 32
    SB = KB + R * 32
    NV = (SB + R + 3) // 4 * 4
    e(f"; @launch grid=(256,1,1) block=({256 if bare & 8 else 512},1,1) lds={LDS_SIZE}")
    e(f""".amdgcn_target "amdgcn-amd-amdhsa--gfx950"
.text
.globl {KN}
.p2align 8
.type {KN},@function
{KN}:
s_cmp_ge_u32 s2, 256
s_cbranch_scc1 L_end
s_load_dwordx16 s[4:19], s[0:1], 0
s_load_dwordx8 s[20:27], s[0:1], 64""")
    if pf:
        e(f"""; ---- wave 0 reads 1 KB of this kernel's own code (part id>>3), so that later instruction fetches find it in L2
s_getpc_b64 s[40:41]
L_pc:
s_sub_u32 s40, s40, L_pc-{KN}
s_subb_u32 s41, s41, 0
s_lshr_b32 s42, s2, 3
s_lshl_b32 s42, s42, 10
s_min_u32 s42, s42, L_code_end-{KN}-1024
v_lshl_add_u32 v2, v0, 4, s42
v_mov_b32 v3, s41
v_add_co_u32 v2, vcc, s40, v2
v_cmp_gt_u32 s[42:43], 64, v0
s_nop 0
v_addc_co_u32 v3, vcc, 0, v3, vcc
s_and_saveexec_b64 s[44:45], s[42:43]
s_cbranch_execz L_nopf
global_load_dwordx4 v[{SB}:{SB+3}], v[2:3], off
L_nopf:
s_mov_b64 exec, -1""")
    if stamps:
        for k in range(8):
            e(f"s_mov_b32 s{60+2*k}, 0")
        e("s_mov_b32 s97, 0")
    stamp(0)
    e("""v_lshrrev_b32 v1, 6, v0
v_and_b32 v0, 63, v0
v_readfirstlane_b32 s3, v1
s_and_b32 s48, s2, 7
s_lshr_b32 s49, s2, 3""")
    if hm:
        e(f"""s_mul_i32 s52, s48, {hm}
s_add_u32 s49, s49, s52
s_and_b32 s49, s49, 31
s_lshl_b32 s2, s49, 3
s_add_u32 s2, s2, s48""")
    if bal == 0:
        e("""s_and_b32 s52, s49, 3
s_lshl_b32 s53, s48, 2
s_add_u32 s52, s52, s53
s_lshr_b32 s53, s2, 5
s_add_u32 s96, s48, s53
s_and_b32 s96, s96, 7
s_cmp_eq_u32 s96, 7
s_cselect_b32 s98, 1, 0""")
    else:
        e("""s_bfe_u32 s52, s49, 0x20001
s_lshl_b32 s53, s48, 2
s_add_u32 s52, s52, s53
s_lshr_b32 s53, s49, 3
s_lshl_b32 s53, s53, 1
s_add_u32 s96, s48, s53
s_and_b32 s96, s96, 7
s_and_b32 s78, s49, 1
s_add_u32 s53, s53, s78
s_lshl_b32 s79, 1, s96
s_and_b32 s79, s79, 0x90
s_cselect_b32 s98, 1, 0
s_andn2_b32 s98, s98, s78""")
    e(f"""v_lshlrev_b32 v1, 4, v0
s_mov_b32 s85, {LOG2E}
v_mov_b32 v8, {CNT}
v_mov_b32 v10, 0
v_mov_b32 v11, 0
v_mov_b32 v12, 0
v_mov_b32 v13, 0
s_cmp_lg_u32 s3, 0
s_cbranch_scc1 L_b0
ds_write_b128 v8, v[10:13]
ds_write_b128 v8, v[10:13] offset:16
L_b0:
s_waitcnt lgkmcnt(0)
s_mov_b32 s94, {EW}
{"" if bare & 2 else "s_load_dword s94, s[26:27], s94"}
s_mov_b32 s44, s26
s_mov_b32 s45, s27
s_mov_b32 s46, {WS_SIZE}
s_mov_b32 s47, 0x20000
s_cmp_ge_u32 s3, 4
s_cbranch_scc1 L_svc""")

    e(f"""s_mul_i32 s56, s3, {hs}
s_add_u32 s49, s49, s56
s_and_b32 s49, s49, 31
s_lshl_b32 s18, s49, 3
s_add_u32 s18, s18, s48
s_add_u32 s56, s3, s48
s_and_b32 s56, s56, 3
s_lshl_b32 s58, s56, 5
s_add_u32 s58, s58, s49
s_lshl_b32 s59, s58, 21
s_add_u32 s28, s6, s59
s_addc_u32 s29, s7, 0
s_mov_b32 s30, {2<<20}
s_mov_b32 s31, 0x20000
s_add_u32 s32, s8, s59
s_addc_u32 s33, s9, 0
{CLS}
s_lshl_b32 s54, s50, 13
s_mul_i32 s82, s58, {rot}
s_and_b32 s82, s82, 127
s_lshl_b32 s82, s82, 14
s_lshl_b32 s34, s58, 14
s_add_u32 s34, s34, {SCW}
s_lshl_b32 s58, s58, 7
s_add_u32 s58, s58, {CW}
s_add_u32 s36, s26, s58
s_addc_u32 s37, s27, 0
s_lshl_b32 s35, s3, 11
s_add_u32 s35, s35, {SCL}
""")
    if lay:
        e(f"""v_bfe_u32 v3, v0, 4, 1
v_lshlrev_b32 v3, {16 if lay == 2 else 15}, v3
v_bfe_u32 v2, v0, 5, 1
v_lshl_or_b32 v3, v2, 8, v3
v_and_b32 v2, 15, v0
v_lshl_or_b32 v2, v2, 4, v3""")
    else:
        e("v_add_u32 v2, 4096, v1")
    e("s_barrier")
    def baddr(src):
        if not lay:
            return f"s_lshl_b32 s76, {src}, 14\ns_add_u32 s76, s76, s54"
        if lay == 2:
            return f"""s_lshr_b32 s76, {src}, 3
s_lshl_b32 s76, s76, 17
s_and_b32 s92, {src}, 1
s_lshl_b32 s92, s92, 12
s_add_u32 s76, s76, s92
s_and_b32 s92, {src}, 6
s_lshl_b32 s92, s92, 13
s_add_u32 s76, s76, s92
s_add_u32 s76, s76, s54"""
        if lay == 3:
            return f"""s_lshr_b32 s76, {src}, 3
s_lshl_b32 s76, s76, 17
s_and_b32 s92, {src}, 1
s_lshl_b32 s92, s92, 14
s_add_u32 s76, s76, s92
s_and_b32 s92, {src}, 2
s_lshl_b32 s92, s92, 15
s_add_u32 s76, s76, s92
s_and_b32 s92, {src}, 4
s_lshl_b32 s92, s92, 10
s_add_u32 s76, s76, s92
s_add_u32 s76, s76, s54"""
        return f"""s_lshr_b32 s76, {src}, 2
s_lshl_b32 s76, s76, 16
s_and_b32 s92, {src}, 1
s_lshl_b32 s92, s92, 12
s_add_u32 s76, s76, s92
s_and_b32 s92, {src}, 2
s_lshl_b32 s92, s92, 13
s_add_u32 s76, s76, s92
s_add_u32 s76, s76, s54"""
    def issue(u):
        if rot:
            e("s_add_u32 s76, s76, s82\ns_and_b32 s76, s76, 0x1fffff")
        for j in range(8):
            r = KB + u * 32 + j * 4
            if lay:
                e(f"buffer_load_dwordx4 v[{r}:{r+3}], v2, s[28:31], s76 offen offset:{j*512} {kvflag}")
            else:
                e(f"buffer_load_dwordx4 v[{r}:{r+3}], v{1 + (j >> 2)}, s[28:31], s76 offen offset:{(j&3)*1024} {kvflag}")
    if mix:
        snext = """s_add_u32 s76, s51, s48
s_and_b32 s76, s76, 7
s_lshl_b32 s92, s51, 3
s_add_u32 s76, s76, s92
s_lshl_b32 s76, s76, 13
s_add_u32 s51, s51, 1"""
    else:
        snext = baddr("s51") + "\n" + ("s_bitcmp1_b32 s51, 0\ns_cselect_b32 s92, 7, 1\ns_add_u32 s51, s51, s92" if alt else "s_add_u32 s51, s51, 4")
    for u in range(R):
        e(snext + f"\ns_add_u32 s{10+u}, s35, {64*u}")
        issue(u)
    stamp(1)
    e(f"""s_lshl_b32 s78, s56, 2
v_mov_b32 v9, s78
v_and_b32 v3, 15, v0
v_lshlrev_b32 v3, 4, v3
s_lshl_b32 s78, s56, 8
v_add_u32 v3, s78, v3
s_mov_b32 s83, {spin}
L_qw:
ds_read_b32 v8, v9 offset:{CNT+16}
ds_read_b128 v[4:7], v3 offset:{QL}
s_sub_u32 s83, s83, 1
s_cbranch_scc1 L_q_ok
s_waitcnt lgkmcnt(0)
v_cmp_eq_u32 vcc, 0, v8
{"" if noq else "s_cbranch_vccnz L_qw"}
L_q_ok:
s_waitcnt lgkmcnt(0)
s_add_u32 s94, s94, 1""")
    stamp(3)
    for r in range(8, 16):
        e(f"v_mov_b32 v{r}, 0")
    e(f"""v_mov_b32 v16, 0xff7fffff
v_mov_b32 v17, 0
s_mov_b32 s84, {SCALE}
s_mov_b32 s86, 0xffff0000
v_and_b32 v28, 0x3c, v0
v_lshlrev_b32 v3, 1, v28
v_lshrrev_b32 v30, 1, v0
v_lshlrev_b32 v30, 2, v30
v_and_b32 v31, 1, v0
v_add_lshl_u32 v30, v30, v31, 2
v_lshlrev_b32 v31, 2, v0
s_mov_b32 s87, {R}
s_mov_b32 s88, {R}
s_mov_b32 s77, 0
s_mov_b32 s55, 0
s_mov_b32 s89, 0
{"s_lshr_b32 s17, s48, 2" if orc is None else "s_bfe_u32 s17, s48, 0x10001"}
s_add_u32 s17, s17, {4*S}
s_bitcmp0_b32 s48, 0
s_cselect_b32 s14, {SE}, {S}
s_cmp_eq_u32 s50, 0
s_cselect_b32 s15, {LIMS[0]}, {LIMS[1]}
s_cselect_b32 s16, {LIMS[1]}, {LIMS[0]}
s_mov_b32 s80, 0xaaaaaaaa
s_mov_b32 s81, 0xaaaaaaaa
s_mov_b32 s83, {spin}""")
    def boundary_out(ph, u, have, none):
        S = (S1, S2)[ph]; LIM = (LIM1, LIM2)[ph]
        nm = f"{ph}{have}"
        e(f"""L_need{nm}:
s_cmp_ge_u32 s87, s14
s_cbranch_scc1 L_dyn{nm}
{snext}
s_lshl_b32 s42, s87, 6
s_add_u32 s42, s42, s35
s_add_u32 s87, s87, 1""")
        if c2:
            e(f"""s_cmp_lt_u32 s87, {S}
s_cselect_b32 s92, 0, 2
s_sub_u32 s51, s51, s92
s_cmp_eq_u32 s87, {S}
s_cselect_b32 s51, s17, s51""")
        if ph == 0:
            e(f"""s_cmp_lg_u32 s87, s14
s_cbranch_scc1 {have}_go
v_mov_b32 v26, {CNT}
v_mov_b32 v27, 1
ds_write_b32 v26, v27 offset:8""")
        else:
            e(f"""s_cmp_lg_u32 s87, {2*R+1}
s_cbranch_scc1 {have}_go
s_mov_b32 s90, 0x10000
s_atomic_add s90, s[36:37], 8""")
        e(f"s_branch {have}_go\nL_dyn{nm}:")
        if LIM == 0:
            e(f"s_branch {none}")
            return
        e(f"""L_early{nm}:
s_sub_u32 s83, s83, 1
s_cbranch_scc1 {none}""")
        if qa and (ph == 1 or qk):
            e(f"s_cmp_ge_u32 s55, s99\ns_cbranch_scc1 {none}")
        if ph == 0:
            e(f"s_cmp_lt_u32 s55, {k4}\ns_cselect_b32 s95, 4, 2")
        else:
            e(f"s_add_u32 s92, s55, {one}\ns_cmp_lt_u32 s92, s15\ns_cselect_b32 s95, 2, 1")
            if v4:
                e(f"s_cmp_lt_u32 s55, {v4}\ns_cselect_b32 s95, 4, s95")
        e(f"""s_lshl_b32 s93, s50, 3
s_lshl_b32 s90, s95, s93
s_mov_b32 s91, 0
s_atomic_add_x2 s[90:91], s[36:37], {8*ph} glc
s_waitcnt lgkmcnt(0)
s_cmp_lg_u32 s91, s94
s_cbranch_scc1 L_early{nm}
s_lshr_b32 s55, s90, s93
s_and_b32 s55, s55, 0xff
s_cmp_lt_u32 s55, s15
s_cbranch_scc1 L_got{nm}
s_cmp_eq_u32 s89, 1
s_cbranch_scc1 {none}
s_xor_b32 s93, s93, 8
s_lshr_b32 s55, s90, s93
s_and_b32 s55, s55, 0xff
s_cmp_ge_u32 s55, s16
s_cbranch_scc1 {none}
s_mov_b32 s15, s16
s_mov_b32 s89, 1
s_xor_b32 s50, s50, 1
s_xor_b32 s54, s54, 0x2000
s_branch L_early{nm}
L_got{nm}:""")
        if qa and (ph == 1 or qk):
            e(f"""s_cmp_ge_u32 s55, {qa}
s_cselect_b32 s92, {LIM - qm}, -1
s_cmp_eq_u32 s99, -2
s_cselect_b32 s99, s92, s99""")
        if ph == 1 and not nopub:
            e(f"""L_vd{nm}:
s_lshr_b32 s92, s90, 16
s_cmp_ge_u32 s92, 8
s_cbranch_scc1 L_vok{nm}
s_sub_u32 s83, s83, 1
s_cbranch_scc1 L_vok{nm}
s_mov_b32 s90, 0
s_atomic_add s90, s[36:37], 8 glc
s_waitcnt lgkmcnt(0)
s_branch L_vd{nm}
L_vok{nm}:""")
        e(f"""s_sub_u32 s77, s15, s55
s_sub_u32 s57, 128, s77
s_min_u32 s77, s77, s95
s_add_u32 s55, s55, s95""")
        if stamps:
            e(f"s_lshl_b32 s92, s77, {16*ph}\ns_add_u32 s97, s97, s92")
        e(f"s_branch {have}")
    def boundary_in(ph, have):
        e(f"""s_cmp_eq_u32 s77, 0
s_cbranch_scc1 L_need{ph}{have}
{have}:
s_sub_u32 s77, s77, 1
{baddr("s57")}
s_lshr_b32 s42, s57, 1
s_lshl_b32 s42, s42, 8
s_lshr_b32 s92, s54, 6
s_add_u32 s42, s42, s92
s_and_b32 s92, s57, 1
s_lshl_b32 s92, s92, {2*ph}
s_and_b32 s92, s92, 4
s_add_u32 s42, s42, s92
s_add_u32 s42, s42, s34
s_add_u32 s57, s57, 1
{have}_go:""")
    nf = [0]
    def score_fetch(u):
        n = nf[0]; nf[0] += 1
        r = SB + u
        e(f"""s_cmp_ge_u32 s42, {SCW}
s_cbranch_scc1 L_sf{n}
v_add_u32 v26, s42, v28
ds_read_b32 v{r}, v26
s_branch L_sg{n}
L_sf{n}:
{"" if nopub & 2 else f"buffer_load_dword v{r}, v3, s[44:47], s42 offen {scf};"}
L_sg{n}:""")
    def kstep(u, nextv):
        k = KB + u * 32
        e(f"s_waitcnt vmcnt({kw})")
        for j in range(8):
            e(f"v_dot2_f32_bf16 v{18+j}, v{k+4*j}, v4, 0")
        for i in range(1, 4):
            for j in range(8):
                e(f"v_dot2c_f32_bf16 v{18+j}, v{k+4*j+i}, v{4+i}")
        e(f"s_mov_b32 s43, s{10+u}")
        if nextv:
            score_fetch(u)
        else:
            e(f"s_mov_b32 s{10+u}, s42")
        issue(u)
        n = nf[0]; nf[0] += 1
        e(f"""v_add_f32_dpp v26, v18, v18 row_ror:8 row_mask:0xf bank_mask:0x3
v_add_f32_dpp v27, v20, v20 row_ror:8 row_mask:0xf bank_mask:0x3
v_add_f32_dpp v26, v19, v19 row_ror:8 row_mask:0xf bank_mask:0xc
v_add_f32_dpp v27, v21, v21 row_ror:8 row_mask:0xf bank_mask:0xc
v_add_f32_dpp v20, v22, v22 row_ror:8 row_mask:0xf bank_mask:0x3
v_add_f32_dpp v21, v24, v24 row_ror:8 row_mask:0xf bank_mask:0x3
v_add_f32_dpp v20, v23, v23 row_ror:8 row_mask:0xf bank_mask:0xc
v_add_f32_dpp v21, v25, v25 row_ror:8 row_mask:0xf bank_mask:0xc
v_add_f32_dpp v18, v26, v26 row_half_mirror row_mask:0xf bank_mask:0x5
v_add_f32_dpp v18, v27, v27 row_half_mirror row_mask:0xf bank_mask:0xa
v_add_f32_dpp v19, v20, v20 row_half_mirror row_mask:0xf bank_mask:0x5
v_add_f32_dpp v19, v21, v21 row_half_mirror row_mask:0xf bank_mask:0xa
s_nop 0
v_add_f32_dpp v18, v18, v18 quad_perm:[1,0,3,2] {DP}
v_add_f32_dpp v19, v19, v19 quad_perm:[1,0,3,2] {DP}
s_nop 0
v_add_f32_dpp v18, v18, v18 quad_perm:[2,3,0,1] {DP}
v_add_f32_dpp v19, v19, v19 quad_perm:[2,3,0,1] {DP}
v_cvt_pk_bf16_f32 v18, v18, v19
v_lshlrev_b32 v20, 16, v18
v_and_b32 v21, s86, v18
v_mul_f32 v20, s84, v20
v_mul_f32 v21, s84, v21
v_cvt_pk_bf16_f32 v18, v20, v21
s_cmp_ge_u32 s43, {SCW}
s_cbranch_scc1 L_pub{n}
v_add_u32 v26, s43, v28
ds_write_b32 v26, v18
s_branch L_pe{n}
L_pub{n}:""")
        if u % 2 == 0:
            e("v_mov_b32 v29, v18")
        else:
            e(f"""v_cndmask_b32 v18, v29, v18, s[80:81]
ds_bpermute_b32 v19, v30, v18
s_mov_b64 exec, 0xffffffff
s_waitcnt lgkmcnt(0)
{"" if nopub & 1 else f"buffer_store_dword v19, v31, s[44:47], s43 offen {pubf};"}
s_mov_b64 exec, -1""")
        e(f"L_pe{n}:")
    nw = [0]
    def vstep(u, last):
        v = KB + u * 32
        r = SB + u
        n = nw[0]; nw[0] += 1
        def wait(extra, tag, lg=""):
            if not last:
                e(f"s_waitcnt vmcnt({8*(R-1)+extra}){lg}")
                return
            for j in range(R - 1, 0, -1):
                e(f"s_cmp_lg_u32 s88, {j}\ns_cbranch_scc1 L_w{n}{tag}_{j}\ns_waitcnt vmcnt({8*j+extra}){lg}\ns_branch L_w{n}{tag}\nL_w{n}{tag}_{j}:")
            e(f"s_waitcnt vmcnt({extra}){lg}\nL_w{n}{tag}:")
        spl = sp == 1 or (sp == 2 and last)
        if not last and not spl:
            e(f"s_waitcnt vmcnt({vw}) lgkmcnt(0)")
        else:
            wait(8 if spl else 0, "a", " lgkmcnt(0)")
        e(f"""v_lshlrev_b32 v20, 16, v{r}
v_and_b32 v21, s86, v{r}
v_max_f32 v22, v20, v21
s_nop 1
v_max_f32_dpp v22, v22, v22 row_ror:8 {DP}
s_nop 1
v_max_f32_dpp v22, v22, v22 row_ror:4 {DP}
v_max_f32 v22, v16, v22
v_sub_f32 v20, v20, v22
v_sub_f32 v21, v21, v22
v_sub_f32 v24, v16, v22
v_mul_f32 v20, s85, v20
v_mul_f32 v21, s85, v21
v_mul_f32 v24, s85, v24
v_exp_f32 v20, v20
v_exp_f32 v21, v21
v_exp_f32 v24, v24
v_mov_b32 v16, v22
v_cvt_pk_bf16_f32 v18, v20, 0
v_cvt_pk_bf16_f32 v22, v21, 0
v_fma_f32 v17, v17, v24, v20
v_lshlrev_b32 v19, 16, v18
v_lshlrev_b32 v23, 16, v22
v_add_f32 v17, v17, v21""")
        for i in range(4):
            e(f"v_pk_mul_f32 v[{8+2*i}:{9+2*i}], v[{8+2*i}:{9+2*i}], v[24:25] op_sel_hi:[1,0]")
        for j in range(8):
            if spl and j in (0, 4):
                wait(4 - j, "bc"[j >> 2])
            ln = (0, 8, 4, 12)[j & 3]
            p = 18 + 4 * (j >> 2)
            for i in range(4):
                e(f"v_dot2c_f32_bf16_dpp v{8+2*i}, v{p}, v{v+4*j+i} row_newbcast:{ln} {DP}")
                e(f"v_dot2c_f32_bf16_dpp v{9+2*i}, v{p+1}, v{v+4*j+i} row_newbcast:{ln} {DP}")
        if not last:
            if lc:
                boundary_in(1, f"L_hc{u}")
            score_fetch(u)
            issue(u)
    late = []
    e("L_A0:")
    for u in range(R):
        if u:
            e(f"L_A{u}:")
        boundary_in(0, f"L_ha{u}")
        kstep(u, False)
    e("s_branch L_A0")
    for u in range(R):
        e(f"L_B{u}:")
        boundary_in(1, f"L_hb{u}")
        kstep(u, True)
        e(f"s_sub_u32 s88, s88, 1\ns_cmp_eq_u32 s88, 0\ns_cbranch_scc1 L_C{(u+1)%R}")
    e("s_branch L_B0")
    for u in range(R):
        e(f"L_C{u}:")
        if not lc:
            boundary_in(1, f"L_hc{u}")
        vstep(u, False)
    e("s_branch L_C0")
    for u in range(R):
        boundary_out(0, u, f"L_ha{u}", f"L_sw{u}")
        e(f"""L_sw{u}:
s_mov_b32 s28, s32
s_mov_b32 s29, s33
{CLS}
s_lshl_b32 s54, s50, 13
s_mov_b32 s87, 0
s_mov_b32 s55, 0
s_cmp_eq_u32 s50, 0
s_cselect_b32 s15, {LIMS[0]}, {LIMS[1]}
s_mov_b32 s89, 0""")
        stamp(6)
        e(f"s_branch L_B{u}")
        boundary_out(1, u, f"L_hb{u}", "L_never")
        boundary_out(1, u, f"L_hc{u}", f"L_dr{u}")
    e("L_never:\ns_branch L_sdone")
    for u in range(R):
        if lc:
            late.append(f"L_dr{u}:\ns_mov_b32 s88, {R-1}\ns_branch L_D{(u+1)%R}")
            e(f"L_D{u}:\ns_sub_u32 s88, s88, 1")
        else:
            e(f"L_dr{u}:\ns_mov_b32 s88, {R}\nL_D{u}:\ns_sub_u32 s88, s88, 1")
        vstep(u, True)
        e(f"s_cmp_eq_u32 s88, 0\ns_cbranch_scc1 L_sdone\ns_branch L_D{(u+1)%R}")
    for t in late:
        e(t)
    e("L_sdone:")
    stamp(5)
    e(f"""v_mov_b32 v18, v16
v_mov_b32 v19, v16
s_lshl_b32 s78, s18, 11
s_lshl_b32 s79, s56, 9
v_permlane16_swap_b32 v18, v19
s_add_u32 s78, s78, s79
v_max_f32 v18, v18, v19
v_mov_b32 v19, v18
s_add_u32 s78, s78, {PO}
s_lshl_b32 s79, s18, {6 + mlw}
v_permlane32_swap_b32 v18, v19
s_lshl_b32 s80, s56, {4 + mlw}
v_max_f32 v18, v18, v19
v_sub_f32 v20, v16, v18
v_mul_f32 v20, s85, v20
v_exp_f32 v20, v20
s_add_u32 s79, s79, s80
v_mul_f32 v17, v17, v20""")
    for r in range(8, 16):
        e(f"v_mul_f32 v{r}, v20, v{r}")
    e(f"""v_add_f32_dpp v17, v17, v17 row_ror:8 {DP}
s_add_u32 s79, s79, {PM}
v_permlane32_swap_b32 v8, v12
v_permlane32_swap_b32 v9, v13
v_add_f32_dpp v17, v17, v17 row_ror:4 {DP}
v_permlane32_swap_b32 v10, v14
v_permlane32_swap_b32 v11, v15
v_mov_b32 v19, v17
v_add_f32 v8, v8, v12
v_add_f32 v9, v9, v13
v_add_f32 v10, v10, v14
v_add_f32 v11, v11, v15
v_permlane16_swap_b32 v17, v19
v_add_u32 v20, s94, v0
v_permlane16_swap_b32 v8, v10
v_permlane16_swap_b32 v9, v11
v_add_f32 v17, v17, v19
v_add_f32 v8, v8, v10
v_mov_b32 v19, v17
v_add_f32 v9, v9, v11
s_movk_i32 s80, 0xff
v_permlane32_swap_b32 v17, v19
v_lshlrev_b32 v22, 3, v0
v_add_u32 v21, 64, v20
v_bfi_b32 v8, s80, v20, v8
v_bfi_b32 v9, s80, v21, v9
v_add_f32 v19, v17, v19
buffer_store_dwordx2 v[8:9], v22, s[44:47], s78 offen sc1
v_mov_b32 v20, s94
v_mov_b32 v21, s94
s_mov_b64 exec, {(1 << (1 << mlw)) - 1}
buffer_store_dwordx4 v[18:21], v1, s[44:47], s79 offen sc1
s_mov_b64 exec, -1
s_barrier""")
    e(f"""s_cmp_ge_u32 s3, {0 if notail else 2}
s_cbranch_scc1 L_bar_done
s_cmp_eq_u32 s3, 0
s_cbranch_scc1 L_red
s_cmp_eq_u32 s98, 0
s_cbranch_scc1 L_bar_done
s_mov_b32 s53, 8
L_red:
s_bfe_u32 s78, s52, 0x20001
s_mul_i32 s78, s78, 1152
s_lshr_b32 s79, s52, 3
s_lshl_b32 s79, s79, 5
s_add_u32 s78, s78, s79
s_and_b32 s79, s52, 1
s_lshl_b32 s79, s79, 4
s_add_u32 s78, s78, s79
s_lshl_b32 s79, s53, 7
s_add_u32 s78, s78, s79
v_and_b32 v9, 1, v0
v_lshlrev_b32 v10, 3, v9
s_mov_b32 s28, s4
s_mov_b32 s29, s5
s_mov_b32 s30, 4608
s_mov_b32 s31, 0x20000
buffer_load_dwordx2 v[16:17], v10, s[28:31], s78 offen
s_mov_b32 s40, s22
s_mov_b32 s41, s23
s_mov_b32 s42, 4608
s_mov_b32 s43, 0x20000
v_lshrrev_b32 v8, 1, v0
v_lshlrev_b32 v8, 10, v8
v_lshl_add_u32 v8, v9, 4, v8
s_lshl_b32 s79, s53, 15
s_lshl_b32 s80, s52, 5
s_add_u32 s79, s79, s80
s_add_u32 s79, s79, {YW}
s_lshl_b32 s80, s52, 3
s_add_u32 s80, s80, s94
v_lshl_add_u32 v24, v9, 2, s80
v_add_u32 v25, 1, v24
v_add_u32 v26, 2, v24
v_add_u32 v27, 3, v24
s_mov_b32 s83, {spin}
s_barrier
L_h2:
buffer_load_dwordx4 v[12:15], v8, s[44:47], s79 offen sc1
s_sub_u32 s83, s83, 1
s_cbranch_scc1 L_h2_done
s_waitcnt vmcnt(0)
v_xor_b32 v20, v24, v12
v_bitop3_b32 v20, v20, v13, v25 {OR_XOR}
v_bitop3_b32 v20, v20, v14, v26 {OR_XOR}
v_bitop3_b32 v20, v20, v15, v27 {OR_XOR}
v_and_b32 v20, 0xff, v20
s_nop 1
v_or_b32_dpp v20, v20, v20 quad_perm:[1,0,3,2] {DP}
v_cmp_ne_u32 vcc, 0, v20
s_and_b64 exec, exec, vcc
s_cbranch_execnz L_h2
L_h2_done:
s_mov_b64 exec, -1
s_waitcnt vmcnt(0)""")
    if eearly:
        e(f"""s_add_u32 s79, s2, s3
s_cmp_lg_u32 s79, 0
s_cbranch_scc1 L_noe
v_mov_b32 v24, s94
v_mov_b32 v25, {EW}
s_mov_b64 exec, 1
buffer_store_dword v24, v25, s[44:47], 0 offen
s_mov_b64 exec, -1
L_noe:""")
    e("s_movk_i32 s84, 0xff00")
    for r in range(12, 16):
        e(f"v_and_b32 v{r}, s84, v{r}")
    for dpp in ("quad_perm:[2,3,0,1]", "row_ror:4", "row_ror:8"):
        for r in range(12, 16):
            e(f"v_add_f32_dpp v{r}, v{r}, v{r} {dpp} {DP}")
    for sw in (16, 32):
        for r in range(4):
            e(f"v_mov_b32 v{20+r}, v{12+r}")
        for r in range(4):
            e(f"v_permlane{sw}_swap_b32 v{12+r}, v{20+r}")
        for r in range(4):
            e(f"v_add_f32 v{12+r}, v{12+r}, v{20+r}")
    e(f"""v_lshlrev_b32 v20, 16, v16
v_and_b32 v21, 0xffff0000, v16
v_lshlrev_b32 v22, 16, v17
v_and_b32 v23, 0xffff0000, v17
v_add_f32 v12, v12, v20
v_add_f32 v13, v13, v21
v_add_f32 v14, v14, v22
v_add_f32 v15, v15, v23
v_cvt_pk_bf16_f32 v12, v12, v13
v_cvt_pk_bf16_f32 v13, v14, v15
s_mov_b64 exec, 3
buffer_store_dwordx2 v[12:13], v10, s[40:43], s78 offen
s_add_u32 s78, s2, s3
s_cmp_lg_u32 s78, 0
{"s_branch L_done" if eearly else "s_cbranch_scc1 L_done"}
v_mov_b32 v12, s94
v_mov_b32 v13, {EW}
s_mov_b64 exec, 1
buffer_store_dword v12, v13, s[44:47], 0 offen sc1
s_branch L_done
L_bar_done:
s_barrier
s_branch L_done""")

    def srd(ptr, nbytes):
        e(f"s_mov_b32 s40, s{ptr}\ns_mov_b32 s41, s{ptr+1}\ns_mov_b32 s42, {0 if now & 2 else nbytes}\ns_mov_b32 s43, 0x20000")
    def dma(n_ins, step, ldsbase, vreg, alt=False):
        for n in range(n_ins):
            e(f"s_add_u32 m0, s79, {ldsbase + 1024*n}")
            e(f"s_add_u32 s78, s78, {step}" if n else "s_nop 0")
            e(f"buffer_load_dwordx4 v{vreg + (n & 1 if alt else 0)}, s[40:43], s78 offen {wflag} lds")
    def proj_tiles(stripe_sreg, wo_base, wd_base, late=False):
        e(f"s_lshl_b32 s81, s{stripe_sreg}, 7")
        if late or defer != 2:
            srd(12, 4096 * 1152)
            e(f"""s_mul_i32 s78, s52, {128*1152}
s_add_u32 s78, s78, s81
s_mul_i32 s79, s56, {32*1152}
s_add_u32 s78, s78, s79
s_lshl_b32 s79, s56, 12""")
            dma(4, 8 * 1152, wo_base, 31)
        if late and defer == 2:
            return
        srd(20, 4608 * 1152)
        e(f"""s_mul_i32 s78, s52, {144*1152}
s_add_u32 s78, s78, s81
s_mul_i32 s79, s57, {8*1152}
s_add_u32 s78, s78, s79
s_lshl_b32 s79, s57, 10""")
        dma(5, 8 * 1152, wd_base, 31)
    npj = [0]
    def all_proj(late=False):
        n = npj[0]; npj[0] += 1
        proj_tiles(53, WOT, WDT, late)
        e(f"s_cmp_eq_u32 s98, 0\ns_cbranch_scc1 L_pj{n}\ns_mov_b32 s80, 8")
        proj_tiles(80, FT, FT + 16384, late)
        e(f"L_pj{n}:")
    def pick_batch(d, a):
        e(f"""v_cndmask_b32 v{a}, v{a}, v{a+1}, s[38:39]
v_cndmask_b32 v{a+2}, v{a+2}, v{a+3}, s[38:39]
v_cndmask_b32 v{d}, v{a}, v{a+2}, s[58:59]""")
    tn = [0]
    def ticket_init():
        n = tn[0]; tn[0] += 1
        e(f"""s_cmp_lg_u32 s56, 3
s_cbranch_scc1 L_ti{n}
s_cmp_ge_u32 s2, 128
s_cbranch_scc1 L_ti{n}
v_mov_b32 v22, 0
v_mov_b32 v23, s94
v_lshlrev_b32 v24, 3, v0
s_mov_b64 exec, 0xffff
s_lshl_b32 s79, s2, 7
s_add_u32 s79, s79, {CW}
buffer_store_dwordx2 v[22:23], v24, s[44:47], s79 offen sc1
s_mov_b64 exec, -1
L_ti{n}:""")
    qn = [0]
    def qfetch():
        ticket_init()
        n = qn[0]; qn[0] += 1
        e(f"""v_lshrrev_b32 v14, 3, v0
v_lshlrev_b32 v14, 8, v14
v_and_b32 v15, 7, v0
v_lshl_add_u32 v14, v15, 3, v14
s_sub_u32 s89, s56, s48
s_and_b32 s89, s89, 3
s_mul_i32 s89, s89, {hs}
s_add_u32 s89, s89, s49
s_and_b32 s89, s89, 31
s_lshl_b32 s88, s56, 6
s_lshl_b32 s89, s89, 11
s_add_u32 s88, s88, s89
s_add_u32 s88, s88, {QW}
s_lshl_b32 s89, s56, 8
v_lshl_add_u32 v3, v0, 2, s89
s_lshl_b32 s89, s56, 2
v_mov_b32 v2, s89
s_lshl_b32 s89, s56, 4
s_add_u32 s89, s89, s94
v_lshl_add_u32 v18, v15, 1, s89
v_add_u32 v19, 1, v18
s_mov_b32 s83, {spin}
L_q_again{n}:
buffer_load_dwordx2 v[16:17], v14, s[44:47], s88 offen sc1
s_sub_u32 s83, s83, 1
s_cbranch_scc1 L_q_got{n}
s_waitcnt vmcnt(0)
v_xor_b32 v15, v18, v16
v_bitop3_b32 v15, v15, v17, v19 {OR_XOR}
v_and_b32 v15, 0xffff, v15
v_cmp_ne_u32 vcc, 0, v15
s_cbranch_vccnz L_q_again{n}
L_q_got{n}:
s_mov_b32 s89, 0x07060302
v_perm_b32 v16, v17, v16, s89
v_mov_b32 v15, 1
ds_write_b32 v3, v16 offset:{QL}
ds_write_b32 v2, v15 offset:{CNT+16}
s_setprio {svcprio}""")
        stamp(4)
    if bare & 1:
        e("L_svc:\ns_endpgm\nL_svc_x:")
    e(f"""{"" if bare & 1 else "L_svc:"}
s_setprio {svc0}
s_sub_u32 s56, s3, 4
s_mul_i32 s57, s56, 9
s_lshr_b32 s57, s57, 1
v_lshrrev_b32 v8, 3, v0
v_and_b32 v10, 7, v0
v_lshlrev_b32 v10, 4, v10
v_mul_u32_u24 v31, 1152, v8
v_add_u32 v31, v31, v10
s_mov_b32 s58, 0
s_mov_b32 s59, -1
s_sub_u32 s78, s96, 5
s_cmp_lt_u32 s78, 2
s_cbranch_scc1 L_tq
s_and_b32 s78, s49, 1
s_add_u32 s78, s78, 4
s_cmp_ge_u32 s96, s78
s_cbranch_scc1 L_notask
s_mul_i32 s80, s49, 9
s_lshr_b32 s80, s80, 1
s_add_u32 s80, s80, s96
s_lshl_b32 s51, s80, 10
s_add_u32 s51, s51, {GU}
s_cmp_ge_u32 s80, 72
s_cselect_b32 s40, s18, s16
s_cselect_b32 s41, s19, s17
s_cselect_b32 s78, 72, 0
s_mov_b32 s42, {0 if now & 1 else 576*9216}
s_sub_u32 s80, s80, s78
s_movk_i32 s50, 9216
s_branch L_task
L_tq:
s_lshl_b32 s80, s49, 1
s_add_u32 s80, s80, s78
s_lshl_b32 s51, s80, 10
s_add_u32 s51, s51, {QW}
s_mov_b32 s40, s10
s_mov_b32 s41, s11
s_mov_b32 s42, {576*8192}
s_movk_i32 s50, 8192
L_task:
s_mov_b32 s43, 0x20000
s_mul_i32 s36, s56, 1152
s_add_u32 s36, s4, s36
s_addc_u32 s37, s5, 0
s_mov_b32 s38, 1152
s_mov_b32 s39, 0x20000
v_lshlrev_b32 v7, 2, v0""")
    if st2 == 1:
        stamp(2)
    for j in range(5):
        e(f"buffer_load_dword v{2+j}, v7, s[36:39], 0 offen offset:{256*j}")
    if swz:
        e("""v_bfe_u32 v9, v0, 4, 1
v_lshlrev_b32 v9, 5, v9
v_xor_b32 v10, v10, v9""")
    e(f"""v_mul_u32_u24 v8, s50, v8
v_add_u32 v8, v8, v10
v_xor_b32 v9, 64, v8
s_lshl_b32 s78, s80, 7
s_mul_i32 s79, s56, 144
s_mul_i32 s79, s79, s50
s_add_u32 s78, s78, s79
s_lshl_b32 s82, s50, 3
s_lshl_b32 s79, s56, 8
s_add_u32 s51, s51, s79
s_mul_i32 s79, s56, {18*1024}""")
    dma(18, "s82", FT, 8, bool(swz))
    if pj0 == 1:
        proj_tiles(53, WOT, WDT)
    if st2 == 4:
        stamp(2)
    e("s_barrier")
    if pj0 == 2:
        proj_tiles(53, WOT, WDT)
    NPJ = 0 if not pj0 else (5 if defer == 2 else 9)
    NPX = 0 if pj0 >= 3 else NPJ
    if st2 == 2:
        stamp(2)
    e(f"s_waitcnt vmcnt({18 + NPX})")
    if st2 == 3:
        stamp(2)
    def wave_sum(r, t):
        for k in (8, 4, 2, 1):
            e(f"s_nop 1\nv_add_f32_dpp v{r}, v{r}, v{r} row_ror:{k} {DP}")
        for sw in (16, 32):
            e(f"v_mov_b32 v{t}, v{r}\ns_nop 1\nv_permlane{sw}_swap_b32 v{r}, v{t}\ns_nop 0\nv_add_f32 v{r}, v{r}, v{t}")
    def rbf(d, s):
        e(f"v_cvt_pk_bf16_f32 v{d}, v{s}, v{s}\nv_and_b32 v{d}, 0xffff0000, v{d}")
    for j in range(5):
        e(f"v_lshlrev_b32 v{10+2*j}, 16, v{2+j}\nv_and_b32 v{11+2*j}, 0xffff0000, v{2+j}")
    e("v_add_f32 v20, v10, v11")
    for j in range(12, 20):
        e(f"v_add_f32 v20, v20, v{j}")
    wave_sum(20, 21)
    e("v_mul_f32 v20, 0x3ae38e39, v20")
    e("v_cmp_gt_u32 vcc, 32, v0")
    for j in range(10):
        e(f"v_sub_f32 v{22+j if j < 8 else 2+j-8}, v{10+j}, v20")
    e("v_cndmask_b32 v2, 0, v2, vcc\nv_cndmask_b32 v3, 0, v3, vcc")
    e("v_mul_f32 v21, v2, v2\nv_fmac_f32 v21, v3, v3")
    for j in range(8):
        e(f"v_fmac_f32 v21, v{22+j}, v{22+j}")
    wave_sum(21, 22)
    e("v_mul_f32 v21, 0x3ae38e39, v21")
    rbf(21, 21)
    e("v_add_f32 v21, 0x3727c5ac, v21")
    rbf(21, 21)
    e("v_sqrt_f32 v21, v21\ns_nop 0")
    rbf(21, 21)
    e("v_rcp_f32 v21, v21")
    rbf(20, 20)
    for j in range(10):
        e(f"v_sub_f32 v{10+j}, v{10+j}, v20")
    for j in range(5):
        e(f"v_cvt_pk_bf16_f32 v{2+j}, v{10+2*j}, v{11+2*j}")
    for j in range(5):
        e(f"v_lshlrev_b32 v{10+2*j}, 16, v{2+j}\nv_and_b32 v{11+2*j}, 0xffff0000, v{2+j}")
    for j in range(10):
        e(f"v_mul_f32 v{10+j}, v{10+j}, v21")
    for j in range(5):
        e(f"v_cvt_pk_bf16_f32 v{2+j}, v{10+2*j}, v{11+2*j}")
    e("s_mul_i32 s78, s56, 1152\nv_add_u32 v7, s78, v7")
    for j in range(4):
        e(f"ds_write_b32 v7, v{2+j} offset:{XN+256*j}")
    e(f"s_mov_b64 exec, 0xffffffff\nds_write_b32 v7, v6 offset:{XN+1024}\ns_mov_b64 exec, -1")
    if pj0 == 3:
        proj_tiles(53, WOT, WDT)
    if pj0 == 4:
        e("s_cmp_eq_u32 s50, 8192\ns_cbranch_scc1 L_qnp")
        proj_tiles(53, WOT, WDT)
        e("s_waitcnt vmcnt(9)\ns_branch L_qnq\nL_qnp:\ns_waitcnt vmcnt(0)\nL_qnq:")
    e(f"""v_lshrrev_b32 v8, 4, v0
v_lshlrev_b32 v9, 4, v8
v_lshlrev_b32 v8, 3, v8
v_bfe_u32 v10, v0, 2, 2
v_add_u32 v8, v8, v10
v_lshlrev_b32 v8, 7, v8
v_and_b32 v10, 3, v0
v_lshl_add_u32 v8, v10, 3, v8
v_mul_u32_u24 v10, 1152, v10
v_add_u32 v9, v9, v10
s_lshl_b32 s78, s56, 5
v_bfe_u32 v14, v0, 3, 2
v_lshlrev_b32 v14, 5, v14
v_and_b32 v14, {0x60 if swz else 0}, v14
v_xor_b32 v14, s78, v14
v_add_u32 v11, {FT}, v8
v_add_u32 v11, v11, v14
v_add_u32 v12, {9*4096}, v11
v_lshlrev_b32 v13, 2, v0""")
    for r in range(16, 20):
        e(f"v_mov_b32 v{r}, 0")
    e(f"""v_mov_b32 v29, {CNT}
v_mov_b32 v30, 1
s_mov_b32 s83, {spin}
s_waitcnt vmcnt({NPJ}) lgkmcnt(0)
s_add_u32 s94, s94, 1
s_mov_b32 s38, 0xffff0000
s_mov_b32 s39, 0xffff0000
s_mov_b64 exec, 1
ds_add_u32 v29, v30
s_mov_b64 exec, -1
L_wxn:
ds_read_b32 v30, v29
s_sub_u32 s83, s83, 1
s_cbranch_scc1 L_wxn_ok
s_waitcnt lgkmcnt(0)
v_cmp_gt_u32 vcc, 4, v30
s_cbranch_vccnz L_wxn
L_wxn_ok:
s_waitcnt lgkmcnt(0)""")
    stamp(1)
    def rd(s):
        base = 32 + (s % 5) * 8
        e(f"ds_read_b128 v[{base}:{base+3}], v9 offset:{XN+64*s}")
        sg, so = divmod(s, 9)
        e(f"ds_read_b64_tr_b16 v[{base+4}:{base+5}], v{11+sg} offset:{4096*so}")
        e(f"ds_read_b64_tr_b16 v[{base+6}:{base+7}], v{11+sg} offset:{4096*so+512}")
    for s in range(4):
        rd(s)
    for s in range(18):
        e(f"s_waitcnt lgkmcnt({min(3, 17-s)*3})")
        base = 32 + (s % 5) * 8
        e(f"v_mfma_f32_16x16x32_bf16 v[16:19], v[{base}:{base+3}], v[{base+4}:{base+7}], v[16:19]")
        if s + 4 < 18:
            rd(s + 4)
    e("v_add_u32 v21, s94, v0\ns_mov_b32 s78, 0x07060100\ns_nop 5")
    pick_batch(20, 16)
    e("""v_cvt_pk_bf16_f32 v20, v20, v20
v_perm_b32 v20, v20, v21, s78
buffer_store_dword v20, v13, s[44:47], s51 offen sc1""")
    if not st2:
        stamp(2)
    if pj0 == 4:
        e("s_cmp_lg_u32 s50, 8192\ns_cbranch_scc1 L_qnr")
        proj_tiles(53, WOT, WDT)
        e("L_qnr:")
    qfetch()
    if not defer and not pj0:
        proj_tiles(53, WOT, WDT)
    e("s_branch L_tick\nL_notask:")
    if defer != 1:
        all_proj()
    e("s_barrier\ns_waitcnt lgkmcnt(0)\ns_add_u32 s94, s94, 1\ns_mov_b32 s38, 0xffff0000\ns_mov_b32 s39, 0xffff0000")
    qfetch()
    e("L_tick:")
    e(f"""L_gu:
v_min_u32 v8, 35, v0
v_lshrrev_b32 v9, 2, v8
v_lshlrev_b32 v9, 8, v9
v_and_b32 v24, 3, v8
s_lshl_b32 s78, s56, 4
s_add_u32 s78, s78, s94
v_lshl_add_u32 v44, v24, 2, s78
v_add_u32 v45, 1, v44
v_add_u32 v46, 2, v44
v_add_u32 v47, 3, v44
v_lshl_add_u32 v24, v24, 4, v9
v_lshlrev_b32 v26, 3, v8
s_mul_i32 s78, s56, 288
v_add_u32 v26, s78, v26
s_mul_i32 s78, s52, 2304
s_lshl_b32 s79, s56, 6
s_add_u32 s78, s78, s79
s_add_u32 s78, s78, {GU}
s_add_u32 s79, s78, 73728
v_mov_b32 v29, {CNT}
s_mov_b32 s83, {spin}
{"" if hsleep else "s_setprio 0"}
L_late:
{f"s_sleep {hsleep}" if hsleep else ""}
ds_read_b32 v30, v29 offset:8
s_sub_u32 s83, s83, 1
s_cbranch_scc1 L_late_ok
s_waitcnt lgkmcnt(0)
v_cmp_eq_u32 vcc, 0, v30
s_cbranch_vccnz L_late
L_late_ok:
s_setprio {svcprio}
s_waitcnt lgkmcnt(0)
s_mov_b32 s83, {spin}
L_ph:
buffer_load_dwordx4 v[32:35], v24, s[44:47], s78 offen sc1
buffer_load_dwordx4 v[36:39], v24, s[44:47], s79 offen sc1
s_sub_u32 s83, s83, 1
s_cbranch_scc1 L_ph_done
s_waitcnt vmcnt(0)
v_xor_b32 v8, v44, v32""")
    for r in range(33, 40):
        e(f"v_bitop3_b32 v8, v8, v{r}, v{44+(r&3)} {OR_XOR}")
    e("""v_and_b32 v8, 0xffff, v8
v_cmp_ne_u32 vcc, 0, v8
s_cbranch_vccnz L_ph
L_ph_done:
s_waitcnt vmcnt(0)""")
    for r in range(32, 40):
        e(f"v_and_b32 v{r}, 0xffff0000, v{r}")
    e("s_mov_b32 s78, 0x3d372713\ns_mov_b32 s79, 0xc0135761")
    for r in range(4):
        g = 32 + r; t = 40 + r
        e(f"""v_mul_f32 v{t}, v{g}, v{g}
v_mul_f32 v{t}, v{t}, v{g}
v_fma_f32 v{t}, v{t}, s78, v{g}
v_mul_f32 v{t}, s79, v{t}
v_exp_f32 v{t}, v{t}
s_nop 0
v_add_f32 v{t}, 1.0, v{t}
v_rcp_f32 v{t}, v{t}
s_nop 0
v_mul_f32 v{t}, v{t}, v{g}""")
        rbf(t, t)
        e(f"v_mul_f32 v{t}, v{t}, v{36+r}")
    e(f"""v_cvt_pk_bf16_f32 v16, v40, v41
v_cvt_pk_bf16_f32 v17, v42, v43
ds_write_b64 v26, v[16:17] offset:{HL}""")
    stamp(3)
    e(f"""v_lshrrev_b32 v8, 4, v0
v_bfe_u32 v10, v0, 2, 2
v_lshl_add_u32 v11, v8, 2, v10
v_lshl_add_u32 v10, v8, 3, v10
v_lshlrev_b32 v10, 7, v10
v_lshlrev_b32 v11, 7, v11
v_and_b32 v12, 3, v0
v_lshlrev_b32 v13, 3, v12
s_lshl_b32 s78, s56, 5
v_add3_u32 v10, v10, v13, s78
v_add3_u32 v11, v11, v13, s78
v_add_u32 v4, {WDT}, v10
v_add_u32 v5, {WDT+128*128}, v11
v_add_u32 v6, {WOT}, v10
v_add_u32 v100, {FT+16384}, v10
v_add_u32 v101, {FT+16384+128*128}, v11
v_add_u32 v102, {FT}, v10
v_mul_u32_u24 v13, 288, v12
v_lshl_add_u32 v7, v8, 3, v13
v_lshl_add_u32 v3, v8, 4, v13
v_lshlrev_b32 v12, 8, v12
v_lshl_add_u32 v30, v8, 4, v12
s_lshl_b32 s79, s56, 9
v_lshl_add_u32 v112, v0, 3, s79
v_and_b32 v113, 7, v0
v_lshlrev_b32 v113, {6 + mlw}, v113
s_lshl_b32 s79, s56, {4 + mlw}
v_add_u32 v113, s79, v113
s_lshl_b32 s88, s52, 14
s_add_u32 s88, s88, {PO}
s_add_u32 s89, s88, 4096
s_add_u32 s90, s88, 8192
s_add_u32 s91, s88, 12288
s_lshl_b32 s92, s52, {9 + mlw}
s_add_u32 s92, s92, {PM}
v_and_b32 v29, 15, v0
v_lshlrev_b32 v29, 4, v29
v_lshl_add_u32 v29, v8, 2, v29
s_lshl_b32 s79, s56, 8
v_add_u32 v29, s79, v29
v_lshlrev_b32 v114, 2, v0
s_lshl_b32 s93, s52, 10
s_add_u32 s93, s93, s79
s_add_u32 s93, s93, {YW}
s_add_u32 s87, s93, {8*32768}
s_lshl_b32 s79, s53, 15
s_add_u32 s93, s93, s79
s_movk_i32 s82, 0xff
v_add_u32 v103, s94, v0
v_add_u32 v104, 64, v103
s_lshl_b32 s79, s56, 6
v_add_u32 v115, s79, v103""")
    for r in list(range(24, 28)) + list(range(116, 120)):
        e(f"v_mov_b32 v{r}, 0")
    e("s_waitcnt vmcnt(0) lgkmcnt(0)")
    if trig:
        e(f"""v_mov_b32 v8, {CNT}
s_mov_b32 s83, {spin}
L_wtr:
s_sleep 2
ds_read_b32 v9, v8 offset:12
s_sub_u32 s83, s83, 1
s_cbranch_scc1 L_wtr_ok
s_waitcnt lgkmcnt(0)
v_cmp_eq_u32 vcc, 0, v9
s_cbranch_vccnz L_wtr
L_wtr_ok:""")
        all_proj(True)
    e(f"""s_mov_b32 s83, {spin}
s_barrier""")
    stamp(5)
    if notail:
        e("s_barrier\ns_branch L_done")
    P = [10 + 2 * s if s < 7 else 120 for s in range(8)]
    def gather(first):
        e("buffer_load_dwordx4 v[124:127], v113, s[44:47], s92 offen sc1")
        for s in range(8):
            if not first:
                e(f"s_bitcmp1_b32 s86, {s}\ns_cbranch_scc1 L_g{s}")
            e(f"buffer_load_dwordx2 v[{P[s]}:{P[s]+1}], v112, s[44:47], s{88+s//2} offen offset:{2048*(s&1)} sc1")
            if not first:
                e(f"L_g{s}:")
    def hid_frags():
        for s in range(4):
            e(f"ds_read_b128 v[{48+4*s}:{51+4*s}], v3 offset:{HL+64*s}")
        e(f"ds_read_b64 v[66:67], v7 offset:{HL+256}")
    def wd_frags(va, vb):
        for s in range(4):
            e(f"ds_read_b64_tr_b16 v[{32+4*s}:{33+4*s}], v{va} offset:{4096*s}")
            e(f"ds_read_b64_tr_b16 v[{34+4*s}:{35+4*s}], v{va} offset:{4096*s+512}")
        e(f"ds_read_b64_tr_b16 v[64:65], v{vb}")
    def down_mfma(acc):
        for s in range(4):
            e(f"v_mfma_f32_16x16x32_bf16 v[{acc}:{acc+3}], v[{48+4*s}:{51+4*s}], v[{32+4*s}:{35+4*s}], v[{acc}:{acc+3}]")
        e(f"s_nop 5\nv_mfma_f32_16x16x16_bf16 v[{acc}:{acc+3}], v[66:67], v[64:65], v[{acc}:{acc+3}]")
    def wo_frags(vo, wob):
        for s in range(4):
            e(f"ds_read_b64_tr_b16 v[{wob+4*s}:{wob+1+4*s}], v{vo} offset:{4096*s}")
            e(f"ds_read_b64_tr_b16 v[{wob+2+4*s}:{wob+3+4*s}], v{vo} offset:{4096*s+512}")
    def down_all(tag):
        wd_frags(4, 5)
        e("s_waitcnt lgkmcnt(0)")
        down_mfma(24)
        if defer != 2:
            wo_frags(6, 68)
        e(f"s_cmp_eq_u32 s98, 0\ns_cbranch_scc1 L_dn{tag}\ns_waitcnt lgkmcnt(0)")
        wd_frags(100, 101)
        e("s_waitcnt lgkmcnt(0)")
        down_mfma(116)
        if defer != 2:
            wo_frags(102, 84)
        e(f"L_dn{tag}:")
    gather(True)
    if defer and not trig:
        all_proj(True)
    hid_frags()
    if defer != 1:
        down_all(0)
    e("s_branch L_h1\nL_h1_again:\ns_mov_b32 s86, 0")
    for s in range(8):
        e(f"""v_xor_b32 v122, v103, v{P[s]}
v_bitop3_b32 v122, v122, v{P[s]+1}, v104 {OR_XOR}
v_and_b32 v122, 0xff, v122
v_cmp_ne_u32 vcc, 0, v122
s_cmp_eq_u64 vcc, 0
s_cselect_b32 s84, {1 << s}, 0
s_or_b32 s86, s86, s84""")
    gather(False)
    e("""L_h1:
s_sub_u32 s83, s83, 1
s_cbranch_scc1 L_h1_done
s_waitcnt vmcnt(0)
v_xor_b32 v122, v103, v10
v_xor_b32 v123, v104, v11""")
    for r in list(range(12, 24)) + [120, 121]:
        e(f"v_bitop3_b32 v{122+(r&1)}, v{122+(r&1)}, v{r}, v{103+(r&1)} {OR_XOR}")
    e(f"""v_or_b32 v122, v122, v123
v_and_b32 v122, 0xff, v122
v_bitop3_b32 v122, v122, v126, s94 {OR_XOR}
v_bitop3_b32 v122, v122, v127, s94 {OR_XOR}
v_mov_b32 v8, v124
v_mov_b32 v9, v125
v_cmp_ne_u32 vcc, 0, v122
s_cbranch_vccnz L_h1_again
L_h1_done:
s_movk_i32 s84, 0xff00""")
    stamp(6)
    W = [f"v_and_b32 v{r}, s84, v{r}" for r in list(range(10, 24)) + [120, 121]]
    nl = "\n"
    e(f"""v_max_f32_dpp v122, v8, v8 quad_perm:[1,0,3,2] {DP}
{nl.join(W[0:3])}
v_max_f32_dpp v122, v122, v122 quad_perm:[2,3,0,1] {DP}
{nl.join(W[3:6])}
v_max_f32_dpp v122, v122, v122 row_half_mirror {DP}
v_sub_f32 v8, v8, v122
v_mul_f32 v8, s85, v8
v_exp_f32 v8, v8
{nl.join(W[6:11])}
v_mul_f32 v9, v9, v8
{nl.join(W[11:16])}
v_mul_f32_dpp v122, v8, v10 row_newbcast:0 {DP}
v_add_f32_dpp v9, v9, v9 quad_perm:[1,0,3,2] {DP}
v_mul_f32_dpp v123, v8, v11 row_newbcast:0 {DP}
v_fmac_f32_dpp v122, v8, v12 row_newbcast:1 {DP}
v_add_f32_dpp v9, v9, v9 quad_perm:[2,3,0,1] {DP}
v_fmac_f32_dpp v123, v8, v13 row_newbcast:1 {DP}
v_fmac_f32_dpp v122, v8, v14 row_newbcast:2 {DP}
v_add_f32_dpp v9, v9, v9 row_half_mirror {DP}
v_fmac_f32_dpp v123, v8, v15 row_newbcast:2 {DP}
v_rcp_f32 v9, v9""")
    for s in range(3, 8):
        e(f"v_fmac_f32_dpp v122, v8, v{P[s]} row_newbcast:{s} {DP}")
        e(f"v_fmac_f32_dpp v123, v8, v{P[s]+1} row_newbcast:{s} {DP}")
    e(f"""v_mul_f32 v122, v122, v9
v_mul_f32 v123, v123, v9
v_cvt_pk_bf16_f32 v122, v122, v123
ds_write_b32 v29, v122 offset:{OL}
s_waitcnt lgkmcnt(0)
s_barrier""")
    OF = 8 if defer else 48
    for s in range(4):
        e(f"ds_read_b128 v[{OF+4*s}:{OF+3+4*s}], v30 offset:{OL+64*s}")
    if defer == 1:
        down_all(1)
        e("s_waitcnt lgkmcnt(0)")
    if defer == 2:
        wo_frags(6, 68)
        e("s_cmp_eq_u32 s98, 0\ns_cbranch_scc1 L_wf\ns_waitcnt lgkmcnt(0)")
        wo_frags(102, 84)
        e("L_wf:\ns_waitcnt lgkmcnt(0)")
    for s in range(4):
        if not defer:
            e(f"s_waitcnt lgkmcnt({3-s})")
        e(f"v_mfma_f32_16x16x32_bf16 v[24:27], v[{OF+4*s}:{OF+3+4*s}], v[{68+4*s}:{71+4*s}], v[24:27]")
    e("s_cmp_eq_u32 s98, 0\ns_cbranch_scc1 L_y1")
    for s in range(4):
        e(f"v_mfma_f32_16x16x32_bf16 v[116:119], v[{OF+4*s}:{OF+3+4*s}], v[{84+4*s}:{87+4*s}], v[116:119]")
    e("s_nop 7")
    pick_batch(116, 116)
    e("""v_bfi_b32 v116, s82, v115, v116
buffer_store_dword v116, v114, s[44:47], s87 offen sc1
L_y1:
s_nop 7""")
    pick_batch(24, 24)
    e("""v_bfi_b32 v24, s82, v115, v24
buffer_store_dword v24, v114, s[44:47], s93 offen sc1
L_done:
s_mov_b64 exec, -1""")
    if stamps:
        e("s_waitcnt vmcnt(0)")
        stamp(7)
        e(f"""s_lshl_b32 s78, s2, {2 if bare & 8 else 3}
s_add_u32 s78, s78, s3
s_lshl_b32 s78, s78, 6
s_add_u32 s78, s78, {STAMP}
s_getreg_b32 s79, hwreg(HW_REG_XCC_ID, 0, 4)
v_mov_b32 v1, s78""")
        for k in range(8):
            e(f"v_mov_b32 v{4+k}, s{60+2*k}")
        e("""v_mov_b32 v12, s97
v_mov_b32 v13, s79
global_store_dwordx4 v1, v[4:7], s[26:27]
global_store_dwordx4 v1, v[8:11], s[26:27] offset:16
global_store_dwordx2 v1, v[12:13], s[26:27] offset:32""")
    e(f"""L_end:
s_endpgm
.section .rodata,"a"
.p2align 6
.amdhsa_kernel {KN}
  .amdhsa_next_free_vgpr {NV}
  .amdhsa_next_free_sgpr 100
  .amdhsa_accum_offset {(NV+3)//4*4}
  .amdhsa_group_segment_fixed_size 0
  .amdhsa_kernarg_size 96
  .amdhsa_user_sgpr_count 2
  .amdhsa_user_sgpr_kernarg_segment_ptr 1
  .amdhsa_system_sgpr_workgroup_id_x 1
  .amdhsa_float_denorm_mode_32 3
.end_amdhsa_kernel""")
    if order:
        o = e.o
        ib = o.index("    s_cbranch_scc1 L_svc")
        isv = o.index("L_svc:") - 1
        iend = o.index("L_end:")
        assert o[iend + 1].strip() == "s_endpgm" and o[isv].startswith(";")
        e.o = o[:ib] + ["    s_cbranch_scc0 L_stream"] + o[isv:iend + 2] + ["L_stream:"] + o[ib + 1:isv] + o[iend + 2:]
    k = e.o.index('.section .rodata,"a"')
    e.o.insert(k, "L_code_end:")
    out = []
    for ln in e.o:
        if ln.rstrip().endswith(" sc1") and "buffer_store" in ln:
            ln = ln.rstrip()[:-3] + stf
        elif ln.rstrip().endswith(" sc1") and "buffer_load" in ln:
            ln = ln.rstrip()[:-3] + ldf
        out.append(ln)
    e.o = out
    e.o = [ln.rstrip().rstrip(";").rstrip() if not ln.lstrip().startswith(";") else ln for ln in e.o]
    txt = e.text()
    first, rest = txt.split("\n", 1)
    return HEADER + first + "\n" + DOC + rest

if __name__ == "__main__":
    kw = eval("dict(%s)" % (sys.argv[1] if len(sys.argv) > 1 else ""))
    sys.stdout.write(gen(**kw))
```

```python
import sys
KN = "parallel_sum__mha_block_cached__geglu_ffn__decode_kernel"

PO = 0x20000
PM = 0xA0000
YW = 0xB0000
QW = 0x100000
GU = 0x180000
CW = 0x1A8000
SCW = 0x200000
EW = 0x600000
WS_SIZE = 0x600080
STAMP = 0x700000
XN = 0; HL = 5632; OL = 6912; CNT = 7936; QL = 8192
FT = 12288; WOT = 86016; WDT = 102400
SCL = 120832
LDS_SIZE = 129024

LOG2E = 0x3fb8aa3b
SCALE = 0x3db504f3
DP = "row_mask:0xf bank_mask:0xf"
OR_XOR = "bitop3:0xf6"

HEADER = """; Kernarg layout for this problem (96 bytes, ptrs only, base s[0:1]):
"""

DOC = """;
;
"""

class A:
    def __init__(self):
        self.o = []
    def __call__(self, s):
        for ln in s.strip("\n").split("\n"):
            ln = ln.strip()
            if ln:
                self.o.append(ln if ln.endswith(":") or ln.startswith((".", ";")) else "    " + ln)
    def text(self):
        return "\n".join(self.o) + "\n"

def gen(R=4, S=24, v2=26, v4=0, k4=0, wflag="nt", kvflag="nt", stamps=0, spin=1 << 20, svcprio=1, svc0=3,
        bal=1, noq=0, notail=0, pj0=4, swz=1, mlw=3, stf="sc1", ldf="sc1", nopub=0, SE=28, one=4, c2=1, hs=0, orc=None, sp=0, now=0, order=1, pf=0, st2=0, lc=0, vw=24, kw=24, hm=0, qa=0, qm=0, qk=0, rot=0, alt=0, lay=1, mix=0, mul=1, pubf="sc1 ", scf="sc1 "):
    hsleep = defer = trig = bare = 0
    eearly = 1
    e = A()
    PM = 0xA0000 if mlw == 0 else 0x120000
    S1 = S2 = S
    if SE is None:
        SE = S
    LIMS = (128 - 4 * SE, 128 - 4 * S)
    if c2:
        LIMS = (128 - 2 * SE - 2 * S,) * 2
    if c2:
        CLS = """s_bfe_u32 s50, s48, 0x10001
s_lshr_b32 s51, s48, 2
s_lshl_b32 s51, s51, 1
s_and_b32 s92, s48, 1
s_add_u32 s51, s51, s92"""
    else:
        CLS = "s_and_b32 s50, s48, 1\ns_lshr_b32 s51, s48, 1"
    if orc is not None:
        CLS = f"""s_lshr_b32 s50, s48, 2
s_xor_b32 s50, s50, s49
s_xor_b32 s50, s50, {orc}
s_and_b32 s50, s50, 1
s_and_b32 s51, s48, 3"""
    assert S % 2 == 0 and R % 2 == 0 and S > 2 * R + 2
    LIM1 = 128 - 4 * S1
    LIM2 = 128 - 4 * S2
    def stamp(k):
        if stamps and not (bare & 16 and k in (1, 3, 4, 6)):
            e(f"s_memrealtime s[{60+2*k}:{61+2*k}]\ns_waitcnt lgkmcnt(0)")
    KB = 32
    SB = KB + R * 32
    NV = (SB + R + 3) // 4 * 4
    e(f"; @launch grid=(256,1,1) block=({256 if bare & 8 else 512},1,1) lds={LDS_SIZE}")
    e(f""".amdgcn_target "amdgcn-amd-amdhsa--gfx950"
.text
.globl {KN}
.p2align 8
.type {KN},@function
{KN}:
s_cmp_ge_u32 s2, 256
s_cbranch_scc1 L_end
s_load_dwordx16 s[4:19], s[0:1], 0
s_load_dwordx8 s[20:27], s[0:1], 64""")
    if pf:
        e(f"""; ---- wave 0 reads 1 KB of this kernel's own code (part id>>3), so that later instruction fetches find it in L2
s_getpc_b64 s[40:41]
L_pc:
s_sub_u32 s40, s40, L_pc-{KN}
s_subb_u32 s41, s41, 0
s_lshr_b32 s42, s2, 3
s_lshl_b32 s42, s42, 10
s_min_u32 s42, s42, L_code_end-{KN}-1024
v_lshl_add_u32 v2, v0, 4, s42
v_mov_b32 v3, s41
v_add_co_u32 v2, vcc, s40, v2
v_cmp_gt_u32 s[42:43], 64, v0
s_nop 0
v_addc_co_u32 v3, vcc, 0, v3, vcc
s_and_saveexec_b64 s[44:45], s[42:43]
s_cbranch_execz L_nopf
global_load_dwordx4 v[{SB}:{SB+3}], v[2:3], off
L_nopf:
s_mov_b64 exec, -1""")
    if stamps:
        for k in range(8):
            e(f"s_mov_b32 s{60+2*k}, 0")
        e("s_mov_b32 s97, 0")
    stamp(0)
    e("""v_lshrrev_b32 v1, 6, v0
v_and_b32 v0, 63, v0
v_readfirstlane_b32 s3, v1
s_and_b32 s48, s2, 7
s_lshr_b32 s49, s2, 3""")
    if hm:
        e(f"""s_mul_i32 s52, s48, {hm}
s_add_u32 s49, s49, s52
s_and_b32 s49, s49, 31
s_lshl_b32 s2, s49, 3
s_add_u32 s2, s2, s48""")
    if bal == 0:
        e("""s_and_b32 s52, s49, 3
s_lshl_b32 s53, s48, 2
s_add_u32 s52, s52, s53
s_lshr_b32 s53, s2, 5
s_add_u32 s96, s48, s53
s_and_b32 s96, s96, 7
s_cmp_eq_u32 s96, 7
s_cselect_b32 s98, 1, 0""")
    else:
        e("""s_bfe_u32 s52, s49, 0x20001
s_lshl_b32 s53, s48, 2
s_add_u32 s52, s52, s53
s_lshr_b32 s53, s49, 3
s_lshl_b32 s53, s53, 1
s_add_u32 s96, s48, s53
s_and_b32 s96, s96, 7
s_and_b32 s78, s49, 1
s_add_u32 s53, s53, s78
s_lshl_b32 s79, 1, s96
s_and_b32 s79, s79, 0x90
s_cselect_b32 s98, 1, 0
s_andn2_b32 s98, s98, s78""")
    e(f"""v_lshlrev_b32 v1, 4, v0
s_mov_b32 s85, {LOG2E}
v_mov_b32 v8, {CNT}
v_mov_b32 v10, 0
v_mov_b32 v11, 0
v_mov_b32 v12, 0
v_mov_b32 v13, 0
s_cmp_lg_u32 s3, 0
s_cbranch_scc1 L_b0
ds_write_b128 v8, v[10:13]
ds_write_b128 v8, v[10:13] offset:16
L_b0:
s_waitcnt lgkmcnt(0)
s_mov_b32 s94, {EW}
{"" if bare & 2 else "s_load_dword s94, s[26:27], s94"}
s_mov_b32 s44, s26
s_mov_b32 s45, s27
s_mov_b32 s46, {WS_SIZE}
s_mov_b32 s47, 0x20000
s_cmp_ge_u32 s3, 4
s_cbranch_scc1 L_svc""")

    e(f"""s_add_u32 s56, s3, s48
s_and_b32 s56, s56, 3
s_lshl_b32 s58, s56, 5
s_add_u32 s58, s58, s49
s_lshl_b32 s59, s58, 21
s_add_u32 s28, s6, s59
s_addc_u32 s29, s7, 0
s_mov_b32 s30, {2<<20}
s_mov_b32 s31, 0x20000
s_add_u32 s32, s8, s59
s_addc_u32 s33, s9, 0
{CLS}
s_lshl_b32 s54, s50, 13
s_lshl_b32 s34, s58, 14
s_add_u32 s34, s34, {SCW}
s_lshl_b32 s58, s58, 7
s_add_u32 s58, s58, {CW}
s_add_u32 s36, s26, s58
s_addc_u32 s37, s27, 0
s_lshl_b32 s35, s3, 11
s_add_u32 s35, s35, {SCL}
""")
    if lay:
        e(f"""v_bfe_u32 v3, v0, 4, 1
v_lshlrev_b32 v3, {16 if lay == 2 else 15}, v3
v_bfe_u32 v2, v0, 5, 1
v_lshl_or_b32 v3, v2, 8, v3
v_and_b32 v2, 15, v0
v_lshl_or_b32 v2, v2, 4, v3""")
    else:
        e("v_add_u32 v2, 4096, v1")
    e("s_barrier")
    def baddr(src):
        if not lay:
            return f"s_lshl_b32 s76, {src}, 14\ns_add_u32 s76, s76, s54"
        if lay == 2:
            return f"""s_lshr_b32 s76, {src}, 3
s_lshl_b32 s76, s76, 17
s_and_b32 s92, {src}, 1
s_lshl_b32 s92, s92, 12
s_add_u32 s76, s76, s92
s_and_b32 s92, {src}, 6
s_lshl_b32 s92, s92, 13
s_add_u32 s76, s76, s92
s_add_u32 s76, s76, s54"""
        if lay == 3:
            return f"""s_lshr_b32 s76, {src}, 3
s_lshl_b32 s76, s76, 17
s_and_b32 s92, {src}, 1
s_lshl_b32 s92, s92, 14
s_add_u32 s76, s76, s92
s_and_b32 s92, {src}, 2
s_lshl_b32 s92, s92, 15
s_add_u32 s76, s76, s92
s_and_b32 s92, {src}, 4
s_lshl_b32 s92, s92, 10
s_add_u32 s76, s76, s92
s_add_u32 s76, s76, s54"""
        return f"""s_lshr_b32 s76, {src}, 2
s_lshl_b32 s76, s76, 16
s_and_b32 s92, {src}, 1
s_lshl_b32 s92, s92, 12
s_add_u32 s76, s76, s92
s_and_b32 s92, {src}, 2
s_lshl_b32 s92, s92, 13
s_add_u32 s76, s76, s92
s_add_u32 s76, s76, s54"""
    def issue(u):
        if rot:
            e("s_add_u32 s76, s76, s82\ns_and_b32 s76, s76, 0x1fffff")
        for j in range(8):
            r = KB + u * 32 + j * 4
            if lay:
                e(f"buffer_load_dwordx4 v[{r}:{r+3}], v2, s[28:31], s76 offen offset:{j*512} {kvflag}")
            else:
                e(f"buffer_load_dwordx4 v[{r}:{r+3}], v{1 + (j >> 2)}, s[28:31], s76 offen offset:{(j&3)*1024} {kvflag}")
    if mix:
        snext = """s_add_u32 s76, s51, s48
s_and_b32 s76, s76, 7
s_lshl_b32 s92, s51, 3
s_add_u32 s76, s76, s92
s_lshl_b32 s76, s76, 13
s_add_u32 s51, s51, 1"""
    else:
        snext = baddr("s51") + "\n" + ("s_bitcmp1_b32 s51, 0\ns_cselect_b32 s92, 7, 1\ns_add_u32 s51, s51, s92" if alt else "s_add_u32 s51, s51, 4")
    for u in range(R):
        e(snext + f"\ns_add_u32 s{10+u}, s35, {64*u}")
        issue(u)
    stamp(1)
    e(f"""s_lshl_b32 s78, s56, 2
v_mov_b32 v9, s78
v_and_b32 v3, 15, v0
v_lshlrev_b32 v3, 4, v3
s_lshl_b32 s78, s56, 8
v_add_u32 v3, s78, v3
s_mov_b32 s83, {spin}
L_qw:
ds_read_b32 v8, v9 offset:{CNT+16}
ds_read_b128 v[4:7], v3 offset:{QL}
s_sub_u32 s83, s83, 1
s_cbranch_scc1 L_q_ok
s_waitcnt lgkmcnt(0)
v_cmp_eq_u32 vcc, 0, v8
{"" if noq else "s_cbranch_vccnz L_qw"}
L_q_ok:
s_waitcnt lgkmcnt(0)
s_add_u32 s94, s94, 1""")
    stamp(3)
    for r in range(8, 16):
        e(f"v_mov_b32 v{r}, 0")
    e(f"""v_mov_b32 v16, 0xff7fffff
v_mov_b32 v17, 0
s_mov_b32 s84, {SCALE}
s_mov_b32 s86, 0xffff0000
v_and_b32 v28, 0x3c, v0
v_lshlrev_b32 v3, 1, v28
v_lshrrev_b32 v30, 1, v0
v_lshlrev_b32 v30, 2, v30
v_and_b32 v31, 1, v0
v_add_lshl_u32 v30, v30, v31, 2
v_lshlrev_b32 v31, 2, v0
s_mov_b32 s87, {R}
s_mov_b32 s88, {R}
s_mov_b32 s77, 0
s_mov_b32 s55, 0
s_mov_b32 s89, 0
{"s_lshr_b32 s17, s48, 2" if orc is None else "s_bfe_u32 s17, s48, 0x10001"}
s_add_u32 s17, s17, {4*S}
s_bitcmp0_b32 s48, 0
s_cselect_b32 s14, {SE}, {S}
s_cmp_eq_u32 s50, 0
s_cselect_b32 s15, {LIMS[0]}, {LIMS[1]}
s_cselect_b32 s16, {LIMS[1]}, {LIMS[0]}
s_mov_b32 s80, 0xaaaaaaaa
s_mov_b32 s81, 0xaaaaaaaa
s_mov_b32 s83, {spin}""")
    def boundary_out(ph, u, have, none):
        S = (S1, S2)[ph]; LIM = (LIM1, LIM2)[ph]
        nm = f"{ph}{have}"
        e(f"""L_need{nm}:
s_cmp_ge_u32 s87, s14
s_cbranch_scc1 L_dyn{nm}
{snext}
s_lshl_b32 s42, s87, 6
s_add_u32 s42, s42, s35
s_add_u32 s87, s87, 1""")
        if c2:
            e(f"""s_cmp_lt_u32 s87, {S}
s_cselect_b32 s92, 0, 2
s_sub_u32 s51, s51, s92
s_cmp_eq_u32 s87, {S}
s_cselect_b32 s51, s17, s51""")
        if ph == 0:
            e(f"""s_cmp_lg_u32 s87, s14
s_cbranch_scc1 {have}_go
v_mov_b32 v26, {CNT}
v_mov_b32 v27, 1
ds_write_b32 v26, v27 offset:8""")
        else:
            e(f"""s_cmp_lg_u32 s87, {2*R+1}
s_cbranch_scc1 {have}_go
s_mov_b32 s90, 0x10000
s_atomic_add s90, s[36:37], 8""")
        e(f"s_branch {have}_go\nL_dyn{nm}:")
        if LIM == 0:
            e(f"s_branch {none}")
            return
        e(f"""L_early{nm}:
s_sub_u32 s83, s83, 1
s_cbranch_scc1 {none}""")
        if qa and (ph == 1 or qk):
            e(f"s_cmp_ge_u32 s55, s99\ns_cbranch_scc1 {none}")
        if ph == 0:
            e(f"s_cmp_lt_u32 s55, {k4}\ns_cselect_b32 s95, 4, 2" if k4 else "s_mov_b32 s95, 2")
        else:
            e(f"s_add_u32 s92, s55, {one}\ns_cmp_lt_u32 s92, s15\ns_cselect_b32 s95, 2, 1")
            if v4:
                e(f"s_cmp_lt_u32 s55, {v4}\ns_cselect_b32 s95, 4, s95")
        e(f"""s_lshl_b32 s93, s50, 3
s_lshl_b32 s90, s95, s93
s_mov_b32 s91, 0
s_atomic_add_x2 s[90:91], s[36:37], {8*ph} glc
s_waitcnt lgkmcnt(0)
s_cmp_lg_u32 s91, s94
s_cbranch_scc1 L_early{nm}
s_lshr_b32 s55, s90, s93
s_and_b32 s55, s55, 0xff
s_cmp_lt_u32 s55, s15
s_cbranch_scc1 L_got{nm}
s_cmp_eq_u32 s89, 1
s_cbranch_scc1 {none}
s_xor_b32 s93, s93, 8
s_lshr_b32 s55, s90, s93
s_and_b32 s55, s55, 0xff
s_cmp_ge_u32 s55, s16
s_cbranch_scc1 {none}
s_mov_b32 s15, s16
s_mov_b32 s89, 1
s_xor_b32 s50, s50, 1
s_xor_b32 s54, s54, 0x2000
s_branch L_early{nm}
L_got{nm}:""")
        if qa and (ph == 1 or qk):
            e(f"""s_cmp_ge_u32 s55, {qa}
s_cselect_b32 s92, {LIM - qm}, -1
s_cmp_eq_u32 s99, -2
s_cselect_b32 s99, s92, s99""")
        if ph == 1 and not nopub:
            e(f"""L_vd{nm}:
s_lshr_b32 s92, s90, 16
s_cmp_ge_u32 s92, 8
s_cbranch_scc1 L_vok{nm}
s_sub_u32 s83, s83, 1
s_cbranch_scc1 L_vok{nm}
s_mov_b32 s90, 0
s_atomic_add s90, s[36:37], 8 glc
s_waitcnt lgkmcnt(0)
s_branch L_vd{nm}
L_vok{nm}:""")
        e(f"""s_sub_u32 s77, s15, s55
s_sub_u32 s57, 128, s77
s_min_u32 s77, s77, s95
s_add_u32 s55, s55, s95""")
        if stamps:
            e(f"s_lshl_b32 s92, s77, {16*ph}\ns_add_u32 s97, s97, s92")
        e(f"s_branch {have}")
    def boundary_in(ph, have):
        e(f"""s_cmp_eq_u32 s77, 0
s_cbranch_scc1 L_need{ph}{have}
{have}:
s_sub_u32 s77, s77, 1
{baddr("s57")}
s_lshr_b32 s42, s57, 1
s_lshl_b32 s42, s42, 8
s_lshr_b32 s92, s54, 6
s_add_u32 s42, s42, s92
s_and_b32 s92, s57, 1
s_lshl_b32 s92, s92, {2*ph}
s_and_b32 s92, s92, 4
s_add_u32 s42, s42, s92
s_add_u32 s42, s42, s34
s_add_u32 s57, s57, 1
{have}_go:""")
    nf = [0]
    def score_fetch(u):
        n = nf[0]; nf[0] += 1
        r = SB + u
        e(f"""s_cmp_ge_u32 s42, {SCW}
s_cbranch_scc1 L_sf{n}
v_add_u32 v26, s42, v28
ds_read_b32 v{r}, v26
s_branch L_sg{n}
L_sf{n}:
{"" if nopub & 2 else f"buffer_load_dword v{r}, v3, s[44:47], s42 offen {scf};"}
L_sg{n}:""")
    def kstep(u, nextv):
        k = KB + u * 32
        e(f"s_waitcnt vmcnt({kw})")
        for j in range(8):
            e(f"v_dot2_f32_bf16 v{18+j}, v{k+4*j}, v4, 0")
        for i in range(1, 4):
            for j in range(8):
                e(f"v_dot2c_f32_bf16 v{18+j}, v{k+4*j+i}, v{4+i}")
        e(f"s_mov_b32 s43, s{10+u}")
        if nextv:
            score_fetch(u)
        else:
            e(f"s_mov_b32 s{10+u}, s42")
        issue(u)
        n = nf[0]; nf[0] += 1
        e(f"""v_add_f32_dpp v26, v18, v18 row_ror:8 row_mask:0xf bank_mask:0x3
v_add_f32_dpp v27, v20, v20 row_ror:8 row_mask:0xf bank_mask:0x3
v_add_f32_dpp v26, v19, v19 row_ror:8 row_mask:0xf bank_mask:0xc
v_add_f32_dpp v27, v21, v21 row_ror:8 row_mask:0xf bank_mask:0xc
v_add_f32_dpp v20, v22, v22 row_ror:8 row_mask:0xf bank_mask:0x3
v_add_f32_dpp v21, v24, v24 row_ror:8 row_mask:0xf bank_mask:0x3
v_add_f32_dpp v20, v23, v23 row_ror:8 row_mask:0xf bank_mask:0xc
v_add_f32_dpp v21, v25, v25 row_ror:8 row_mask:0xf bank_mask:0xc
v_add_f32_dpp v18, v26, v26 row_half_mirror row_mask:0xf bank_mask:0x5
v_add_f32_dpp v18, v27, v27 row_half_mirror row_mask:0xf bank_mask:0xa
v_add_f32_dpp v19, v20, v20 row_half_mirror row_mask:0xf bank_mask:0x5
v_add_f32_dpp v19, v21, v21 row_half_mirror row_mask:0xf bank_mask:0xa
s_nop 0
v_add_f32_dpp v18, v18, v18 quad_perm:[1,0,3,2] {DP}
v_add_f32_dpp v19, v19, v19 quad_perm:[1,0,3,2] {DP}
s_nop 0
v_add_f32_dpp v18, v18, v18 quad_perm:[2,3,0,1] {DP}
v_add_f32_dpp v19, v19, v19 quad_perm:[2,3,0,1] {DP}
v_cvt_pk_bf16_f32 v18, v18, v19
v_lshlrev_b32 v20, 16, v18
v_and_b32 v21, s86, v18
v_mul_f32 v20, s84, v20
v_mul_f32 v21, s84, v21
v_cvt_pk_bf16_f32 v18, v20, v21
s_cmp_ge_u32 s43, {SCW}
s_cbranch_scc1 L_pub{n}
v_add_u32 v26, s43, v28
ds_write_b32 v26, v18
s_branch L_pe{n}
L_pub{n}:""")
        if u % 2 == 0:
            e("v_mov_b32 v29, v18")
        else:
            e(f"""v_cndmask_b32 v18, v29, v18, s[80:81]
ds_bpermute_b32 v19, v30, v18
s_mov_b64 exec, 0xffffffff
s_waitcnt lgkmcnt(0)
{"" if nopub & 1 else f"buffer_store_dword v19, v31, s[44:47], s43 offen {pubf};"}
s_mov_b64 exec, -1""")
        e(f"L_pe{n}:")
    nw = [0]
    def vstep(u, last):
        v = KB + u * 32
        r = SB + u
        n = nw[0]; nw[0] += 1
        def wait(extra, tag, lg=""):
            if not last:
                e(f"s_waitcnt vmcnt({8*(R-1)+extra}){lg}")
                return
            for j in range(R - 1, 0, -1):
                e(f"s_cmp_lg_u32 s88, {j}\ns_cbranch_scc1 L_w{n}{tag}_{j}\ns_waitcnt vmcnt({8*j+extra}){lg}\ns_branch L_w{n}{tag}\nL_w{n}{tag}_{j}:")
            e(f"s_waitcnt vmcnt({extra}){lg}\nL_w{n}{tag}:")
        spl = sp == 1 or (sp == 2 and last)
        if not last and not spl:
            e(f"s_waitcnt vmcnt({vw}) lgkmcnt(0)")
        else:
            wait(8 if spl else 0, "a", " lgkmcnt(0)")
        e(f"""v_lshlrev_b32 v20, 16, v{r}
v_and_b32 v21, s86, v{r}
v_max_f32 v22, v20, v21
s_nop 1
v_max_f32_dpp v22, v22, v22 row_ror:8 {DP}
s_nop 1
v_max_f32_dpp v22, v22, v22 row_ror:4 {DP}
v_max_f32 v22, v16, v22
v_sub_f32 v20, v20, v22
v_sub_f32 v21, v21, v22
v_sub_f32 v24, v16, v22
v_mul_f32 v20, s85, v20
v_mul_f32 v21, s85, v21
v_mul_f32 v24, s85, v24
v_exp_f32 v20, v20
v_exp_f32 v21, v21
v_exp_f32 v24, v24
v_mov_b32 v16, v22
v_cvt_pk_bf16_f32 v18, v20, 0
v_cvt_pk_bf16_f32 v22, v21, 0
v_fma_f32 v17, v17, v24, v20
v_lshlrev_b32 v19, 16, v18
v_lshlrev_b32 v23, 16, v22
v_add_f32 v17, v17, v21""")
        for i in range(4):
            e(f"v_pk_mul_f32 v[{8+2*i}:{9+2*i}], v[{8+2*i}:{9+2*i}], v[24:25] op_sel_hi:[1,0]")
        for j in range(8):
            if spl and j in (0, 4):
                wait(4 - j, "bc"[j >> 2])
            ln = (0, 8, 4, 12)[j & 3]
            p = 18 + 4 * (j >> 2)
            for i in range(4):
                e(f"v_dot2c_f32_bf16_dpp v{8+2*i}, v{p}, v{v+4*j+i} row_newbcast:{ln} {DP}")
                e(f"v_dot2c_f32_bf16_dpp v{9+2*i}, v{p+1}, v{v+4*j+i} row_newbcast:{ln} {DP}")
        if not last:
            if lc:
                boundary_in(1, f"L_hc{u}")
            score_fetch(u)
            issue(u)
    late = []
    e("L_A0:")
    for u in range(R):
        if u:
            e(f"L_A{u}:")
        boundary_in(0, f"L_ha{u}")
        kstep(u, False)
    e("s_branch L_A0")
    for u in range(R):
        e(f"L_B{u}:")
        boundary_in(1, f"L_hb{u}")
        kstep(u, True)
        e(f"s_sub_u32 s88, s88, 1\ns_cmp_eq_u32 s88, 0\ns_cbranch_scc1 L_C{(u+1)%R}")
    e("s_branch L_B0")
    for u in range(R):
        e(f"L_C{u}:")
        if not lc:
            boundary_in(1, f"L_hc{u}")
        vstep(u, False)
    e("s_branch L_C0")
    for u in range(R):
        boundary_out(0, u, f"L_ha{u}", f"L_sw{u}")
        e(f"""L_sw{u}:
s_mov_b32 s28, s32
s_mov_b32 s29, s33
{CLS}
s_lshl_b32 s54, s50, 13
s_mov_b32 s87, 0
s_mov_b32 s55, 0
s_cmp_eq_u32 s50, 0
s_cselect_b32 s15, {LIMS[0]}, {LIMS[1]}
s_mov_b32 s89, 0""")
        stamp(6)
        e(f"s_branch L_B{u}")
        boundary_out(1, u, f"L_hb{u}", "L_never")
        boundary_out(1, u, f"L_hc{u}", f"L_dr{u}")
    e("L_never:\ns_branch L_sdone")
    for u in range(R):
        if lc:
            late.append(f"L_dr{u}:\ns_mov_b32 s88, {R-1}\ns_branch L_D{(u+1)%R}")
            e(f"L_D{u}:\ns_sub_u32 s88, s88, 1")
        else:
            e(f"L_dr{u}:\ns_mov_b32 s88, {R}\nL_D{u}:\ns_sub_u32 s88, s88, 1")
        vstep(u, True)
        e(f"s_cmp_eq_u32 s88, 0\ns_cbranch_scc1 L_sdone\ns_branch L_D{(u+1)%R}")
    for t in late:
        e(t)
    e("L_sdone:")
    stamp(5)
    e(f"""v_mov_b32 v18, v16
v_mov_b32 v19, v16
s_lshl_b32 s78, s2, 11
s_lshl_b32 s79, s56, 9
v_permlane16_swap_b32 v18, v19
s_add_u32 s78, s78, s79
v_max_f32 v18, v18, v19
v_mov_b32 v19, v18
s_add_u32 s78, s78, {PO}
s_lshl_b32 s79, s2, {6 + mlw}
v_permlane32_swap_b32 v18, v19
s_lshl_b32 s80, s56, {4 + mlw}
v_max_f32 v18, v18, v19
v_sub_f32 v20, v16, v18
v_mul_f32 v20, s85, v20
v_exp_f32 v20, v20
s_add_u32 s79, s79, s80
v_mul_f32 v17, v17, v20""")
    for r in range(8, 16):
        e(f"v_mul_f32 v{r}, v20, v{r}")
    e(f"""v_add_f32_dpp v17, v17, v17 row_ror:8 {DP}
s_add_u32 s79, s79, {PM}
v_permlane32_swap_b32 v8, v12
v_permlane32_swap_b32 v9, v13
v_add_f32_dpp v17, v17, v17 row_ror:4 {DP}
v_permlane32_swap_b32 v10, v14
v_permlane32_swap_b32 v11, v15
v_mov_b32 v19, v17
v_add_f32 v8, v8, v12
v_add_f32 v9, v9, v13
v_add_f32 v10, v10, v14
v_add_f32 v11, v11, v15
v_permlane16_swap_b32 v17, v19
v_add_u32 v20, s94, v0
v_permlane16_swap_b32 v8, v10
v_permlane16_swap_b32 v9, v11
v_add_f32 v17, v17, v19
v_add_f32 v8, v8, v10
v_mov_b32 v19, v17
v_add_f32 v9, v9, v11
s_movk_i32 s80, 0xff
v_permlane32_swap_b32 v17, v19
v_lshlrev_b32 v22, 3, v0
v_add_u32 v21, 64, v20
v_bfi_b32 v8, s80, v20, v8
v_bfi_b32 v9, s80, v21, v9
v_add_f32 v19, v17, v19
buffer_store_dwordx2 v[8:9], v22, s[44:47], s78 offen sc1
v_mov_b32 v20, s94
v_mov_b32 v21, s94
s_mov_b64 exec, {(1 << (1 << mlw)) - 1}
buffer_store_dwordx4 v[18:21], v1, s[44:47], s79 offen sc1
s_mov_b64 exec, -1
s_barrier""")
    e(f"""s_cmp_ge_u32 s3, {0 if notail else 2}
s_cbranch_scc1 L_bar_done
s_cmp_eq_u32 s3, 0
s_cbranch_scc1 L_red
s_cmp_eq_u32 s98, 0
s_cbranch_scc1 L_bar_done
s_mov_b32 s53, 8
L_red:
s_bfe_u32 s78, s52, 0x20001
s_mul_i32 s78, s78, 1152
s_lshr_b32 s79, s52, 3
s_lshl_b32 s79, s79, 5
s_add_u32 s78, s78, s79
s_and_b32 s79, s52, 1
s_lshl_b32 s79, s79, 4
s_add_u32 s78, s78, s79
s_lshl_b32 s79, s53, 7
s_add_u32 s78, s78, s79
v_and_b32 v9, 1, v0
v_lshlrev_b32 v10, 3, v9
s_mov_b32 s28, s4
s_mov_b32 s29, s5
s_mov_b32 s30, 4608
s_mov_b32 s31, 0x20000
buffer_load_dwordx2 v[16:17], v10, s[28:31], s78 offen
s_mov_b32 s40, s22
s_mov_b32 s41, s23
s_mov_b32 s42, 4608
s_mov_b32 s43, 0x20000
v_lshrrev_b32 v8, 1, v0
v_lshlrev_b32 v8, 10, v8
v_lshl_add_u32 v8, v9, 4, v8
s_lshl_b32 s79, s53, 15
s_lshl_b32 s80, s52, 5
s_add_u32 s79, s79, s80
s_add_u32 s79, s79, {YW}
s_lshl_b32 s80, s52, 3
s_add_u32 s80, s80, s94
v_lshl_add_u32 v24, v9, 2, s80
v_add_u32 v25, 1, v24
v_add_u32 v26, 2, v24
v_add_u32 v27, 3, v24
s_mov_b32 s83, {spin}
s_barrier
L_h2:
buffer_load_dwordx4 v[12:15], v8, s[44:47], s79 offen sc1
s_sub_u32 s83, s83, 1
s_cbranch_scc1 L_h2_done
s_waitcnt vmcnt(0)
v_xor_b32 v20, v24, v12
v_bitop3_b32 v20, v20, v13, v25 {OR_XOR}
v_bitop3_b32 v20, v20, v14, v26 {OR_XOR}
v_bitop3_b32 v20, v20, v15, v27 {OR_XOR}
v_and_b32 v20, 0xff, v20
s_nop 1
v_or_b32_dpp v20, v20, v20 quad_perm:[1,0,3,2] {DP}
v_cmp_ne_u32 vcc, 0, v20
s_and_b64 exec, exec, vcc
s_cbranch_execnz L_h2
L_h2_done:
s_mov_b64 exec, -1
s_waitcnt vmcnt(0)""")
    if eearly:
        e(f"""s_add_u32 s79, s2, s3
s_cmp_lg_u32 s79, 0
s_cbranch_scc1 L_noe
v_mov_b32 v24, s94
v_mov_b32 v25, {EW}
s_mov_b64 exec, 1
buffer_store_dword v24, v25, s[44:47], 0 offen
s_mov_b64 exec, -1
L_noe:""")
    e("s_movk_i32 s84, 0xff00")
    for r in range(12, 16):
        e(f"v_and_b32 v{r}, s84, v{r}")
    for dpp in ("quad_perm:[2,3,0,1]", "row_ror:4", "row_ror:8"):
        for r in range(12, 16):
            e(f"v_add_f32_dpp v{r}, v{r}, v{r} {dpp} {DP}")
    for sw in (16, 32):
        for r in range(4):
            e(f"v_mov_b32 v{20+r}, v{12+r}")
        for r in range(4):
            e(f"v_permlane{sw}_swap_b32 v{12+r}, v{20+r}")
        for r in range(4):
            e(f"v_add_f32 v{12+r}, v{12+r}, v{20+r}")
    e(f"""v_lshlrev_b32 v20, 16, v16
v_and_b32 v21, 0xffff0000, v16
v_lshlrev_b32 v22, 16, v17
v_and_b32 v23, 0xffff0000, v17
v_add_f32 v12, v12, v20
v_add_f32 v13, v13, v21
v_add_f32 v14, v14, v22
v_add_f32 v15, v15, v23
v_cvt_pk_bf16_f32 v12, v12, v13
v_cvt_pk_bf16_f32 v13, v14, v15
s_mov_b64 exec, 3
buffer_store_dwordx2 v[12:13], v10, s[40:43], s78 offen
s_branch L_done
L_bar_done:
s_barrier
s_branch L_done""")

    def srd(ptr, nbytes):
        e(f"s_mov_b32 s40, s{ptr}\ns_mov_b32 s41, s{ptr+1}\ns_mov_b32 s42, {0 if now & 2 else nbytes}\ns_mov_b32 s43, 0x20000")
    def dma(n_ins, step, ldsbase, vreg, alt=False):
        for n in range(n_ins):
            e(f"s_add_u32 m0, s79, {ldsbase + 1024*n}")
            e(f"s_add_u32 s78, s78, {step}" if n else "s_nop 0")
            e(f"buffer_load_dwordx4 v{vreg + (n & 1 if alt else 0)}, s[40:43], s78 offen {wflag} lds")
    def proj_tiles(stripe_sreg, wo_base, wd_base, late=False):
        e(f"s_lshl_b32 s81, s{stripe_sreg}, 7")
        if late or defer != 2:
            srd(12, 4096 * 1152)
            e(f"""s_mul_i32 s78, s52, {128*1152}
s_add_u32 s78, s78, s81
s_mul_i32 s79, s56, {32*1152}
s_add_u32 s78, s78, s79
s_lshl_b32 s79, s56, 12""")
            dma(4, 8 * 1152, wo_base, 31)
        if late and defer == 2:
            return
        srd(20, 4608 * 1152)
        e(f"""s_mul_i32 s78, s52, {144*1152}
s_add_u32 s78, s78, s81
s_mul_i32 s79, s57, {8*1152}
s_add_u32 s78, s78, s79
s_lshl_b32 s79, s57, 10""")
        dma(5, 8 * 1152, wd_base, 31)
    npj = [0]
    def all_proj(late=False):
        n = npj[0]; npj[0] += 1
        proj_tiles(53, WOT, WDT, late)
        e(f"s_cmp_eq_u32 s98, 0\ns_cbranch_scc1 L_pj{n}\ns_mov_b32 s80, 8")
        proj_tiles(80, FT, FT + 16384, late)
        e(f"L_pj{n}:")
    def pick_batch(d, a):
        e(f"""v_cndmask_b32 v{a}, v{a}, v{a+1}, s[38:39]
v_cndmask_b32 v{a+2}, v{a+2}, v{a+3}, s[38:39]
v_cndmask_b32 v{d}, v{a}, v{a+2}, s[58:59]""")
    tn = [0]
    def ticket_init():
        n = tn[0]; tn[0] += 1
        e(f"""s_cmp_lg_u32 s56, 3
s_cbranch_scc1 L_ti{n}
s_cmp_ge_u32 s2, 128
s_cbranch_scc1 L_ti{n}
v_mov_b32 v22, 0
v_mov_b32 v23, s94
v_lshlrev_b32 v24, 3, v0
s_mov_b64 exec, 0xffff
s_lshl_b32 s79, s2, 7
s_add_u32 s79, s79, {CW}
buffer_store_dwordx2 v[22:23], v24, s[44:47], s79 offen sc1
s_mov_b64 exec, -1
L_ti{n}:""")
    qn = [0]
    def qfetch():
        ticket_init()
        n = qn[0]; qn[0] += 1
        e(f"""v_lshrrev_b32 v14, 3, v0
v_lshlrev_b32 v14, 8, v14
v_and_b32 v15, 7, v0
v_lshl_add_u32 v14, v15, 3, v14
s_lshl_b32 s88, s56, 6
s_lshl_b32 s89, s49, 11
s_add_u32 s88, s88, s89
s_add_u32 s88, s88, {QW}
s_lshl_b32 s89, s56, 8
v_lshl_add_u32 v3, v0, 2, s89
s_lshl_b32 s89, s56, 2
v_mov_b32 v2, s89
s_lshl_b32 s89, s56, 4
s_add_u32 s89, s89, s94
v_lshl_add_u32 v18, v15, 1, s89
v_add_u32 v19, 1, v18
s_mov_b32 s83, {spin}
L_q_again{n}:
buffer_load_dwordx2 v[16:17], v14, s[44:47], s88 offen sc1
s_sub_u32 s83, s83, 1
s_cbranch_scc1 L_q_got{n}
s_waitcnt vmcnt(0)
v_xor_b32 v15, v18, v16
v_bitop3_b32 v15, v15, v17, v19 {OR_XOR}
v_and_b32 v15, 0xffff, v15
v_cmp_ne_u32 vcc, 0, v15
s_cbranch_vccnz L_q_again{n}
L_q_got{n}:
s_mov_b32 s89, 0x07060302
v_perm_b32 v16, v17, v16, s89
v_mov_b32 v15, 1
ds_write_b32 v3, v16 offset:{QL}
ds_write_b32 v2, v15 offset:{CNT+16}
s_setprio {svcprio}""")
        stamp(4)
    if bare & 1:
        e("L_svc:\ns_endpgm\nL_svc_x:")
    e(f"""{"" if bare & 1 else "L_svc:"}
s_setprio {svc0}
s_sub_u32 s56, s3, 4
s_mul_i32 s57, s56, 9
s_lshr_b32 s57, s57, 1
v_lshrrev_b32 v8, 3, v0
v_and_b32 v10, 7, v0
v_lshlrev_b32 v10, 4, v10
v_mul_u32_u24 v31, 1152, v8
v_add_u32 v31, v31, v10
s_mov_b32 s58, 0
s_mov_b32 s59, -1
s_sub_u32 s78, s96, 5
s_cmp_lt_u32 s78, 2
s_cbranch_scc1 L_tq
s_and_b32 s78, s49, 1
s_add_u32 s78, s78, 4
s_cmp_ge_u32 s96, s78
s_cbranch_scc1 L_notask
s_mul_i32 s80, s49, 9
s_lshr_b32 s80, s80, 1
s_add_u32 s80, s80, s96
s_lshl_b32 s51, s80, 10
s_add_u32 s51, s51, {GU}
s_cmp_ge_u32 s80, 72
s_cselect_b32 s40, s18, s16
s_cselect_b32 s41, s19, s17
s_cselect_b32 s78, 72, 0
s_mov_b32 s42, {0 if now & 1 else 576*9216}
s_sub_u32 s80, s80, s78
s_movk_i32 s50, 9216
s_branch L_task
L_tq:
s_lshl_b32 s80, s49, 1
s_add_u32 s80, s80, s78
s_lshl_b32 s51, s80, 10
s_add_u32 s51, s51, {QW}
s_mov_b32 s40, s10
s_mov_b32 s41, s11
s_mov_b32 s42, {576*8192}
s_movk_i32 s50, 8192
L_task:
s_mov_b32 s43, 0x20000
s_mul_i32 s36, s56, 1152
s_add_u32 s36, s4, s36
s_addc_u32 s37, s5, 0
s_mov_b32 s38, 1152
s_mov_b32 s39, 0x20000
v_lshlrev_b32 v7, 2, v0""")
    if st2 == 1:
        stamp(2)
    for j in range(5):
        e(f"buffer_load_dword v{2+j}, v7, s[36:39], 0 offen offset:{256*j}")
    if swz:
        e("""v_bfe_u32 v9, v0, 4, 1
v_lshlrev_b32 v9, 5, v9
v_xor_b32 v10, v10, v9""")
    e(f"""v_mul_u32_u24 v8, s50, v8
v_add_u32 v8, v8, v10
v_xor_b32 v9, 64, v8
s_lshl_b32 s78, s80, 7
s_mul_i32 s79, s56, 144
s_mul_i32 s79, s79, s50
s_add_u32 s78, s78, s79
s_lshl_b32 s82, s50, 3
s_lshl_b32 s79, s56, 8
s_add_u32 s51, s51, s79
s_mul_i32 s79, s56, {18*1024}""")
    dma(18, "s82", FT, 8, bool(swz))
    if pj0 == 1:
        proj_tiles(53, WOT, WDT)
    if st2 == 4:
        stamp(2)
    e("s_barrier")
    if pj0 == 2:
        proj_tiles(53, WOT, WDT)
    NPJ = 0 if not pj0 else (5 if defer == 2 else 9)
    NPX = 0 if pj0 >= 3 else NPJ
    if st2 == 2:
        stamp(2)
    e(f"s_waitcnt vmcnt({18 + NPX})")
    if st2 == 3:
        stamp(2)
    def wave_sum(r, t):
        for k in (8, 4, 2, 1):
            e(f"s_nop 1\nv_add_f32_dpp v{r}, v{r}, v{r} row_ror:{k} {DP}")
        for sw in (16, 32):
            e(f"v_mov_b32 v{t}, v{r}\ns_nop 1\nv_permlane{sw}_swap_b32 v{r}, v{t}\ns_nop 0\nv_add_f32 v{r}, v{r}, v{t}")
    def rbf(d, s):
        e(f"v_cvt_pk_bf16_f32 v{d}, v{s}, v{s}\nv_and_b32 v{d}, 0xffff0000, v{d}")
    for j in range(5):
        e(f"v_lshlrev_b32 v{10+2*j}, 16, v{2+j}\nv_and_b32 v{11+2*j}, 0xffff0000, v{2+j}")
    e("v_add_f32 v20, v10, v11")
    for j in range(12, 20):
        e(f"v_add_f32 v20, v20, v{j}")
    wave_sum(20, 21)
    e("v_mul_f32 v20, 0x3ae38e39, v20")
    e("v_cmp_gt_u32 vcc, 32, v0")
    for j in range(10):
        e(f"v_sub_f32 v{22+j if j < 8 else 2+j-8}, v{10+j}, v20")
    e("v_cndmask_b32 v2, 0, v2, vcc\nv_cndmask_b32 v3, 0, v3, vcc")
    e("v_mul_f32 v21, v2, v2\nv_fmac_f32 v21, v3, v3")
    for j in range(8):
        e(f"v_fmac_f32 v21, v{22+j}, v{22+j}")
    wave_sum(21, 22)
    e("v_mul_f32 v21, 0x3ae38e39, v21")
    rbf(21, 21)
    e("v_add_f32 v21, 0x3727c5ac, v21")
    rbf(21, 21)
    e("v_sqrt_f32 v21, v21\ns_nop 0")
    rbf(21, 21)
    e("v_rcp_f32 v21, v21")
    rbf(20, 20)
    for j in range(10):
        e(f"v_sub_f32 v{10+j}, v{10+j}, v20")
    for j in range(5):
        e(f"v_cvt_pk_bf16_f32 v{2+j}, v{10+2*j}, v{11+2*j}")
    for j in range(5):
        e(f"v_lshlrev_b32 v{10+2*j}, 16, v{2+j}\nv_and_b32 v{11+2*j}, 0xffff0000, v{2+j}")
    for j in range(10):
        e(f"v_mul_f32 v{10+j}, v{10+j}, v21")
    for j in range(5):
        e(f"v_cvt_pk_bf16_f32 v{2+j}, v{10+2*j}, v{11+2*j}")
    e("s_mul_i32 s78, s56, 1152\nv_add_u32 v7, s78, v7")
    for j in range(4):
        e(f"ds_write_b32 v7, v{2+j} offset:{XN+256*j}")
    e(f"s_mov_b64 exec, 0xffffffff\nds_write_b32 v7, v6 offset:{XN+1024}\ns_mov_b64 exec, -1")
    if pj0 == 3:
        proj_tiles(53, WOT, WDT)
    if pj0 == 4:
        e("s_cmp_eq_u32 s50, 8192\ns_cbranch_scc1 L_qnp")
        proj_tiles(53, WOT, WDT)
        e("s_waitcnt vmcnt(9)\ns_branch L_qnq\nL_qnp:\ns_waitcnt vmcnt(0)\nL_qnq:")
    e(f"""v_lshrrev_b32 v8, 4, v0
v_lshlrev_b32 v9, 4, v8
v_lshlrev_b32 v8, 3, v8
v_bfe_u32 v10, v0, 2, 2
v_add_u32 v8, v8, v10
v_lshlrev_b32 v8, 7, v8
v_and_b32 v10, 3, v0
v_lshl_add_u32 v8, v10, 3, v8
v_mul_u32_u24 v10, 1152, v10
v_add_u32 v9, v9, v10
s_lshl_b32 s78, s56, 5
v_bfe_u32 v14, v0, 3, 2
v_lshlrev_b32 v14, 5, v14
v_and_b32 v14, {0x60 if swz else 0}, v14
v_xor_b32 v14, s78, v14
v_add_u32 v11, {FT}, v8
v_add_u32 v11, v11, v14
v_add_u32 v12, {9*4096}, v11
v_lshlrev_b32 v13, 2, v0""")
    for r in range(16, 20):
        e(f"v_mov_b32 v{r}, 0")
    e(f"""v_mov_b32 v29, {CNT}
v_mov_b32 v30, 1
s_mov_b32 s83, {spin}
s_waitcnt vmcnt({NPJ}) lgkmcnt(0)
s_add_u32 s94, s94, 1
s_mov_b32 s38, 0xffff0000
s_mov_b32 s39, 0xffff0000
s_mov_b64 exec, 1
ds_add_u32 v29, v30
s_mov_b64 exec, -1
L_wxn:
ds_read_b32 v30, v29
s_sub_u32 s83, s83, 1
s_cbranch_scc1 L_wxn_ok
s_waitcnt lgkmcnt(0)
v_cmp_gt_u32 vcc, 4, v30
s_cbranch_vccnz L_wxn
L_wxn_ok:
s_waitcnt lgkmcnt(0)""")
    stamp(1)
    def rd(s):
        base = 32 + (s % 5) * 8
        e(f"ds_read_b128 v[{base}:{base+3}], v9 offset:{XN+64*s}")
        sg, so = divmod(s, 9)
        e(f"ds_read_b64_tr_b16 v[{base+4}:{base+5}], v{11+sg} offset:{4096*so}")
        e(f"ds_read_b64_tr_b16 v[{base+6}:{base+7}], v{11+sg} offset:{4096*so+512}")
    for s in range(4):
        rd(s)
    for s in range(18):
        e(f"s_waitcnt lgkmcnt({min(3, 17-s)*3})")
        base = 32 + (s % 5) * 8
        e(f"v_mfma_f32_16x16x32_bf16 v[16:19], v[{base}:{base+3}], v[{base+4}:{base+7}], v[16:19]")
        if s + 4 < 18:
            rd(s + 4)
    e("v_add_u32 v21, s94, v0\ns_mov_b32 s78, 0x07060100\ns_nop 5")
    pick_batch(20, 16)
    e("""v_cvt_pk_bf16_f32 v20, v20, v20
v_perm_b32 v20, v20, v21, s78
buffer_store_dword v20, v13, s[44:47], s51 offen sc1""")
    if not st2:
        stamp(2)
    if pj0 == 4:
        e("s_cmp_lg_u32 s50, 8192\ns_cbranch_scc1 L_qnr")
        proj_tiles(53, WOT, WDT)
        e("L_qnr:")
    qfetch()
    if not defer and not pj0:
        proj_tiles(53, WOT, WDT)
    e("s_branch L_tick\nL_notask:")
    if defer != 1:
        all_proj()
    e("s_barrier\ns_waitcnt lgkmcnt(0)\ns_add_u32 s94, s94, 1\ns_mov_b32 s38, 0xffff0000\ns_mov_b32 s39, 0xffff0000")
    qfetch()
    e("L_tick:")
    e(f"""L_gu:
v_min_u32 v8, 35, v0
v_lshrrev_b32 v9, 2, v8
v_lshlrev_b32 v9, 8, v9
v_and_b32 v24, 3, v8
s_lshl_b32 s78, s56, 4
s_add_u32 s78, s78, s94
v_lshl_add_u32 v44, v24, 2, s78
v_add_u32 v45, 1, v44
v_add_u32 v46, 2, v44
v_add_u32 v47, 3, v44
v_lshl_add_u32 v24, v24, 4, v9
v_lshlrev_b32 v26, 3, v8
s_mul_i32 s78, s56, 288
v_add_u32 v26, s78, v26
s_mul_i32 s78, s52, 2304
s_lshl_b32 s79, s56, 6
s_add_u32 s78, s78, s79
s_add_u32 s78, s78, {GU}
s_add_u32 s79, s78, 73728
v_mov_b32 v29, {CNT}
s_mov_b32 s83, {spin}
{"" if hsleep else "s_setprio 0"}
L_late:
{f"s_sleep {hsleep}" if hsleep else ""}
ds_read_b32 v30, v29 offset:8
s_sub_u32 s83, s83, 1
s_cbranch_scc1 L_late_ok
s_waitcnt lgkmcnt(0)
v_cmp_eq_u32 vcc, 0, v30
s_cbranch_vccnz L_late
L_late_ok:
s_setprio {svcprio}
s_waitcnt lgkmcnt(0)
s_mov_b32 s83, {spin}
L_ph:
buffer_load_dwordx4 v[32:35], v24, s[44:47], s78 offen sc1
buffer_load_dwordx4 v[36:39], v24, s[44:47], s79 offen sc1
s_sub_u32 s83, s83, 1
s_cbranch_scc1 L_ph_done
s_waitcnt vmcnt(0)
v_xor_b32 v8, v44, v32""")
    for r in range(33, 40):
        e(f"v_bitop3_b32 v8, v8, v{r}, v{44+(r&3)} {OR_XOR}")
    e("""v_and_b32 v8, 0xffff, v8
v_cmp_ne_u32 vcc, 0, v8
s_cbranch_vccnz L_ph
L_ph_done:
s_waitcnt vmcnt(0)""")
    for r in range(32, 40):
        e(f"v_and_b32 v{r}, 0xffff0000, v{r}")
    e("s_mov_b32 s78, 0x3d372713\ns_mov_b32 s79, 0xc0135761")
    for r in range(4):
        g = 32 + r; t = 40 + r
        e(f"""v_mul_f32 v{t}, v{g}, v{g}
v_mul_f32 v{t}, v{t}, v{g}
v_fma_f32 v{t}, v{t}, s78, v{g}
v_mul_f32 v{t}, s79, v{t}
v_exp_f32 v{t}, v{t}
s_nop 0
v_add_f32 v{t}, 1.0, v{t}
v_rcp_f32 v{t}, v{t}
s_nop 0
v_mul_f32 v{t}, v{t}, v{g}""")
        rbf(t, t)
        e(f"v_mul_f32 v{t}, v{t}, v{36+r}")
    e(f"""v_cvt_pk_bf16_f32 v16, v40, v41
v_cvt_pk_bf16_f32 v17, v42, v43
ds_write_b64 v26, v[16:17] offset:{HL}""")
    stamp(3)
    e(f"""v_lshrrev_b32 v8, 4, v0
v_bfe_u32 v10, v0, 2, 2
v_lshl_add_u32 v11, v8, 2, v10
v_lshl_add_u32 v10, v8, 3, v10
v_lshlrev_b32 v10, 7, v10
v_lshlrev_b32 v11, 7, v11
v_and_b32 v12, 3, v0
v_lshlrev_b32 v13, 3, v12
s_lshl_b32 s78, s56, 5
v_add3_u32 v10, v10, v13, s78
v_add3_u32 v11, v11, v13, s78
v_add_u32 v4, {WDT}, v10
v_add_u32 v5, {WDT+128*128}, v11
v_add_u32 v6, {WOT}, v10
v_add_u32 v100, {FT+16384}, v10
v_add_u32 v101, {FT+16384+128*128}, v11
v_add_u32 v102, {FT}, v10
v_mul_u32_u24 v13, 288, v12
v_lshl_add_u32 v7, v8, 3, v13
v_lshl_add_u32 v3, v8, 4, v13
v_lshlrev_b32 v12, 8, v12
v_lshl_add_u32 v30, v8, 4, v12
s_lshl_b32 s79, s56, 9
v_lshl_add_u32 v112, v0, 3, s79
v_and_b32 v113, 7, v0
v_lshlrev_b32 v113, {6 + mlw}, v113
s_lshl_b32 s79, s56, {4 + mlw}
v_add_u32 v113, s79, v113
s_lshl_b32 s88, s52, 14
s_add_u32 s88, s88, {PO}
s_add_u32 s89, s88, 4096
s_add_u32 s90, s88, 8192
s_add_u32 s91, s88, 12288
s_lshl_b32 s92, s52, {9 + mlw}
s_add_u32 s92, s92, {PM}
v_and_b32 v29, 15, v0
v_lshlrev_b32 v29, 4, v29
v_lshl_add_u32 v29, v8, 2, v29
s_lshl_b32 s79, s56, 8
v_add_u32 v29, s79, v29
v_lshlrev_b32 v114, 2, v0
s_lshl_b32 s93, s52, 10
s_add_u32 s93, s93, s79
s_add_u32 s93, s93, {YW}
s_add_u32 s87, s93, {8*32768}
s_lshl_b32 s79, s53, 15
s_add_u32 s93, s93, s79
s_movk_i32 s82, 0xff
v_add_u32 v103, s94, v0
v_add_u32 v104, 64, v103
s_lshl_b32 s79, s56, 6
v_add_u32 v115, s79, v103""")
    for r in list(range(24, 28)) + list(range(116, 120)):
        e(f"v_mov_b32 v{r}, 0")
    e("s_waitcnt vmcnt(0) lgkmcnt(0)")
    if trig:
        e(f"""v_mov_b32 v8, {CNT}
s_mov_b32 s83, {spin}
L_wtr:
s_sleep 2
ds_read_b32 v9, v8 offset:12
s_sub_u32 s83, s83, 1
s_cbranch_scc1 L_wtr_ok
s_waitcnt lgkmcnt(0)
v_cmp_eq_u32 vcc, 0, v9
s_cbranch_vccnz L_wtr
L_wtr_ok:""")
        all_proj(True)
    e(f"""s_mov_b32 s83, {spin}
s_barrier""")
    stamp(5)
    if notail:
        e("s_barrier\ns_branch L_done")
    P = [10 + 2 * s if s < 7 else 120 for s in range(8)]
    def gather(first):
        e("buffer_load_dwordx4 v[124:127], v113, s[44:47], s92 offen sc1")
        for s in range(8):
            if not first:
                e(f"s_bitcmp1_b32 s86, {s}\ns_cbranch_scc1 L_g{s}")
            e(f"buffer_load_dwordx2 v[{P[s]}:{P[s]+1}], v112, s[44:47], s{88+s//2} offen offset:{2048*(s&1)} sc1")
            if not first:
                e(f"L_g{s}:")
    def hid_frags():
        for s in range(4):
            e(f"ds_read_b128 v[{48+4*s}:{51+4*s}], v3 offset:{HL+64*s}")
        e(f"ds_read_b64 v[66:67], v7 offset:{HL+256}")
    def wd_frags(va, vb):
        for s in range(4):
            e(f"ds_read_b64_tr_b16 v[{32+4*s}:{33+4*s}], v{va} offset:{4096*s}")
            e(f"ds_read_b64_tr_b16 v[{34+4*s}:{35+4*s}], v{va} offset:{4096*s+512}")
        e(f"ds_read_b64_tr_b16 v[64:65], v{vb}")
    def down_mfma(acc):
        for s in range(4):
            e(f"v_mfma_f32_16x16x32_bf16 v[{acc}:{acc+3}], v[{48+4*s}:{51+4*s}], v[{32+4*s}:{35+4*s}], v[{acc}:{acc+3}]")
        e(f"s_nop 5\nv_mfma_f32_16x16x16_bf16 v[{acc}:{acc+3}], v[66:67], v[64:65], v[{acc}:{acc+3}]")
    def wo_frags(vo, wob):
        for s in range(4):
            e(f"ds_read_b64_tr_b16 v[{wob+4*s}:{wob+1+4*s}], v{vo} offset:{4096*s}")
            e(f"ds_read_b64_tr_b16 v[{wob+2+4*s}:{wob+3+4*s}], v{vo} offset:{4096*s+512}")
    def down_all(tag):
        wd_frags(4, 5)
        e("s_waitcnt lgkmcnt(0)")
        down_mfma(24)
        if defer != 2:
            wo_frags(6, 68)
        e(f"s_cmp_eq_u32 s98, 0\ns_cbranch_scc1 L_dn{tag}\ns_waitcnt lgkmcnt(0)")
        wd_frags(100, 101)
        e("s_waitcnt lgkmcnt(0)")
        down_mfma(116)
        if defer != 2:
            wo_frags(102, 84)
        e(f"L_dn{tag}:")
    gather(True)
    if defer and not trig:
        all_proj(True)
    hid_frags()
    if defer != 1:
        down_all(0)
    e("s_branch L_h1\nL_h1_again:\ns_mov_b32 s86, 0")
    for s in range(8):
        e(f"""v_xor_b32 v122, v103, v{P[s]}
v_bitop3_b32 v122, v122, v{P[s]+1}, v104 {OR_XOR}
v_and_b32 v122, 0xff, v122
v_cmp_ne_u32 vcc, 0, v122
s_cmp_eq_u64 vcc, 0
s_cselect_b32 s84, {1 << s}, 0
s_or_b32 s86, s86, s84""")
    gather(False)
    e("""L_h1:
s_sub_u32 s83, s83, 1
s_cbranch_scc1 L_h1_done
s_waitcnt vmcnt(0)
v_xor_b32 v122, v103, v10
v_xor_b32 v123, v104, v11""")
    for r in list(range(12, 24)) + [120, 121]:
        e(f"v_bitop3_b32 v{122+(r&1)}, v{122+(r&1)}, v{r}, v{103+(r&1)} {OR_XOR}")
    e(f"""v_or_b32 v122, v122, v123
v_and_b32 v122, 0xff, v122
v_bitop3_b32 v122, v122, v126, s94 {OR_XOR}
v_bitop3_b32 v122, v122, v127, s94 {OR_XOR}
v_mov_b32 v8, v124
v_mov_b32 v9, v125
v_cmp_ne_u32 vcc, 0, v122
s_cbranch_vccnz L_h1_again
L_h1_done:
s_movk_i32 s84, 0xff00""")
    stamp(6)
    W = [f"v_and_b32 v{r}, s84, v{r}" for r in list(range(10, 24)) + [120, 121]]
    nl = "\n"
    e(f"""v_max_f32_dpp v122, v8, v8 quad_perm:[1,0,3,2] {DP}
{nl.join(W[0:3])}
v_max_f32_dpp v122, v122, v122 quad_perm:[2,3,0,1] {DP}
{nl.join(W[3:6])}
v_max_f32_dpp v122, v122, v122 row_half_mirror {DP}
v_sub_f32 v8, v8, v122
v_mul_f32 v8, s85, v8
v_exp_f32 v8, v8
{nl.join(W[6:11])}
v_mul_f32 v9, v9, v8
{nl.join(W[11:16])}
v_mul_f32_dpp v122, v8, v10 row_newbcast:0 {DP}
v_add_f32_dpp v9, v9, v9 quad_perm:[1,0,3,2] {DP}
v_mul_f32_dpp v123, v8, v11 row_newbcast:0 {DP}
v_fmac_f32_dpp v122, v8, v12 row_newbcast:1 {DP}
v_add_f32_dpp v9, v9, v9 quad_perm:[2,3,0,1] {DP}
v_fmac_f32_dpp v123, v8, v13 row_newbcast:1 {DP}
v_fmac_f32_dpp v122, v8, v14 row_newbcast:2 {DP}
v_add_f32_dpp v9, v9, v9 row_half_mirror {DP}
v_fmac_f32_dpp v123, v8, v15 row_newbcast:2 {DP}
v_rcp_f32 v9, v9""")
    for s in range(3, 8):
        e(f"v_fmac_f32_dpp v122, v8, v{P[s]} row_newbcast:{s} {DP}")
        e(f"v_fmac_f32_dpp v123, v8, v{P[s]+1} row_newbcast:{s} {DP}")
    e(f"""v_mul_f32 v122, v122, v9
v_mul_f32 v123, v123, v9
v_cvt_pk_bf16_f32 v122, v122, v123
ds_write_b32 v29, v122 offset:{OL}
s_waitcnt lgkmcnt(0)
s_barrier""")
    OF = 8 if defer else 48
    for s in range(4):
        e(f"ds_read_b128 v[{OF+4*s}:{OF+3+4*s}], v30 offset:{OL+64*s}")
    if defer == 1:
        down_all(1)
        e("s_waitcnt lgkmcnt(0)")
    if defer == 2:
        wo_frags(6, 68)
        e("s_cmp_eq_u32 s98, 0\ns_cbranch_scc1 L_wf\ns_waitcnt lgkmcnt(0)")
        wo_frags(102, 84)
        e("L_wf:\ns_waitcnt lgkmcnt(0)")
    for s in range(4):
        if not defer:
            e(f"s_waitcnt lgkmcnt({3-s})")
        e(f"v_mfma_f32_16x16x32_bf16 v[24:27], v[{OF+4*s}:{OF+3+4*s}], v[{68+4*s}:{71+4*s}], v[24:27]")
    e("s_cmp_eq_u32 s98, 0\ns_cbranch_scc1 L_y1")
    for s in range(4):
        e(f"v_mfma_f32_16x16x32_bf16 v[116:119], v[{OF+4*s}:{OF+3+4*s}], v[{84+4*s}:{87+4*s}], v[116:119]")
    e("s_nop 7")
    pick_batch(116, 116)
    e("""v_bfi_b32 v116, s82, v115, v116
buffer_store_dword v116, v114, s[44:47], s87 offen sc1
L_y1:
s_nop 7""")
    pick_batch(24, 24)
    e("""v_bfi_b32 v24, s82, v115, v24
buffer_store_dword v24, v114, s[44:47], s93 offen sc1
L_done:
s_mov_b64 exec, -1""")
    if stamps:
        e("s_waitcnt vmcnt(0)")
        stamp(7)
        e(f"""s_lshl_b32 s78, s2, {2 if bare & 8 else 3}
s_add_u32 s78, s78, s3
s_lshl_b32 s78, s78, 6
s_add_u32 s78, s78, {STAMP}
s_getreg_b32 s79, hwreg(HW_REG_XCC_ID, 0, 4)
v_mov_b32 v1, s78""")
        for k in range(8):
            e(f"v_mov_b32 v{4+k}, s{60+2*k}")
        e("""v_mov_b32 v12, s97
v_mov_b32 v13, s79
global_store_dwordx4 v1, v[4:7], s[26:27]
global_store_dwordx4 v1, v[8:11], s[26:27] offset:16
global_store_dwordx2 v1, v[12:13], s[26:27] offset:32""")
    e(f"""L_end:
s_endpgm
.section .rodata,"a"
.p2align 6
.amdhsa_kernel {KN}
  .amdhsa_next_free_vgpr {NV}
  .amdhsa_next_free_sgpr 100
  .amdhsa_accum_offset {(NV+3)//4*4}
  .amdhsa_group_segment_fixed_size 0
  .amdhsa_kernarg_size 96
  .amdhsa_user_sgpr_count 2
  .amdhsa_user_sgpr_kernarg_segment_ptr 1
  .amdhsa_system_sgpr_workgroup_id_x 1
  .amdhsa_float_denorm_mode_32 3
.end_amdhsa_kernel""")
    if order:
        o = e.o
        ib = o.index("    s_cbranch_scc1 L_svc")
        isv = o.index("L_svc:") - 1
        iend = o.index("L_end:")
        assert o[iend + 1].strip() == "s_endpgm" and o[isv].startswith(";")
        e.o = o[:ib] + ["    s_cbranch_scc0 L_stream"] + o[isv:iend + 2] + ["L_stream:"] + o[ib + 1:isv] + o[iend + 2:]
    if pf:
        e.o.insert(e.o.index('.section .rodata,"a"'), "L_code_end:")
    out = []
    for ln in e.o:
        if ln.rstrip().endswith(" sc1") and "buffer_store" in ln:
            ln = ln.rstrip()[:-3] + stf
        elif ln.rstrip().endswith(" sc1") and "buffer_load" in ln:
            ln = ln.rstrip()[:-3] + ldf
        out.append(ln)
    e.o = out
    e.o = [ln.rstrip().rstrip(";").rstrip() if not ln.lstrip().startswith(";") else ln for ln in e.o]
    txt = e.text()
    first, rest = txt.split("\n", 1)
    return HEADER + first + "\n" + DOC + rest

if __name__ == "__main__":
    kw = eval("dict(%s)" % (sys.argv[1] if len(sys.argv) > 1 else ""))
    sys.stdout.write(gen(**kw))
```
